```python
import torch

def _softmax(x, axis=-1):
    return torch.softmax(x, dim=axis)
def _gelu(x):
    return torch.nn.functional.gelu(x, approximate="tanh")
def _silu(x):
    return torch.nn.functional.silu(x)
def _sigmoid(x):
    return torch.sigmoid(x)
def _layernorm(x, axis=-1, eps=1e-5):
    m = x.mean(dim=axis, keepdim=True)
    v = x.var(dim=axis, keepdim=True, unbiased=False)
    return (x - m) / torch.sqrt(v + eps)
def _scatter_add(tgt, idx, src, axis=0):
    return tgt.clone().index_add_(axis, idx, src)
def _segment_sum(src, seg, n):
    out = torch.zeros((n,) + src.shape[1:], dtype=src.dtype)
    return out.index_add_(0, seg, src)
def _pad(x, pw):
    flat = tuple(v for pair in reversed(pw) for v in pair)
    return torch.nn.functional.pad(x, flat)

kernel_name = 'standalone__mixer_s_mlp__prompt'

def setup_inputs():

    _w = (lambda a: (lambda t: t.to(torch.bfloat16) if t.is_floating_point() else t)(torch.as_tensor(a)))
    B, S, D, F = 1, 2048, 512, 1792
    return {
        "x":  _w((lambda *s: torch.randn(*s, dtype=torch.bfloat16) * 0.4)(B, S, D)),
        "w1": _w((lambda *s: torch.randn(*s, dtype=torch.bfloat16) * 3.2)(D, D) * (D ** -0.5)),
        "w2": _w((lambda *s: torch.randn(*s, dtype=torch.bfloat16) * 3.2)(D, D) * (D ** -0.5)),
        "w3": _w((lambda *s: torch.randn(*s, dtype=torch.bfloat16) * 3.2)(D, F) * (D ** -0.5)),
        "w4": _w((lambda *s: torch.randn(*s, dtype=torch.bfloat16) * 0.8)(F, D) * (F ** -0.5)),
    }

def reference(x, w1, w2, w3, w4):
    B, S, D = x.shape
    h = _gelu(_layernorm(x, axis=-1) @ w1)
    c = D // 4
    g0 = _pad(h[:, :, 0*c:1*c], ((0, 0), (1, 0), (0, 0)))[:, :S, :]
    g1 = _pad(h[:, :, 1*c:2*c], ((0, 0), (0, 1), (0, 0)))[:, 1:, :]
    g2 = _pad(h[:, :, 2*c:3*c], ((0, 0), (2, 0), (0, 0)))[:, :S, :]
    g3 = _pad(h[:, :, 3*c:   ], ((0, 0), (0, 2), (0, 0)))[:, 2:, :]
    hs = torch.concatenate([g0, g1, g2, g3], axis=-1) @ w2
    x1 = x + hs
    h2 = _gelu(_layernorm(x1, axis=-1) @ w3) @ w4
    return x1 + h2
```

```python
import re

_reg_re = re.compile(r'^-?\|?([vas])(\d+)\|?$')
_rng_re = re.compile(r'^-?\|?([vas])\[(\d+):(\d+)\]\|?$')
TRANS = ("v_exp_f32", "v_log_f32", "v_rcp_f32", "v_rsq_f32", "v_sqrt_f32", "v_sin_f32", "v_cos_f32")


def regs_of(tok):
    tok = tok.strip()
    m = _reg_re.match(tok)
    if m:
        return {(m.group(1), int(m.group(2)))}
    m = _rng_re.match(tok)
    if m:
        return {(m.group(1), i) for i in range(int(m.group(2)), int(m.group(3)) + 1)}
    if tok == "vcc":
        return {("s", 106), ("s", 107)}
    if tok == "m0":
        return {("m", 0)}
    if tok == "exec":
        return {("x", 0)}
    return set()


class Ins:
    __slots__ = ("text", "op", "kind", "wr", "rd", "srcc", "dset", "passes", "ws", "lds_dma", "wide_store")


def parse(text):
    t = text.split(";")[0].strip()
    parts = t.split(None, 1)
    op = parts[0]
    ops = []
    if len(parts) > 1:
        cur = ""
        depth = 0
        for ch in parts[1]:
            if ch == "[":
                depth += 1
            if ch == "]":
                depth -= 1
            if ch == "," and depth == 0:
                ops.append(cur.strip())
                cur = ""
            else:
                cur += ch
        ops.append(cur.strip())
        last = ops[-1].split()
        ops[-1] = last[0] if last else ""
        mods = last[1:]
    else:
        mods = []
    i = Ins()
    i.text = text
    i.op = op
    i.wr = set()
    i.rd = set()
    i.srcc = set()
    i.passes = 0
    i.ws = 1
    i.lds_dma = False
    i.wide_store = False
    base = re.sub(r'_e(32|64)$', '', op)
    R = [regs_of(o) for o in ops]
    if op.startswith("v_mfma"):
        i.kind = "mfma"
        i.passes = 8 if "32x32" in op else 4
        i.wr = R[0]
        i.rd = R[1] | R[2]
        i.srcc = R[3]
    elif op.startswith("v_"):
        i.kind = "valu"
        if base in TRANS:
            i.kind = "trans"
        if op.startswith("v_dot2"):
            i.kind = "dot"
            i.srcc = R[3] if len(R) > 3 else R[0]
        if op.startswith("v_permlane"):
            i.kind = "perm"
            i.wr = R[0] | R[1]
            i.rd = R[0] | R[1]
        else:
            i.wr = set(R[0])
            for r in R[1:]:
                i.rd |= r
            if op.startswith("v_fmac") or op.startswith("v_dot2c"):
                i.rd |= R[0]
            if base in ("v_cndmask_b32",) and len(ops) == 3:
                i.rd |= regs_of("vcc")
            if op.startswith("v_readfirstlane") or op.startswith("v_readlane"):
                i.kind = "rdlane"
    elif op.startswith("ds_read"):
        i.kind = "ds"
        i.wr = R[0]
        i.rd = R[1]
    elif op.startswith("ds_write"):
        i.kind = "ds"
        for r in R:
            i.rd |= r
    elif op.startswith("buffer_load") or op.startswith("global_load"):
        i.kind = "vmem"
        if "lds" in mods:
            i.lds_dma = True
            for r in R:
                i.rd |= r
        else:
            i.wr = R[0]
            for r in R[1:]:
                i.rd |= r
    elif op.startswith("buffer_store") or op.startswith("global_store"):
        i.kind = "vmem"
        for r in R:
            i.rd |= r
        if op.endswith("x4") or op.endswith("x3"):
            i.wide_store = True
            i.dset = R[0] if op.startswith("buffer") else R[1]
    elif op == "s_nop":
        i.kind = "nop"
        i.ws = int(ops[0]) + 1
    elif op.startswith("s_"):
        i.kind = "salu"
        if ops and not op.startswith("s_cmp") and not op.startswith("s_cbranch") and not op.startswith("s_waitcnt") \
                and not op.startswith("s_branch") and not op.startswith("s_barrier"):
            i.wr = set(R[0])
            for r in R[1:]:
                i.rd |= r
    else:
        i.kind = "other"
    return i


VALUK = ("valu", "trans", "dot", "perm", "rdlane")


def need(p, c):
    n = 0
    if p.kind in VALUK:
        pv = {r for r in p.wr if r[0] in "va"}
        ps = {r for r in p.wr if r[0] == "s"}
        if c.kind == "mfma" and pv & (c.rd | c.srcc):
            n = max(n, 2)
        if c.kind == "perm" and pv & c.rd:
            n = max(n, 2)
        if c.kind == "rdlane" and pv & c.rd:
            n = max(n, 1)
        if p.kind == "trans" and c.kind in VALUK and c.kind != "trans" and pv & (c.rd | c.wr):
            n = max(n, 1)
        if p.kind == "trans" and c.kind in ("vmem", "ds") and pv & c.rd:
            n = max(n, 1)
        if p.kind == "dot":
            if c.kind == "dot" and c.op == p.op:
                if pv & (c.rd - c.srcc):
                    n = max(n, 3)
            elif pv & (c.rd | c.wr | c.srcc):
                n = max(n, 3)
        if ps:
            if c.kind in VALUK and ps & c.rd:
                n = max(n, 2)
            if c.kind == "vmem" and ps & c.rd:
                n = max(n, 5)
    if p.kind == "mfma":
        big = p.passes == 8
        if c.kind == "mfma":
            if p.wr & c.rd:
                n = max(n, 12 if big else 8)
            if p.wr & c.srcc:
                if not (p.wr == c.srcc and p.passes == c.passes):
                    n = max(n, 10 if big else 6)
            elif p.wr & c.wr:
                n = max(n, 12 if big else 8)
        elif c.kind in VALUK or c.kind in ("vmem", "ds"):
            if p.wr & (c.rd | c.wr):
                n = max(n, 12 if big else 8)
            if c.kind in VALUK and p.srcc & c.wr:
                n = max(n, 7 if big else 3)
    if p.kind == "salu" and ("m", 0) in p.wr and c.lds_dma:
        n = max(n, 1)
    if p.wide_store:
        if c.kind in VALUK and p.dset & c.wr:
            n = max(n, 2)
        elif p.dset & c.wr:
            n = max(n, 1)
    return n


class Asm:
    def __init__(self):
        self.lines = []
        self.hist = []
        self.vm = []
        self.lg = []
        self.smem = False
        self.nnop = 0

    def raw(self, s):
        self.lines.append(s)

    def _pad(self, n):
        while n > 0:
            k = min(n, 16)
            t = f"s_nop {k-1}"
            self.lines.append("    " + t)
            self.hist.append(parse(t))
            self.nnop += 1
            n -= k

    def e(self, s, tag=None):
        for line in s.split("\n"):
            line = line.strip()
            if not line:
                continue
            if line.endswith(":"):
                self.flush()
                self.lines.append(line)
                continue
            c = parse(line)
            if c.op.startswith("s_cbranch") or c.op == "s_branch":
                self.flush()
            d = 0
            req = 0
            for p in reversed(self.hist[-24:]):
                n = need(p, c)
                if n - d > req:
                    req = n - d
                d += p.ws
                if d >= 20:
                    break
            if req > 0:
                self._pad(req)
            self.lines.append("    " + line)
            self.hist.append(c)
            if c.kind == "vmem":
                self.vm.append(tag)
            elif c.kind == "ds":
                self.lg.append(tag)
            elif c.op.startswith("s_load") or c.op.startswith("s_memtime"):
                self.smem = True

    def flush(self):
        d = 0
        req = 0
        for p in reversed(self.hist[-24:]):
            n = 0
            if p.kind == "mfma":
                n = 12 if p.passes == 8 else 8
            elif p.kind in VALUK:
                n = 5 if any(r[0] == "s" for r in p.wr) else 3
            elif p.wide_store:
                n = 2
            elif p.kind == "salu" and ("m", 0) in p.wr:
                n = 1
            req = max(req, n - d)
            d += p.ws
            if d >= 20:
                break
        if req > 0:
            self._pad(req)

    def wait_vm(self, tag):
        idx = [i for i, t in enumerate(self.vm) if t == tag]
        if not idx:
            return
        n = len(self.vm) - 1 - idx[-1]
        assert n <= 63, f"vmcnt overflow {n} for {tag}"
        self.e(f"s_waitcnt vmcnt({n})")
        self.vm = self.vm[idx[-1] + 1:]

    def wait_vm0(self):
        self.e("s_waitcnt vmcnt(0)")
        self.vm = []

    def wait_lg(self, tag):
        idx = [i for i, t in enumerate(self.lg) if t == tag]
        if not idx:
            return
        n = len(self.lg) - 1 - idx[-1]
        n = min(n, 15)
        self.e(f"s_waitcnt lgkmcnt({n})")
        self.lg = self.lg[len(self.lg) - n:] if n else []
        if n == 0:
            self.smem = False

    def wait_lg0(self):
        self.e("s_waitcnt lgkmcnt(0)")
        self.lg = []
        self.smem = False

    def text(self):
        return "\n".join(self.lines) + "\n"
```

```python
import sys, math, struct
sys.path.insert(0, "tools")
from asmlib import Asm

OPT = dict(prof=0, gst="sc1", xst="sc1", hst="sc1", ost="sc1", forceslow=0)
for a in sys.argv[1:]:
    k, v = a.split("=")
    OPT[k] = int(v) if v.lstrip("-").isdigit() else v
PROF = OPT["prof"]


def fl(name):
    v = OPT[name]
    return "" if v == "none" else " " + v.replace("_", " ")


def f32(x):
    return "0x%08x" % struct.unpack("<I", struct.pack("<f", x))[0]


G_OFF = 0
X1_OFF = 2 << 20
H3_OFF = 4 << 20
STAT_OFF = 11 << 20
FLAG_OFF = (11 << 20) + (256 << 10)
PROF_OFF = 12 << 20
WS_SIZE = 16 << 20
LW1 = 0
LW2 = 65536
LST = 131072
LMISC = LST + 4 * 7168
LDS_TOTAL = 163840
RED = 0
sW = "s3"
SX, SW1, SW2, SW3, SW4, SOUT, SWS, SDBG = ("s[4:7]", "s[8:11]", "s[12:15]", "s[16:19]", "s[20:23]", "s[24:27]",
                                           "s[28:31]", "s[32:35]")
sG, sM, sS, sJ, sT0, sMode, sHello, sFl = "s52", "s53", "s54", "s55", "s56", "s57", "s58", "s59"
sFB = "s[60:61]"
sDB = "s[62:63]"
sStg = "s64"
sT1, sT2, sT3, sT4, sT5, sT6 = "s65", "s66", "s67", "s68", "s69", "s70"
sRep, sCnt = "s71", "s72"
sH0, sH1 = "s73", "s74"
sPar = "s75"
sW3o, sW3m = "s76", "s77"
vL, vL16, vRep, vW4d, vOne, vMisc = "v0", "v1", "v6", "v7", "v10", "v11"
TRB = 2
W4T = 8
W3D = 12
ONES = 20
ASEL = 24
cA, cB, cI, cM = 28, 29, 30, 31
X1P = 32
TMP = 40
ACC = 64
BF = 128
AB = 224

K1 = -2.0 * math.sqrt(2.0 / math.pi) * math.log2(math.e)
K3 = 0.044715

A = Asm()
e = A.e
nlab = [0]
nstamp = [0]


def lab(p="L"):
    nlab[0] += 1
    return f"{p}_{nlab[0]}"


def stamp():
    if PROF:
        i = nstamp[0]
        assert i < 12
        e(f"s_memtime s[{78+2*i}:{79+2*i}]")
        nstamp[0] += 1


def vr(b, n=4):
    return f"v[{b}:{b+n-1}]"


def ar(b, n=4):
    return f"a[{b}:{b+n-1}]"


def srd(dst, ptr_lo, add=None, size=0x7fffffff):
    if add is None:
        e(f"s_mov_b32 s{dst}, s{ptr_lo}\ns_mov_b32 s{dst+1}, s{ptr_lo+1}")
    else:
        e(f"s_add_u32 s{dst}, s{ptr_lo}, {add}\ns_addc_u32 s{dst+1}, s{ptr_lo+1}, 0")
    e(f"s_mov_b32 s{dst+2}, {size}\ns_mov_b32 s{dst+3}, 0x20000")


def poll(soff, ndw, nrep):
    L, Lg, Lw = lab("Lp"), lab("Lg"), lab("Lw")
    A.wait_lg0()
    e(f"s_mov_b32 {sRep}, {sMode}\ns_mov_b32 {sCnt}, 0")
    e(f"{L}:")
    e(f"s_add_u32 {sCnt}, {sCnt}, 1\ns_cmp_gt_u32 {sCnt}, 30000\ns_cbranch_scc1 L_end")
    e(f"s_cmp_ge_u32 {sRep}, {nrep*64}\ns_cbranch_scc1 {Lg}")
    e(f"s_add_u32 {sT6}, {soff}, {sRep}")
    e(f"s_load_dwordx{ndw} s[36:{36+ndw-1}], {sFB}, {sT6}")
    e(f"s_add_u32 {sRep}, {sRep}, 64\ns_branch {Lw}")
    e(f"{Lg}:")
    e(f"s_load_dwordx{ndw} s[36:{36+ndw-1}], {sFB}, {soff} glc")
    e(f"{Lw}:")
    A.wait_lg0()
    n = ndw
    while n > 2:
        for i in range(0, n // 2, 2):
            e(f"s_and_b64 s[{36+i}:{37+i}], s[{36+i}:{37+i}], s[{36+n//2+i}:{37+n//2+i}]")
        n //= 2
    e("s_and_b32 s36, s36, s37")
    e(f"s_cbranch_scc0 {L}")


def publish(soff, nrep):
    Ls, Ld = lab("Ls"), lab("Ld")
    e(f"s_cmp_lg_u32 {sMode}, 0\ns_cbranch_scc1 {Ls}")
    e(f"s_mov_b64 exec, {(1 << nrep) - 1}")
    e(f"buffer_store_dword {vOne}, {vRep}, {SWS}, {soff} offen", tag="flag")
    e(f"s_branch {Ld}")
    e(f"{Ls}:")
    e("s_mov_b64 exec, 1")
    e(f"buffer_store_dword {vOne}, {vRep}, {SWS}, {soff} offen sc1", tag="flag")
    A.vm.pop()
    e(f"{Ld}:")
    e("s_mov_b64 exec, -1")


def stat_consts(vS, vQ, t):
    e(f"v_mul_f32 v{cM}, {f32(-1.0/512)}, v{vS}")
    e(f"v_mul_f32 v{t}, v{cM}, v{cM}")
    e(f"v_mov_b32 v{t+1}, {f32(1.0/512)}")
    e(f"v_fma_f32 v{t}, v{vQ}, v{t+1}, -v{t}")
    e(f"v_max_f32 v{t}, 0, v{t}")
    e(f"v_add_f32 v{t}, {f32(1e-5)}, v{t}")
    e(f"v_rsq_f32 v{t+1}, v{t}")
    e(f"v_sqrt_f32 v{cI}, v{t}")
    e(f"v_mul_f32 v{cA}, {f32(K1)}, v{t+1}")
    e(f"v_mul_f32 v{t}, v{t+1}, v{t+1}")
    e(f"v_mul_f32 v{t}, {f32(K3)}, v{t}")
    e(f"v_mul_f32 v{cB}, v{cA}, v{t}")


def gelu4(a, T, dst):
    o = []
    for i in range(4): o.append(f"v_mul_f32_e64 v{T+i}, v{a[i]}, v{a[i]}")
    for i in range(4): o.append(f"v_fma_f32 v{T+i}, v{T+i}, v{cB}, v{cA}")
    for i in range(4): o.append(f"v_mul_f32_e64 v{T+i}, v{a[i]}, v{T+i}")
    for i in range(4): o.append(f"v_exp_f32_e64 v{T+i}, v{T+i}")
    for i in range(4): o.append(f"v_fma_f32 v{T+i}, v{T+i}, v{cI}, v{cI}")
    for i in range(4): o.append(f"v_rcp_f32_e64 v{T+i}, v{T+i}")
    for i in range(4): o.append(f"v_mul_f32_e64 v{T+i}, v{a[i]}, v{T+i}")
    o.append(f"v_cvt_pk_bf16_f32 v{dst[0]}, v{T}, v{T+1}")
    o.append(f"v_cvt_pk_bf16_f32 v{dst[1]}, v{T+2}, v{T+3}")
    return o


def gelu4pk(a, T, dst):
    o = []
    for i in (0, 2): o.append(f"v_pk_mul_f32 v[{T+i}:{T+i+1}], v[{a+i}:{a+i+1}], v[{a+i}:{a+i+1}]")
    for i in (0, 2): o.append(f"v_pk_fma_f32 v[{T+i}:{T+i+1}], v[{T+i}:{T+i+1}], v[{cA}:{cB}], v[{cA}:{cB}] op_sel:[0,1,0] op_sel_hi:[1,1,0]")
    for i in (0, 2): o.append(f"v_pk_mul_f32 v[{T+i}:{T+i+1}], v[{a+i}:{a+i+1}], v[{T+i}:{T+i+1}]")
    for i in range(4): o.append(f"v_exp_f32_e64 v{T+i}, v{T+i}")
    for i in (0, 2): o.append(f"v_pk_fma_f32 v[{T+i}:{T+i+1}], v[{T+i}:{T+i+1}], v[{cI}:{cM}], v[{cI}:{cM}] op_sel:[0,0,0] op_sel_hi:[1,0,0]")
    for i in range(4): o.append(f"v_rcp_f32_e64 v{T+i}, v{T+i}")
    for i in (0, 2): o.append(f"v_pk_mul_f32 v[{T+i}:{T+i+1}], v[{a+i}:{a+i+1}], v[{T+i}:{T+i+1}]")
    o.append(f"v_cvt_pk_bf16_f32 v{dst[0]}, v{T}, v{T+1}")
    o.append(f"v_cvt_pk_bf16_f32 v{dst[1]}, v{T+2}, v{T+3}")
    return o


def u_of(par, blk, c2):
    if blk == 3:
        return 0 if par else 6
    return (1 if par else 0) + 2 * blk + c2


STAGES = []
for blk in (0, 1, 3, 2):
    ks = []
    for mm in range(4):
        for c2 in range(1 if blk == 3 else 2):
            ks.append(7 * mm + u_of(mm & 1, blk, c2))
    STAGES.append(ks)
W4ORDER = [2 * k + rd for st in STAGES for k in st for rd in range(2)]
assert sorted(W4ORDER) == list(range(56))


def w4_issue(r):
    for n in range(7):
        d = W4ORDER[7 * r + n]
        if n == 0:
            e(f"s_mov_b32 m0, {sStg}")
        if n == 4:
            e(f"s_add_u32 m0, {sStg}, 4096")
        so = 8192 * d - 1024 * (n & 3)
        assert so >= 0
        e(f"s_mov_b32 {sT5}, {so}")
        e(f"buffer_load_dwordx4 {vW4d}, {SW4}, {sT5} offen offset:{1024*(n&3)} lds", tag=f"w4r{r}")


def w4_consume(r):
    A.wait_vm(f"w4r{r}")
    for n in range(7):
        d = W4ORDER[7 * r + n]
        kf, rd = d >> 1, d & 1
        for b in range(2):
            e(f"ds_read_b64_tr_b16 {ar(8*kf+4*b+2*rd, 2)}, v{W4T+b} offset:{1024*n}", tag="w4c")
    A.wait_lg("w4c")


def w3_issue(period, tag):
    for n in range(7):
        if n == 0:
            e(f"s_add_u32 m0, {sW3m}, {period*4*7168}")
        if n == 4:
            e(f"s_add_u32 m0, {sW3m}, {period*4*7168+4096}")
        e(f"s_add_u32 {sT5}, {sW3o}, {period*4*114688 + 3072 - 1024*(n&3)}")
        e(f"buffer_load_dwordx4 v{W3D+n}, {SW3}, {sT5} offen offset:{1024*(n&3)} lds", tag=tag)


def tr_bases12(lbase, rot):
    t = TMP
    e(f"v_lshrrev_b32 v{t}, 4, {vL}")
    e(f"v_bfe_u32 v{t+1}, {vL}, 2, 2")
    e(f"v_and_b32 v{t+2}, 3, {vL}")
    e(f"v_lshlrev_b32 v{t+3}, 9, v{t}")
    e(f"v_lshl_add_u32 v{t+3}, v{t+1}, 7, v{t+3}")
    e(f"v_lshl_add_u32 v{t+3}, v{t+2}, 3, v{t+3}")
    if lbase:
        e(f"v_add_u32 v{t+3}, {lbase}, v{t+3}")
    e(f"v_and_b32 v{t}, 1, v{t}")
    e(f"v_lshrrev_b32 v{t+1}, 1, v{t+1}")
    e(f"v_lshl_add_u32 v{t}, v{t}, 1, v{t+1}")
    if rot:
        e(f"v_xor_b32 v{t}, {sW}, v{t}")
    for i in range(4):
        e(f"v_xor_b32 v{t+1}, {i}, v{t}")
        e(f"v_lshl_add_u32 v{TRB+i}, v{t+1}, 5, v{t+3}")


def gemm12(bf, cinit, colsum, pre_read, pre_mfma):
    D = 6
    N = 64

    def rd(i):
        ks, sl = i >> 2, i & 3
        pre_read(i)
        b = AB + 4 * (i & 7)
        for r in range(2):
            e(f"ds_read_b64_tr_b16 {ar(b+2*r, 2)}, v{TRB+sl} offset:{4096*ks+2048*r}", tag=f"a{i}")
    for i in range(D):
        rd(i)
    for i in range(N):
        ks, sl = i >> 2, i & 3
        if i + D < N:
            rd(i + D)
        pre_mfma(i)
        A.wait_lg(f"a{i}")
        c = vr(ACC + 4 * sl) if (cinit or ks > 0) else "0"
        e(f"v_mfma_f32_16x16x32_bf16 {vr(ACC+4*sl)}, {ar(AB+4*(i&7))}, {vr(bf+4*ks)}, {c}")
        if colsum and sl == 0:
            c = vr(ACC + 16) if ks > 0 else "0"
            e(f"v_mfma_f32_16x16x32_bf16 {vr(ACC+16)}, {ar(AB+4*(i&7))}, {vr(ONES)}, {c}")


A.raw(f"; @launch grid=(256,1,1) block=(256,1,1) lds={LDS_TOTAL}")
A.raw('.amdgcn_target "amdgcn-amd-amdhsa--gfx950"')
A.raw(".text\n.globl standalone__mixer_s_mlp__prompt_kernel\n.p2align 8\n.type standalone__mixer_s_mlp__prompt_kernel,@function")
A.raw("standalone__mixer_s_mlp__prompt_kernel:")
e("s_cmp_ge_u32 s2, 256\ns_cbranch_scc1 L_end")
e("s_load_dwordx16 s[36:51], s[0:1], 0")
stamp()
e("s_getpc_b64 s[68:69]")
A.raw("L_pc:")
e(f"v_lshrrev_b32 v2, 6, v0")
e(f"v_and_b32 {vL}, 63, v0")
e(f"v_readfirstlane_b32 {sW}, v2")
e(f"s_and_b32 {sT1}, s2, 7\ns_lshr_b32 {sT2}, s2, 3")
e(f"s_lshr_b32 {sT3}, {sT2}, 4\ns_lshl_b32 {sG}, {sT1}, 1\ns_add_u32 {sG}, {sG}, {sT3}")
e(f"s_and_b32 {sM}, {sT2}, 15\ns_lshr_b32 {sS}, {sM}, 3\ns_and_b32 {sJ}, {sM}, 7\ns_and_b32 {sPar}, {sM}, 1")
e(f"s_lshl_b32 {sT0}, {sG}, 7\ns_lshl_b32 {sT1}, {sS}, 6\ns_add_u32 {sT0}, {sT0}, {sT1}")
e(f"v_lshlrev_b32 {vL16}, 4, {vL}")
e(f"v_lshlrev_b32 {vRep}, 6, {vL}")
e(f"v_mov_b32 {vOne}, 1")
e(f"s_lshr_b32 {sT1}, {sJ}, 1\ns_lshr_b32 {sT2}, {sT1}, 1\ns_add_u32 {sT2}, {sT2}, 1")
e(f"s_and_b32 {sT1}, {sT1}, 1\ns_cmp_eq_u32 {sT1}, 0\ns_cselect_b32 {sT3}, -1, 1\ns_mul_i32 {sT2}, {sT2}, {sT3}")
e(f"s_lshl_b32 {sT1}, {sW}, 4\ns_add_u32 {sT1}, {sT1}, {sT0}\ns_add_u32 {sT2}, {sT2}, {sT1}")
e(f"v_and_b32 v40, 15, {vL}\nv_add_u32 v41, {sT1}, v40\nv_add_u32 v40, {sT2}, v40\nv_lshlrev_b32 v40, 10, v40")
e(f"v_lshrrev_b32 v42, 4, {vL}\nv_lshl_add_u32 v40, v42, 4, v40")
e(f"v_lshlrev_b32 v41, 10, v41\nv_lshl_add_u32 {vMisc}, v42, 3, v41")
e(f"v_lshrrev_b32 v46, 5, {vL}\nv_bfe_u32 v47, {vL}, 3, 2\nv_bfe_u32 v48, {vL}, 1, 2\nv_and_b32 v49, 1, {vL}")
e(f"v_lshrrev_b32 v50, 1, v47\nv_lshl_add_u32 v50, v46, 1, v50\nv_xor_b32 v50, v48, v50")
e(f"v_lshlrev_b32 v50, 5, v50\nv_lshl_add_u32 v50, v49, 4, v50\nv_lshl_add_u32 v50, v47, 10, v50")
e(f"v_lshl_add_u32 v44, v46, 13, v50\nv_lshl_add_u32 v45, v46, 12, v50")
for i in range(4): e(f"v_mov_b32 v{52+i}, 0")
e(f"s_lshl_b32 {sFl}, {sG}, 15\ns_add_u32 {sFl}, {sFl}, {FLAG_OFF}")
e(f"s_lshl_b32 {sT3}, {sM}, 11\ns_add_u32 {sT3}, {sT3}, {sFl}")
e(f"s_cmp_eq_u32 {sW}, 0\ns_cselect_b32 {sT3}, {sT3}, 0x7f000000")
e(f"s_lshl_b32 {sT1}, {sJ}, 7")
e(f"s_mul_i32 {sT2}, {sM}, 224")
e(f"s_mul_i32 s70, {sW}, {448*1024}\ns_add_u32 s70, s70, {sT1}")
A.wait_lg0()
srd(28, 50, size=WS_SIZE)
e(f"buffer_store_dwordx4 v[52:55], {vL16}, {SWS}, {sT3} offen sc1", tag="rst")
e(f"buffer_store_dwordx4 v[52:55], {vL16}, {SWS}, {sT3} offen offset:1024 sc1", tag="rst")
srd(4, 36, size=2048 * 1024)
for ks in range(16):
    e(f"buffer_load_dwordx4 {vr(BF+4*ks)}, v40, {SX}, 0 offen offset:{64*ks}", tag=f"x{ks}")
srd(8, 38, add=sT1, size=512 * 1024 - 896)
srd(12, 40, add=sT1, size=512 * 1024 - 896)
e(f"s_lshl_b32 s71, {sW}, 15")
e(f"s_lshl_b32 s72, {sW}, 12")
for c in range(4):
    e(f"s_add_u32 m0, s72, {LW1 + 16384*c}")
    for n in range(4):
        so = 131072 * c + [0, 15, 2, 17][n] * 1024
        e(f"s_add_u32 s73, s71, {so}")
        e(f"buffer_load_dwordx4 v44, {SW1}, s73 offen offset:{1024*n} lds", tag=f"w1c{c}")
e(f"v_lshlrev_b32 v46, 7, v0\nv_lshl_add_u32 v46, v2, 13, v46\nv_min_u32 v46, L_codeend-L_pc-4, v46")
e("global_load_dword v47, v46, s[68:69]", tag="pf")
for c in range(4):
    e(f"s_add_u32 m0, s72, {LW2 + 16384*c}")
    for n in range(4):
        so = 131072 * c + 7 * 1024 * n
        e(f"s_add_u32 s73, s71, {so}")
        e(f"buffer_load_dwordx4 v45, {SW2}, s73 offen offset:{1024*n} lds", tag="w2")
e(f"s_sub_u32 s16, s42, 3072\ns_subb_u32 s17, s43, 0")
e(f"s_add_u32 s16, s16, {sT2}\ns_addc_u32 s17, s17, 0")
e(f"s_mov_b32 s18, {512*3584 + 3072 - 224*15}\ns_mov_b32 s19, 0x20000")
srd(20, 44, add="s70", size=448 * 1024 - 896)
srd(24, 46, size=2048 * 1024)
srd(32, 48, size=256)
e(f"s_add_u32 s60, s50, {sFl}\ns_addc_u32 s61, s51, 0")
e(f"s_lshl_b32 {sT2}, {sG}, 4\ns_add_u32 s62, s48, {sT2}\ns_addc_u32 s63, s49, 0")
e(f"s_add_u32 {sT2}, {sT2}, {sM}")
e(f"s_cmp_eq_u32 {sW}, 0\ns_cselect_b32 {sT2}, {sT2}, 0x7f000000")
e(f"s_getreg_b32 {sHello}, hwreg(HW_REG_XCC_ID)")
e(f"s_and_b32 {sHello}, {sHello}, 15\ns_or_b32 {sHello}, {sHello}, 0x80")
e(f"v_mov_b32 v56, {sHello}\nv_mov_b32 v57, 0")
e(f"s_mul_i32 {sHello}, {sHello}, 0x01010101")
e(f"s_mul_i32 {sStg}, {sW}, 7168\ns_mov_b32 {sW3m}, {sStg}\ns_add_u32 {sStg}, {sStg}, {LST}")
e(f"s_mul_i32 {sW3o}, {sW}, 114688")
for i in range(4): e(f"v_mov_b32 v{ONES+i}, 0x3f803f80")
e(f"v_lshrrev_b32 v46, 5, {vL}\nv_bfe_u32 v47, {vL}, 3, 2\nv_bfe_u32 v48, {vL}, 2, 1\nv_and_b32 v49, 3, {vL}")
e(f"v_lshrrev_b32 v50, 1, v47\nv_xor_b32 v50, v48, v50\nv_lshlrev_b32 v50, 6, v50\nv_lshl_add_u32 v50, v49, 4, v50")
e(f"v_lshl_add_u32 v47, v46, 2, v47\nv_lshl_add_u32 {vW4d}, v47, 10, v50")
e(f"v_bfe_u32 v47, {vL}, 2, 2\nv_bfe_u32 v48, {vL}, 4, 1")
e(f"v_lshlrev_b32 v50, 9, v46\nv_lshl_add_u32 v50, v47, 7, v50\nv_lshl_add_u32 v50, v48, 5, v50\nv_lshl_add_u32 v50, v49, 3, v50")
e(f"v_add_u32 v50, {sStg}, v50\nv_lshrrev_b32 v47, 1, v47")
e(f"v_lshl_add_u32 v{W4T}, v47, 6, v50\nv_xor_b32 v47, 1, v47\nv_lshl_add_u32 v{W4T+1}, v47, 6, v50")
for g in range(448): assert (g * 1171) >> 16 == g // 56
e(f"s_lshl_b32 {sT4}, {sPar}, 5")
e(f"s_cmp_eq_u32 {sPar}, 0\ns_cselect_b32 {sT5}, 192, 0")
for n in range(7):
    e(f"v_add_u32 v46, {64*n}, {vL}")
    e(f"v_mul_u32_u24 v47, 1171, v46\nv_lshrrev_b32 v47, 16, v47")
    e(f"v_mul_u32_u24 v48, 56, v47\nv_sub_u32 v46, v46, v48")
    e(f"v_lshrrev_b32 v48, 4, v46\nv_and_b32 v49, 3, v46\nv_lshlrev_b32 v48, 6, v48\nv_lshl_add_u32 v48, v49, 4, v48")
    e(f"v_add_u32 v48, {sT4}, v48\nv_bfe_u32 v49, v46, 2, 2")
    e(f"v_and_b32 v50, 1, v46\nv_lshlrev_b32 v50, 4, v50\nv_add_u32 v50, {sT5}, v50\nv_bfe_u32 v51, v46, 1, 2")
    e(f"v_cmp_lt_u32 vcc, 47, v46")
    e(f"v_cndmask_b32 v48, v48, v50, vcc\nv_cndmask_b32 v49, v49, v51, vcc")
    e(f"v_lshl_add_u32 v47, v47, 2, v49\nv_mul_u32_u24 v47, 3584, v47\nv_add_u32 v{W3D+n}, v47, v48")
tr_bases12(LW1, True)
for ks in range(16):
    A.wait_vm(f"x{ks}")
    if ks == 0:
        e(f"v_lshlrev_b32 v58, 5, {vL}")
        e(f"buffer_load_dword v59, v58, {SWS}, {sT3} offen sc1", tag="touch")
        e("s_mov_b64 exec, 1")
        e(f"buffer_store_byte v56, v57, {SDBG}, {sT2} offen sc1", tag="hello")
        e("s_mov_b64 exec, -1")
    for d in range(4):
        r = BF + 4 * ks + d
        first = ks == 0 and d < 2
        e(f"v_dot2_f32_bf16 v{40+(d&1)}, v{r}, v{ONES}, {'0' if first else 'v%d' % (40+(d&1))}")
        e(f"v_dot2_f32_bf16 v{42+(d&1)}, v{r}, v{r}, {'0' if first else 'v%d' % (42+(d&1))}")
w4_issue(0)
for fb in range(4):
    e(f"buffer_load_dwordx2 {vr(96+2*fb, 2)}, {vMisc}, {SX}, {sT1} offen offset:{32*fb}", tag="xres")
e("v_add_f32 v40, v40, v41\nv_add_f32 v42, v42, v43")


def reduce_q(s, q, t):
    e(f"v_permlane32_swap_b32 v{s}, v{q}")
    e(f"v_add_f32 v{s}, v{s}, v{q}")
    e(f"v_mov_b32 v{t}, v{s}")
    e(f"v_permlane16_swap_b32 v{s}, v{t}")
    e(f"v_add_f32 v{s}, v{s}, v{t}")
    e(f"v_mov_b32 v{t}, v{s}")
    e(f"v_permlane32_swap_b32 v{s}, v{t}")


reduce_q(40, 42, 41)
stat_consts(40, 41, 44)


def p1_pre(i):
    if i % 16 == 0:
        A.wait_vm(f"w1c{i//16}")
        e("s_barrier")


gemm12(BF, False, True, p1_pre, lambda i: None)
stamp()
e(f"s_lshl_b32 {sT4}, {sW}, 10\ns_add_u32 {sT4}, {sT4}, {LMISC}")
e(f"v_add_u32 v40, {sT4}, {vL16}")
e(f"ds_write_b128 v40, {vr(ACC+16)}", tag="csw")
for i in range(1, 4):
    e(f"v_xor_b32 v{40+i}, {1024*i}, v40")
A.wait_lg0()
e("s_barrier")
for i in range(1, 4):
    e(f"ds_read_b128 {vr(ACC+16+4*i)}, v{40+i}", tag=f"cs{i}")
w3_issue(0, "w3a")
e(f"s_lshr_b32 {sT4}, {sT0}, 4\ns_add_u32 {sT4}, {sT4}, {sW}\ns_lshl_b32 {sT4}, {sT4}, 14")
e(f"s_lshl_b32 {sT3}, {sJ}, 11\ns_add_u32 {sT3}, {sT3}, {sT4}")
e(f"s_lshr_b32 {sT2}, {sW}, 1\ns_lshl_b32 {sT2}, {sT2}, 10")
e(f"s_add_u32 {sT1}, {sT3}, {sT2}\ns_xor_b32 {sT2}, {sT2}, 1024\ns_add_u32 {sT2}, {sT3}, {sT2}")
A.wait_lg0()
e(f"s_load_dwordx4 s[36:39], {sDB}, 0")
for i in range(4):
    for h in (0, 2):
        e(f"v_pk_fma_f32 {vr(ACC+4*i+h, 2)}, {vr(ACC+16+4*i+h, 2)}, v[{cI}:{cM}], {vr(ACC+4*i+h, 2)} op_sel:[0,1,0] op_sel_hi:[1,1,1]")
for i in range(4):
    for s_ in gelu4pk(ACC + 4 * i, TMP + 4 * (i & 1), [TMP + 8 + 2 * i, TMP + 9 + 2 * i]):
        e(s_)
Lx = lab("Lx")
e(f"s_bitcmp0_b32 {sW}, 0\ns_cbranch_scc1 {Lx}")
for i2 in range(2):
    for d in range(2):
        e(f"v_swap_b32 v{TMP+8+4*i2+d}, v{TMP+10+4*i2+d}")
e(f"{Lx}:")
e(f"buffer_store_dwordx4 {vr(TMP+8)}, {vL16}, {SWS}, {sT1} offen{fl('gst')}", tag="gst")
e(f"buffer_store_dwordx4 {vr(TMP+12)}, {vL16}, {SWS}, {sT2} offen{fl('gst')}", tag="gst")
stamp()
w3_issue(1, "w3a")
w4_consume(0)
w4_issue(1)
A.wait_lg0()
Lh, Lh2 = lab("Lh"), lab("Lh2")
e(f"s_mov_b32 {sCnt}, 0")
e(f"{Lh}:")
e("s_and_b64 s[40:41], s[36:37], s[38:39]\ns_and_b32 s40, s40, s41\ns_and_b32 s40, s40, 0x80808080")
e(f"s_cmp_eq_u32 s40, 0x80808080\ns_cbranch_scc1 {Lh2}")
e(f"s_add_u32 {sCnt}, {sCnt}, 1\ns_cmp_gt_u32 {sCnt}, 30000\ns_cbranch_scc1 L_end")
e(f"s_load_dwordx4 s[36:39], {sDB}, 0 glc")
A.wait_lg0()
e(f"s_branch {Lh}")
e(f"{Lh2}:")
for i in range(4): e(f"s_xor_b32 s{36+i}, s{36+i}, {sHello}")
e("s_or_b64 s[36:37], s[36:37], s[38:39]\ns_or_b32 s36, s36, s37")
if OPT["forceslow"]:
    e(f"s_mov_b32 {sMode}, 4096")
else:
    e(f"s_cselect_b32 {sMode}, 4096, 0")
e(f"s_lshl_b32 {sT1}, {sS}, 2\ns_add_u32 {sT1}, {sT1}, {sW}\ns_lshl_b32 {sT1}, {sT1}, 10")
e(f"s_lshl_b32 {sT2}, {sJ}, 2\ns_add_u32 {sT2}, {sT2}, {sT1}\ns_add_u32 {sT2}, {sT2}, {sFl}")
tr_bases12(LW2, False)
A.wait_vm("xres")
for fb in range(4):
    for d in range(2):
        e(f"v_lshlrev_b32 v{ACC+4*fb+2*d}, 16, v{96+2*fb+d}")
        e(f"v_and_b32 v{ACC+4*fb+2*d+1}, 0xffff0000, v{96+2*fb+d}")
A.wait_vm("gst")
publish(sT2, 16)
e("s_barrier")
poll(sT1, 8, 16)
stamp()
GB = BF + 64
for ks in range(16):
    if ks % 4 == 0 and ks:
        e(f"s_add_u32 {sT4}, {sT4}, 4096")
    e(f"buffer_load_dwordx4 {vr(GB+4*ks)}, {vL16}, {SWS}, {sT4} offen offset:{1024*(ks&3)} sc1", tag=f"g{ks}")
w4_consume(1)
w4_issue(2)


def p2_prem(i):
    if i % 4 == 0:
        A.wait_vm(f"g{i//4}")


gemm12(GB, True, False, lambda i: None, p2_prem)
stamp()
e(f"s_lshr_b32 {sT1}, {sT0}, 5\ns_lshr_b32 {sT2}, {sW}, 1\ns_add_u32 {sT1}, {sT1}, {sT2}")
e(f"s_lshl_b32 {sT2}, {sT1}, 15\ns_lshl_b32 {sT3}, {sJ}, 12\ns_add_u32 {sT2}, {sT2}, {sT3}")
e(f"s_and_b32 {sT3}, {sW}, 1\ns_lshl_b32 {sT4}, {sT3}, 8\ns_add_u32 {sT2}, {sT2}, {sT4}\ns_add_u32 {sT2}, {sT2}, {X1_OFF}")
e(f"s_lshl_b32 {sT1}, {sT1}, 11\ns_lshl_b32 {sT4}, {sJ}, 8\ns_add_u32 {sT1}, {sT1}, {sT4}")
e(f"s_lshl_b32 {sT4}, {sT3}, 7\ns_add_u32 {sT1}, {sT1}, {sT4}\ns_add_u32 {sT1}, {sT1}, {STAT_OFF}")
e(f"v_and_b32 v44, 15, {vL}\nv_lshrrev_b32 v45, 4, {vL}\nv_lshlrev_b32 v46, 3, v44\nv_lshlrev_b32 v44, 4, v44\nv_lshl_add_u32 v44, v45, 10, v44")
for i in range(8):
    e(f"v_cvt_pk_bf16_f32 v{X1P+i}, v{ACC+2*i}, v{ACC+2*i+1}")
e(f"buffer_store_dwordx4 {vr(X1P)}, v44, {SWS}, {sT2} offen{fl('xst')}", tag="xst")
e(f"buffer_store_dwordx4 {vr(X1P+4)}, v44, {SWS}, {sT2} offen offset:512{fl('xst')}", tag="xst")
for i in range(8):
    e(f"v_dot2_f32_bf16 v40, v{X1P+i}, v{ONES}, {'0' if i == 0 else 'v40'}")
    e(f"v_dot2_f32_bf16 v42, v{X1P+i}, v{X1P+i}, {'0' if i == 0 else 'v42'}")
reduce_q(40, 42, 41)
e("s_mov_b64 exec, 0xffff")
e(f"buffer_store_dwordx2 v[40:41], v46, {SWS}, {sT1} offen{fl('xst')}", tag="xst")
e("s_mov_b64 exec, -1")
e("s_barrier")
w3_issue(2, "w3b")
e(f"s_lshl_b32 {sT1}, {sS}, 1\ns_lshr_b32 {sT2}, {sW}, 1\ns_add_u32 {sT1}, {sT1}, {sT2}\ns_lshl_b32 {sT1}, {sT1}, 10")
e(f"s_lshl_b32 {sT3}, {sT3}, 3\ns_add_u32 {sT3}, {sT3}, {sJ}\ns_lshl_b32 {sT3}, {sT3}, 2")
e(f"s_add_u32 {sT1}, {sT1}, {sT3}\ns_add_u32 {sT1}, {sT1}, {sFl}\ns_add_u32 {sT1}, {sT1}, 8192")
for i2 in range(2):
    for d in range(2):
        e(f"v_permlane16_swap_b32 v{X1P+4*i2+d}, v{X1P+4*i2+2+d}")
A.wait_vm("xst")
publish(sT1, 16)
w3_issue(3, "w3b")
w4_consume(2)
w4_issue(3)
e(f"v_lshrrev_b32 v40, 5, {vL}\nv_bfe_u32 v41, {vL}, 4, 1\nv_bfe_u32 v42, {vL}, 2, 2\nv_and_b32 v43, 3, {vL}")
e(f"v_mul_u32_u24 v44, {896*8}, v40")
e(f"v_lshl_add_u32 v45, v42, 6, v44\nv_lshl_add_u32 v45, v41, 5, v45\nv_lshl_add_u32 v{TRB}, v43, 3, v45")
e(f"v_add_u32 v{TRB+1}, {896*64}, v{TRB}")
e(f"v_mul_u32_u24 v45, 896, v41\nv_add_u32 v44, v44, v45\nv_lshl_add_u32 v44, v42, 5, v44")
e(f"v_and_b32 v45, 1, v43\nv_lshrrev_b32 v43, 1, v43\nv_lshl_add_u32 v43, v45, 1, v43\nv_lshl_add_u32 v44, v43, 3, v44")
e(f"v_add_u32 v{TRB+2}, 768, v44\nv_add_u32 v{TRB+3}, {768+896*64}, v44")
e(f"v_bfe_u32 v42, {vL}, 2, 1\nv_cmp_eq_u32 vcc, v42, v41")
e(f"v_cndmask_b32 v{ASEL}, 0, v{ONES}, vcc")
for i in range(1, 4): e(f"v_mov_b32 v{ASEL+i}, v{ASEL}")
e(f"s_mul_i32 {sT2}, {sW}, {896*32}")
e(f"v_add_u32 v46, {sT2}, v{TRB}\nv_add_u32 v47, {sT2}, v{TRB+2}")
e(f"v_and_b32 v48, 31, {vL}\nv_lshlrev_b32 v48, 3, v48\nv_lshl_add_u32 v48, v40, 10, v48")
e(f"s_lshl_b32 {sT1}, {sW}, 10\ns_add_u32 {sT1}, {sT1}, 8192")
e(f"s_lshl_b32 {sT2}, {sG}, 2\ns_add_u32 {sT2}, {sT2}, {sW}")
e(f"s_lshl_b32 {sT3}, {sT2}, 15\ns_add_u32 {sT3}, {sT3}, {X1_OFF}")
e(f"s_lshl_b32 {sT4}, {sT2}, 11\ns_add_u32 {sT4}, {sT4}, {STAT_OFF}")
poll(sT1, 16, 16)
stamp()
for jj in range(4):
    e(f"buffer_load_dwordx2 {vr(50+2*jj, 2)}, v48, {SWS}, {sT4} offen offset:{256*jj} sc1", tag="st")
for ks in range(32):
    if ks % 4 == 0 and ks:
        e(f"s_add_u32 {sT3}, {sT3}, 4096")
    e(f"buffer_load_dwordx4 {vr(BF+4*ks)}, {vL16}, {SWS}, {sT3} offen offset:{1024*(ks&3)} sc1", tag=f"y{ks}")
A.wait_vm("w3b")
e("s_barrier")
items = []
for jj in range(2):
    for q in range(4):
        for b in range(3):
            items.append((46, 896 * (16 * jj + q) + 256 * b, b))
        if q % 2 == 0:
            items.append((47, 896 * (16 * jj + q), 3))
D = 6
seen = set()
for i in range(len(items) + D):
    if i < len(items):
        bs, off, b = items[i]
        for r in range(2):
            e(f"ds_read_b64_tr_b16 {ar(AB+4*(i&7)+2*r, 2)}, v{bs} offset:{off+896*4*r}", tag=f"c{i}")
    k = i - D
    if k >= 0:
        bs, off, b = items[k]
        A.wait_lg(f"c{k}")
        c = vr(ACC + 4 * b) if b in seen else "0"
        seen.add(b)
        e(f"v_mfma_f32_16x16x32_bf16 {vr(ACC+4*b)}, {vr(ASEL if b < 3 else ONES)}, {ar(AB+4*(k&7))}, {c}")
e(f"s_lshl_b32 {sT4}, {sW}, 10\ns_add_u32 {sT4}, {sT4}, {LMISC}")
e(f"v_add_u32 v40, {sT4}, {vL16}\nv_add_u32 v41, {LMISC}, {vL16}")
for b in range(4):
    e(f"v_mov_b32 v{44+b}, v{ACC+4*b}")
e(f"ds_write_b128 v40, v[44:47]", tag="csw")
A.wait_lg0()
e("s_barrier")
for i in range(4):
    e(f"ds_read_b128 {vr(ACC+4*i)}, v41 offset:{1024*i}", tag="cs")
w4_consume(3)
w4_issue(4)
A.wait_vm("st")
e("v_add_f32 v50, v50, v52\nv_add_f32 v51, v51, v53\nv_add_f32 v54, v54, v56\nv_add_f32 v55, v55, v57")
e("v_add_f32 v50, v50, v54\nv_add_f32 v51, v51, v55")
e("v_mov_b32 v52, v50\nv_mov_b32 v53, v51")
e("v_permlane32_swap_b32 v50, v52\nv_permlane32_swap_b32 v51, v53")
e("v_add_f32 v50, v50, v52\nv_add_f32 v51, v51, v53")
stat_consts(50, 51, 52)
AP = 12
BH = 22
BP = 120
A.wait_lg0()
for b in range(4):
    e(f"v_add_f32 v{ACC+b}, v{ACC+b}, v{ACC+4+b}\nv_add_f32 v{ACC+8+b}, v{ACC+8+b}, v{ACC+12+b}")
for b in range(4):
    e(f"v_add_f32 v{ACC+b}, v{ACC+b}, v{ACC+8+b}")
for b in range(4):
    e(f"v_cvt_pk_bf16_f32 v{AP+2*b}, v{ACC+b}, v{ACC+b}")
    e(f"v_and_b32 v40, 0xffff0000, v{AP+2*b}")
    e(f"v_sub_f32 v40, v{ACC+b}, v40")
    e(f"v_cvt_pk_bf16_f32 v{AP+2*b+1}, v40, v40")
e(f"v_mov_b32 v{AP+8}, 0\nv_mov_b32 v{AP+9}, 0")
e(f"v_cvt_pk_bf16_f32 v40, v{cM}, v{cM}\nv_and_b32 v40, 0xffff0000, v40\nv_sub_f32 v40, v{cM}, v40")
e(f"v_cvt_pk_bf16_f32 v40, v{cM}, v40")
e(f"v_cmp_gt_u32 vcc, 32, {vL}")
e(f"v_cndmask_b32 v{BP}, 0, v40, vcc")
e(f"v_mov_b32 v{BP+1}, v{BP}\nv_mov_b32 v{BP+2}, 0\nv_mov_b32 v{BP+3}, 0")
e(f"v_mov_b32 v{BH+4}, v{BP}\nv_mov_b32 v{BH}, 0\nv_mov_b32 v{BH+2}, 0\nv_mov_b32 v{BH+3}, 0")
e(f"v_permlane16_swap_b32 v{BH+4}, v{BH}")
e(f"v_mov_b32 v{BH+5}, v{BH+4}\nv_mov_b32 v{BH+1}, v{BH}")
stamp()


def w3_addr(ks, b, r):
    j, q = ks >> 2, ks & 3
    hi = j >= 4
    off = 896 * (16 * (j - 4 * hi) + q + 4 * r)
    if b < 3:
        return TRB + hi, off + 256 * b
    return TRB + 2 + hi, off


HD = ACC + 48
items = []
for p in range(16):
    items += [(2 * p, 0), (2 * p, 1), (2 * p + 1, 0), (2 * p + 1, 1), (2 * p, 3)]
items += [(ks, 2) for ks in range(32)]
NA = 80


def epi_block(acc, T, dsts):
    o = []
    for g in range(4):
        o += gelu4([acc + 4 * g + i for i in range(4)], T + 4 * (g & 1), [dsts + 2 * g, dsts + 2 * g + 1])
    return o


e(f"s_lshl_b32 {sT2}, {sG}, 2\ns_add_u32 {sT2}, {sT2}, {sW}\ns_mul_i32 {sT2}, {sT2}, 112")
e(f"s_mul_i32 {sT3}, {sM}, 7\ns_add_u32 {sT2}, {sT2}, {sT3}\ns_lshl_b32 {sT2}, {sT2}, 10\ns_add_u32 {sT2}, {sT2}, {H3_OFF}")
e(f"s_lshl_b32 {sT3}, {sPar}, 10\ns_add_u32 {sT3}, {sT3}, {sT2}")
e(f"s_cmp_eq_u32 {sPar}, 0\ns_cselect_b32 {sT4}, 6144, 0\ns_add_u32 {sT2}, {sT2}, {sT4}")
e(f"s_lshr_b32 {sT1}, {sW}, 1\ns_lshl_b32 {sT1}, {sT1}, 2\ns_lshr_b32 {sT4}, {sM}, 2\ns_add_u32 {sT1}, {sT1}, {sT4}\ns_lshl_b32 {sT1}, {sT1}, 11")
e(f"s_and_b32 {sT4}, {sM}, 3\ns_lshl_b32 {sT4}, {sT4}, 3\ns_add_u32 {sT1}, {sT1}, {sT4}")
e(f"s_and_b32 {sT4}, {sW}, 1\ns_lshl_b32 {sT4}, {sT4}, 2\ns_add_u32 {sT1}, {sT1}, {sT4}")
e(f"s_add_u32 {sT1}, {sT1}, {sFl}\ns_add_u32 {sT1}, {sT1}, 16384")
e(f"s_lshl_b32 {sT4}, {sS}, 2\ns_add_u32 {sT4}, {sT4}, {sW}\ns_lshl_b32 {sT4}, {sT4}, 11\ns_add_u32 {sT4}, {sT4}, 16384")
e(f"s_lshr_b32 {sH0}, {sT0}, 5\ns_mul_i32 {sH0}, {sH0}, 112\ns_mul_i32 {sH1}, {sW}, 28\ns_add_u32 {sH0}, {sH0}, {sH1}")
e(f"s_lshl_b32 {sH0}, {sH0}, 10\ns_add_u32 {sH0}, {sH0}, {H3_OFF}\ns_add_u32 {sH1}, {sH0}, {112*1024}")

D = 5
fill = []
waited = set()
started = set()


def rd3(i):
    ks, b = items[i]
    for r in range(2):
        bs, off = w3_addr(ks, b, r)
        e(f"ds_read_b64_tr_b16 {ar(AB+4*(i&7)+2*r, 2)}, v{bs} offset:{off}", tag=f"a{i}")


def corr(b):
    e(f"v_mfma_f32_32x32x16_bf16 {vr(ACC+16*b, 16)}, {vr(AP+2*b)}, {vr(BP)}, {vr(ACC+16*b, 16)}")


for i in range(D):
    rd3(i)
for i in range(len(items)):
    ks, b = items[i]
    if i + D < len(items):
        rd3(i + D)
    if i == NA:
        corr(0)
        corr(1)
        e(f"v_mfma_f32_16x16x32_bf16 {vr(HD)}, {vr(AP+4)}, {vr(BH+2)}, {vr(HD)}")
        e(f"v_mfma_f32_16x16x32_bf16 {vr(HD+4)}, {vr(AP+6)}, {vr(BH)}, {vr(HD+4)}")
        stamp()
        w4_consume(4)
        w4_issue(5)
        fill = epi_block(ACC, TMP, TMP + 8)
    if ks not in waited:
        A.wait_vm(f"y{ks}")
        waited.add(ks)
    if b == 1 and ks % 2 == 1:
        t = TMP + 8 * ((ks >> 1) & 1)
        for d in range(8):
            e(f"v_mov_b32 v{t+d}, v{BF+4*(ks-1)+d}")
        for d in range(4):
            e(f"v_permlane16_swap_b32 v{t+d}, v{t+4+d}")
    A.wait_lg(f"a{i}")
    if b < 3:
        c = vr(ACC + 16 * b, 16) if b in started else "0"
        e(f"v_mfma_f32_32x32x16_bf16 {vr(ACC+16*b, 16)}, {ar(AB+4*(i&7))}, {vr(BF+4*ks)}, {c}")
    else:
        t = TMP + 8 * ((ks >> 1) & 1)
        for u in range(2):
            c = vr(HD + 4 * u) if b in started else "0"
            e(f"v_mfma_f32_16x16x32_bf16 {vr(HD+4*u)}, {ar(AB+4*(i&7))}, {vr(t+4*u)}, {c}")
    started.add(b)
    if i >= NA:
        for _ in range(4):
            if fill:
                e(fill.pop(0))
for s_ in fill:
    e(s_)
corr(2)
stamp()


def h3_store(dsts, blk):
    for c2 in range(2):
        off = 2048 * blk + 1024 * c2
        if off < 4096:
            e(f"buffer_store_dwordx4 {vr(dsts+4*c2)}, {vL16}, {SWS}, {sT3} offen offset:{off}{fl('hst')}", tag=f"h{blk}")
        else:
            e(f"s_add_u32 {sT5}, {sT3}, 4096")
            e(f"buffer_store_dwordx4 {vr(dsts+4*c2)}, {vL16}, {SWS}, {sT5} offen offset:{off-4096}{fl('hst')}", tag=f"h{blk}")


def epi_pk(acc, T, dsts):
    for g in range(4):
        for s_ in gelu4pk(acc + 4 * g, T + 4 * (g & 1), [dsts + 2 * g, dsts + 2 * g + 1]):
            e(s_)


def pub3(stage, tag):
    A.wait_vm(tag)
    publish(sT1, 8)
    e(f"s_add_u32 {sT1}, {sT1}, 512")


HB = [("v", BF), ("v", BF + 64), ("a", AB), ("v", BF)]


def h3_load(stage):
    poll(sT4, 8, 8)
    e(f"s_add_u32 {sT4}, {sT4}, 512")
    k, base = HB[stage]
    for n, kf in enumerate(STAGES[stage]):
        for tb in range(2):
            r = base + 8 * n + 4 * tb
            e(f"s_add_u32 {sT5}, {(sH0, sH1)[tb]}, {1024*kf}")
            e(f"buffer_load_dwordx4 {k}[{r}:{r+3}], {vL16}, {SWS}, {sT5} offen sc1", tag=f"z{stage}_{n}_{tb}")


h3_store(TMP + 8, 0)
w4_consume(5)
w4_issue(6)
epi_pk(ACC + 16, TMP, TMP + 16)
h3_store(TMP + 16, 1)
pub3(0, "h0")
for d in range(4):
    e(f"v_permlane16_swap_b32 v{HD+d}, v{HD+4+d}")
for g in range(2):
    for s_ in gelu4pk(HD + 4 * g, TMP + 4 * g, [TMP + 8 + 2 * g, TMP + 9 + 2 * g]):
        e(s_)
e(f"buffer_store_dwordx4 {vr(TMP+8)}, {vL16}, {SWS}, {sT2} offen{fl('hst')}", tag="h3")
w4_consume(6)
w4_issue(7)
pub3(1, "h1")
epi_pk(ACC + 32, TMP, TMP + 16)
h3_store(TMP + 16, 2)
pub3(2, "h3")
stamp()
h3_load(0)
w4_consume(7)
pub3(3, "h2")
e("s_barrier")
h3_load(1)
started = set()


def p4_stage(stage):
    k, base = HB[stage]
    for n, kf in enumerate(STAGES[stage]):
        for tb in range(2):
            A.wait_vm(f"z{stage}_{n}_{tb}")
            r = base + 8 * n + 4 * tb
            for b in range(2):
                acc = ACC + 32 * tb + 16 * b
                c = vr(acc, 16) if acc in started else "0"
                started.add(acc)
                e(f"v_mfma_f32_32x32x16_bf16 {vr(acc, 16)}, {ar(8*kf+4*b)}, {k}[{r}:{r+3}], {c}")


h3_load(2)
p4_stage(0)
h3_load(3)
p4_stage(1)
p4_stage(2)
e(f"v_and_b32 v40, 31, {vL}\nv_lshrrev_b32 v41, 5, {vL}")
e(f"v_and_b32 v42, 10, {vL}\nv_bfe_u32 v43, {vL}, 2, 1\nv_and_b32 v44, 1, {vL}\nv_lshl_add_u32 v42, v44, 2, v42\nv_add_u32 v42, v42, v43")
e(f"v_xor_b32 v41, v41, v42")
e(f"s_lshl_b32 {sT5}, {sW}, 14")
e(f"v_lshlrev_b32 v40, 8, v40\nv_add_u32 v40, {sT5}, v40")
for kk in range(8):
    e(f"v_xor_b32 v45, {2*kk}, v41\nv_lshl_add_u32 v{48+kk}, v45, 4, v40")
e(f"v_bfe_u32 v43, {vL}, 4, 1\nv_lshrrev_b32 v44, 5, {vL}\nv_lshl_add_u32 v43, v43, 1, v44")
e(f"v_lshlrev_b32 v44, 1, v43\nv_xor_b32 v42, v42, v44")
e(f"v_and_b32 v44, 15, {vL}\ns_lshl_b32 {sT5}, {sW}, 4\nv_add_u32 v44, {sT5}, v44")
e(f"v_lshlrev_b32 v46, 10, v44\nv_lshl_add_u32 v46, v43, 4, v46")
e(f"v_lshlrev_b32 v44, 8, v44")
for i2 in range(2):
    for hc in range(2):
        e(f"v_xor_b32 v45, {8*i2+hc}, v42\nv_lshl_add_u32 v{56+2*i2+hc}, v45, 4, v44")
e(f"s_lshl_b32 {sT1}, {sT0}, 10\ns_lshl_b32 {sT2}, {sJ}, 7\ns_add_u32 {sT1}, {sT1}, {sT2}")
p4_stage(3)
stamp()
for tb in range(2):
    for b in range(2):
        for g in range(4):
            e(f"ds_write_b128 v{48+4*b+g}, {vr(ACC+32*tb+16*b+4*g)} offset:{RED+8192*tb}", tag="rw")
A.wait_lg0()
e("s_barrier")
for c in range(4):
    for ws in range(4):
        e(f"ds_read_b128 {vr(BF+16*c+4*ws)}, v{56+c} offset:{RED+16384*ws}", tag=f"rr{c}")
for c in range(4):
    for d in range(2):
        e(f"v_lshlrev_b32 v{ACC+4*c+2*d}, 16, v{X1P+2*c+d}")
        e(f"v_and_b32 v{ACC+4*c+2*d+1}, 0xffff0000, v{X1P+2*c+d}")
for c in range(4):
    A.wait_lg(f"rr{c}")
    r = BF + 16 * c
    for h in (0, 2):
        e(f"v_pk_add_f32 {vr(r+h, 2)}, {vr(r+h, 2)}, {vr(r+4+h, 2)}")
        e(f"v_pk_add_f32 {vr(r+8+h, 2)}, {vr(r+8+h, 2)}, {vr(r+12+h, 2)}")
    for h in (0, 2):
        e(f"v_pk_add_f32 {vr(r+h, 2)}, {vr(r+h, 2)}, {vr(r+8+h, 2)}")
    for h in (0, 2):
        e(f"v_pk_add_f32 {vr(r+h, 2)}, {vr(r+h, 2)}, {vr(ACC+4*c+h, 2)}")
    for d in range(2):
        e(f"v_cvt_pk_bf16_f32 v{TMP+8+2*c+d}, v{r+2*d}, v{r+2*d+1}")
    if c % 2 == 1:
        e(f"buffer_store_dwordx4 {vr(TMP+8+4*(c>>1))}, v46, {SOUT}, {sT1} offen offset:{64*(c>>1)}{fl('ost')}", tag="o")
if PROF:
    A.wait_vm0()
    stamp()
    A.wait_lg0()
    e(f"s_lshl_b32 {sT1}, s2, 2\ns_add_u32 {sT1}, {sT1}, {sW}\ns_lshl_b32 {sT1}, {sT1}, 6\ns_add_u32 {sT1}, {sT1}, {PROF_OFF}")
    e("v_mov_b32 v2, 0")
    for i in range(nstamp[0]):
        e(f"v_mov_b32 v3, s{78+2*i}")
        e(f"buffer_store_dword v3, v2, {SWS}, {sT1} offen offset:{4*i}")
    e(f"v_mov_b32 v3, {sMode}")
    e(f"buffer_store_dword v3, v2, {SWS}, {sT1} offen offset:60")
e("L_end:")
e("s_endpgm")
A.raw("L_codeend:")
A.raw('.section .rodata,"a"\n.p2align 6\n.amdhsa_kernel standalone__mixer_s_mlp__prompt_kernel')
A.raw("""  .amdhsa_next_free_vgpr 512
  .amdhsa_next_free_sgpr 102
  .amdhsa_accum_offset 256
  .amdhsa_group_segment_fixed_size 0
  .amdhsa_kernarg_size 64
  .amdhsa_user_sgpr_count 2
  .amdhsa_user_sgpr_kernarg_segment_ptr 1
  .amdhsa_system_sgpr_workgroup_id_x 1
.end_amdhsa_kernel""")
sys.stdout.write(A.text())
sys.stderr.write(f"lines {len(A.lines)} nops {A.nnop} stamps {nstamp[0]}\n")
```

```python
import re

_reg_re = re.compile(r'^-?\|?([vas])(\d+)\|?$')
_rng_re = re.compile(r'^-?\|?([vas])\[(\d+):(\d+)\]\|?$')
TRANS = ("v_exp_f32", "v_log_f32", "v_rcp_f32", "v_rsq_f32", "v_sqrt_f32", "v_sin_f32", "v_cos_f32")


def regs_of(tok):
    tok = tok.strip()
    m = _reg_re.match(tok)
    if m:
        return {(m.group(1), int(m.group(2)))}
    m = _rng_re.match(tok)
    if m:
        return {(m.group(1), i) for i in range(int(m.group(2)), int(m.group(3)) + 1)}
    if tok == "vcc":
        return {("s", 106), ("s", 107)}
    if tok == "m0":
        return {("m", 0)}
    if tok == "exec":
        return {("x", 0)}
    return set()


class Ins:
    __slots__ = ("text", "op", "kind", "wr", "rd", "srcc", "dset", "passes", "ws", "lds_dma", "wide_store")


def parse(text):
    t = text.split(";")[0].strip()
    parts = t.split(None, 1)
    op = parts[0]
    ops = []
    if len(parts) > 1:
        cur = ""
        depth = 0
        for ch in parts[1]:
            if ch == "[":
                depth += 1
            if ch == "]":
                depth -= 1
            if ch == "," and depth == 0:
                ops.append(cur.strip())
                cur = ""
            else:
                cur += ch
        ops.append(cur.strip())
        last = ops[-1].split()
        ops[-1] = last[0] if last else ""
        mods = last[1:]
    else:
        mods = []
    i = Ins()
    i.text = text
    i.op = op
    i.wr = set()
    i.rd = set()
    i.srcc = set()
    i.passes = 0
    i.ws = 1
    i.lds_dma = False
    i.wide_store = False
    base = re.sub(r'_e(32|64)$', '', op)
    R = [regs_of(o) for o in ops]
    if op.startswith("v_mfma"):
        i.kind = "mfma"
        i.passes = 8 if "32x32" in op else 4
        i.wr = R[0]
        i.rd = R[1] | R[2]
        i.srcc = R[3]
    elif op.startswith("v_"):
        i.kind = "valu"
        if base in TRANS:
            i.kind = "trans"
        if op.startswith("v_dot2"):
            i.kind = "dot"
            i.srcc = R[3] if len(R) > 3 else R[0]
        if op.startswith("v_permlane"):
            i.kind = "perm"
            i.wr = R[0] | R[1]
            i.rd = R[0] | R[1]
        else:
            i.wr = set(R[0])
            for r in R[1:]:
                i.rd |= r
            if op.startswith("v_fmac") or op.startswith("v_dot2c"):
                i.rd |= R[0]
            if base in ("v_cndmask_b32",) and len(ops) == 3:
                i.rd |= regs_of("vcc")
            if op.startswith("v_readfirstlane") or op.startswith("v_readlane"):
                i.kind = "rdlane"
    elif op.startswith("ds_read"):
        i.kind = "ds"
        i.wr = R[0]
        i.rd = R[1]
    elif op.startswith("ds_write"):
        i.kind = "ds"
        for r in R:
            i.rd |= r
    elif op.startswith("buffer_load") or op.startswith("global_load"):
        i.kind = "vmem"
        if "lds" in mods:
            i.lds_dma = True
            for r in R:
                i.rd |= r
        else:
            i.wr = R[0]
            for r in R[1:]:
                i.rd |= r
    elif op.startswith("buffer_store") or op.startswith("global_store") or op.startswith("buffer_atomic"):
        i.kind = "vmem"
        for r in R:
            i.rd |= r
        if op.endswith("x4") or op.endswith("x3"):
            i.wide_store = True
            i.dset = R[0] if op.startswith("buffer") else R[1]
    elif op == "s_nop":
        i.kind = "nop"
        i.ws = int(ops[0]) + 1
    elif op.startswith("s_"):
        i.kind = "salu"
        if ops and not op.startswith("s_cmp") and not op.startswith("s_cbranch") and not op.startswith("s_waitcnt") \
                and not op.startswith("s_branch") and not op.startswith("s_barrier"):
            i.wr = set(R[0])
            for r in R[1:]:
                i.rd |= r
    else:
        i.kind = "other"
    return i


VALUK = ("valu", "trans", "dot", "perm", "rdlane")


def need(p, c):
    n = 0
    if p.kind in VALUK:
        pv = {r for r in p.wr if r[0] in "va"}
        ps = {r for r in p.wr if r[0] == "s"}
        if c.kind == "mfma" and pv & (c.rd | c.srcc):
            n = max(n, 2)
        if c.kind == "perm" and pv & c.rd:
            n = max(n, 2)
        if c.kind == "rdlane" and pv & c.rd:
            n = max(n, 1)
        if p.kind == "trans" and c.kind in VALUK and c.kind != "trans" and pv & (c.rd | c.wr):
            n = max(n, 1)
        if p.kind == "trans" and c.kind in ("vmem", "ds") and pv & c.rd:
            n = max(n, 1)
        if p.kind == "dot":
            if c.kind == "dot" and c.op == p.op:
                if pv & (c.rd - c.srcc):
                    n = max(n, 3)
            elif pv & (c.rd | c.wr | c.srcc):
                n = max(n, 3)
        if ps:
            if c.kind in VALUK and ps & c.rd:
                n = max(n, 2)
            if c.kind == "vmem" and ps & c.rd:
                n = max(n, 5)
    if p.kind == "mfma":
        big = p.passes == 8
        if c.kind == "mfma":
            if p.wr & c.rd:
                n = max(n, 12 if big else 8)
            if p.wr & c.srcc:
                if not (p.wr == c.srcc and p.passes == c.passes):
                    n = max(n, 10 if big else 6)
            elif p.wr & c.wr:
                n = max(n, 12 if big else 8)
        elif c.kind in VALUK or c.kind in ("vmem", "ds"):
            if p.wr & (c.rd | c.wr):
                n = max(n, 12 if big else 8)
            if c.kind in VALUK and p.srcc & c.wr:
                n = max(n, 7 if big else 3)
    if p.kind == "salu" and ("m", 0) in p.wr and c.lds_dma:
        n = max(n, 1)
    if p.wide_store:
        if c.kind in VALUK and p.dset & c.wr:
            n = max(n, 2)
        elif p.dset & c.wr:
            n = max(n, 1)
    return n


class Asm:
    def __init__(self):
        self.lines = []
        self.hist = []
        self.vm = []
        self.lg = []
        self.smem = False
        self.nnop = 0
        self.nvm = 0

    def untrack(self):
        self.vm.pop()
        self.nvm -= 1

    def raw(self, s):
        self.lines.append(s)

    def _pad(self, n):
        while n > 0:
            k = min(n, 16)
            t = f"s_nop {k-1}"
            self.lines.append("    " + t)
            self.hist.append(parse(t))
            self.nnop += 1
            n -= k

    def e(self, s, tag=None):
        for line in s.split("\n"):
            line = line.strip()
            if not line:
                continue
            if line.endswith(":"):
                self.flush()
                self.lines.append(line)
                continue
            c = parse(line)
            if c.op.startswith("s_cbranch") or c.op == "s_branch":
                self.flush()
            d = 0
            req = 0
            for p in reversed(self.hist[-24:]):
                n = need(p, c)
                if n - d > req:
                    req = n - d
                d += p.ws
                if d >= 20:
                    break
            if req > 0:
                self._pad(req)
            self.lines.append("    " + line)
            self.hist.append(c)
            if c.kind == "vmem":
                self.vm.append(tag)
                self.nvm += 1
            elif c.kind == "ds":
                self.lg.append(tag)
            elif c.op.startswith("s_load") or c.op.startswith("s_memtime"):
                self.smem = True

    def flush(self):
        d = 0
        req = 0
        for p in reversed(self.hist[-24:]):
            n = 0
            if p.kind == "mfma":
                n = 12 if p.passes == 8 else 8
            elif p.kind in VALUK:
                n = 5 if any(r[0] == "s" for r in p.wr) else 3
            elif p.wide_store:
                n = 2
            elif p.kind == "salu" and ("m", 0) in p.wr:
                n = 1
            req = max(req, n - d)
            d += p.ws
            if d >= 20:
                break
        if req > 0:
            self._pad(req)

    def wait_vm(self, tag):
        idx = [i for i, t in enumerate(self.vm) if t == tag]
        if not idx:
            return
        n = len(self.vm) - 1 - idx[-1]
        assert n <= 63, f"vmcnt overflow {n} for {tag}"
        self.e(f"s_waitcnt vmcnt({n})")
        self.vm = self.vm[idx[-1] + 1:]

    def wait_vm0(self):
        self.e("s_waitcnt vmcnt(0)")
        self.vm = []

    def wait_lg(self, tag):
        idx = [i for i, t in enumerate(self.lg) if t == tag]
        if not idx:
            return
        n = len(self.lg) - 1 - idx[-1]
        n = min(n, 15)
        self.e(f"s_waitcnt lgkmcnt({n})")
        self.lg = self.lg[len(self.lg) - n:] if n else []
        if n == 0:
            self.smem = False

    def wait_lg0(self):
        self.e("s_waitcnt lgkmcnt(0)")
        self.lg = []
        self.smem = False

    def text(self):
        return "\n".join(self.lines) + "\n"
```

```python
import sys, math, struct
sys.path.insert(0, "tools")
from asmlib import Asm

OPT = dict(pfl=28, rot3=0, pfp=0, pfw=1, pfa=40, pfd=6, hG="", hS="", hP="", pola=30, wbn=2, wbg=1, otr=1, hA="nx8_w3x12", hB="q", hC="w3x16", hD="q_q", hE="q", hF="", wa0=22, wad=1, wg=3, wb=7, pubb=5, zla=12, pub2=20, pol2=40, w4p=0, w2a=17, w2b=25, w2d=1, pf3=1, pf4="-1", pf4a=0, pf4b=0, ld="sc1", ng0=12, p2n=7, nb1=7, na1=4, fr0=24, frd=5, tlb=1, hel=7, held=15, ny0=12, na0=10, p2s=4, p2d=2, nb0=0, w4o="la", w4s=50, w4d=3, prof=0, gst="sc1", xst="sc1", hst="sc1", ost="sc1", forceslow=0)
for a in sys.argv[1:]:
    k, v = a.split("=")
    OPT[k] = int(v) if v.lstrip("-").isdigit() else v
PROF = OPT["prof"]


def fl(name):
    v = OPT[name]
    return "" if v == "none" else " " + v.replace("_", " ")


def f32(x):
    return "0x%08x" % struct.unpack("<I", struct.pack("<f", x))[0]


G_OFF = 0
X1_OFF = 128 << 10
H3_OFF = 256 << 10
STAT_OFF = 704 << 10
FLAG_OFF = 720 << 10
HEL_OFF = 12288
PROF_OFF = 16 << 20
WS_SIZE = 1 << 20
LW1 = 0
LW2 = 98304
LST = 131072
LXR = 86016
LX1R = 114688
LMISC = 122880
LCX = 94208
LDS_TOTAL = 163840
RED = 0
sW = "s3"
SX, SW1, SW2, SW3, SW4, SOUT, SWS, SDBG = ("s[4:7]", "s[8:11]", "s[12:15]", "s[16:19]", "s[20:23]", "s[24:27]",
                                           "s[28:31]", "s[32:35]")
sG, sM, sS, sJ, sT0, sMode, sHello, sRot1 = "s52", "s53", "s54", "s55", "s56", "s57", "s58", "s59"
sRot3 = "s52"
sKW = "s56"
KF = [73, 74, 78, 79]
DH = [80, 81]
sFB = "s[60:61]"
sDB = "s[62:63]"
sStg = "s64"
sT1, sT2, sT3, sT4, sT5, sT6 = "s65", "s66", "s67", "s68", "s69", "s70"
sRep, sCnt = "s71", "s72"
sH0 = "s58"
sPar = "s75"
sW3o, sW3m = "s76", "s77"
sW4o = "s76"
vL, vL16, vRep, vW4d, vOne, vMisc = "v0", "v1", "v6", "v7", "v10", "v11"
TRB = 2
W4T = 8
W3D = 12
ONES = 20
ASEL = 24
cA, cB, cI, cM = 28, 29, 30, 31
X1P = 32
TMP = 40
ACC = 64
BF = 128
AB = 224

K1 = -2.0 * math.sqrt(2.0 / math.pi) * math.log2(math.e)
K3 = 0.044715

A = Asm()
e = A.e
nlab = [0]
nstamp = [0]


def lab(p="L"):
    nlab[0] += 1
    return f"{p}_{nlab[0]}"


def stamp(*sets):
    if not sets:
        sets = (1,)
    if PROF in sets:
        i = nstamp[0]
        assert i < 10
        e(f"s_memtime s[{82+2*i}:{83+2*i}]")
        nstamp[0] += 1


def vr(b, n=4):
    return f"v[{b}:{b+n-1}]"


def ar(b, n=4):
    return f"a[{b}:{b+n-1}]"


def srd(dst, ptr_lo, add=None, size=0x7fffffff):
    if add is None:
        e(f"s_mov_b32 s{dst}, s{ptr_lo}\ns_mov_b32 s{dst+1}, s{ptr_lo+1}")
    else:
        e(f"s_add_u32 s{dst}, s{ptr_lo}, {add}\ns_addc_u32 s{dst+1}, s{ptr_lo+1}, 0")
    e(f"s_mov_b32 s{dst+2}, {size}\ns_mov_b32 s{dst+3}, 0x20000")


def poll(soff, ndw, nrep, between=None, inloop=None):
    L, Lw, Ld = lab("Lp"), lab("Lw"), lab("Ld")

    def issue(nxt):
        Lg = lab("Lg")
        e(f"s_cmp_ge_u32 {sRep}, {nrep*64}\ns_cbranch_scc1 {Lg}")
        e(f"s_add_u32 {sT6}, {soff}, {sRep}")
        e(f"s_load_dwordx{ndw} s[36:{36+ndw-1}], {sFB}, {sT6}")
        e(f"s_add_u32 {sRep}, {sRep}, 64\ns_branch {nxt}")
        e(f"{Lg}:")
        e(f"s_load_dwordx{ndw} s[36:{36+ndw-1}], {sFB}, {soff} glc")

    e(f"s_mov_b32 {sRep}, {sMode}\ns_mov_b32 {sCnt}, 0")
    if between is not None:
        Lb = lab("Lb")
        issue(Lb)
        e(f"{Lb}:")
        between()
        e(f"s_branch {Lw}")
    e(f"{L}:")
    e(f"s_add_u32 {sCnt}, {sCnt}, 1\ns_cmp_gt_u32 {sCnt}, 30000\ns_cbranch_scc1 L_end")
    if inloop:
        inloop()
    issue(Lw)
    e(f"{Lw}:")
    A.wait_lg0()
    n = ndw
    while n > 2:
        for i in range(0, n // 2, 2):
            e(f"s_and_b64 s[{36+i}:{37+i}], s[{36+i}:{37+i}], s[{36+n//2+i}:{37+n//2+i}]")
        n //= 2
    e("s_and_b32 s36, s36, s37")
    e(f"s_cbranch_scc0 {L}")


def publish(soff, nrep):
    Ls, Ld = lab("Ls"), lab("Ld")
    e(f"s_cmp_lg_u32 {sMode}, 0\ns_cbranch_scc1 {Ls}")
    e(f"s_mov_b64 exec, {(1 << nrep) - 1}")
    e(f"buffer_store_dword {vOne}, {vRep}, {SWS}, {soff} offen", tag="flag")
    e(f"s_branch {Ld}")
    e(f"{Ls}:")
    e("s_mov_b64 exec, 1")
    e(f"buffer_store_dword {vOne}, {vRep}, {SWS}, {soff} offen sc1", tag="flag")
    A.untrack()
    e(f"{Ld}:")
    e("s_mov_b64 exec, -1")


def stat_consts(vS, vQ, t):
    e(f"v_mul_f32 v{cM}, {f32(-1.0/512)}, v{vS}")
    e(f"v_mul_f32 v{t}, v{cM}, v{cM}")
    e(f"v_mov_b32 v{t+1}, {f32(1.0/512)}")
    e(f"v_fma_f32 v{t}, v{vQ}, v{t+1}, -v{t}")
    e(f"v_max_f32 v{t}, 0, v{t}")
    e(f"v_add_f32 v{t}, {f32(1e-5)}, v{t}")
    e(f"v_rsq_f32 v{t+1}, v{t}")
    e(f"v_sqrt_f32 v{cI}, v{t}")
    e(f"v_mul_f32 v{cA}, {f32(K1)}, v{t+1}")
    e(f"v_mul_f32 v{t}, v{t+1}, v{t+1}")
    e(f"v_mul_f32 v{t}, {f32(K3)}, v{t}")
    e(f"v_mul_f32 v{cB}, v{cA}, v{t}")


def gelu4(a, T, dst):
    o = []
    for i in range(4): o.append(f"v_mul_f32_e64 v{T+i}, v{a[i]}, v{a[i]}")
    for i in range(4): o.append(f"v_fma_f32 v{T+i}, v{T+i}, v{cB}, v{cA}")
    for i in range(4): o.append(f"v_mul_f32_e64 v{T+i}, v{a[i]}, v{T+i}")
    for i in range(4): o.append(f"v_exp_f32_e64 v{T+i}, v{T+i}")
    for i in range(4): o.append(f"v_fma_f32 v{T+i}, v{T+i}, v{cI}, v{cI}")
    for i in range(4): o.append(f"v_rcp_f32_e64 v{T+i}, v{T+i}")
    for i in range(4): o.append(f"v_mul_f32_e64 v{T+i}, v{a[i]}, v{T+i}")
    o.append(f"v_cvt_pk_bf16_f32 v{dst[0]}, v{T}, v{T+1}")
    o.append(f"v_cvt_pk_bf16_f32 v{dst[1]}, v{T+2}, v{T+3}")
    return o


def gelu4pk(a, T, dst):
    o = []
    for i in (0, 2): o.append(f"v_pk_mul_f32 v[{T+i}:{T+i+1}], v[{a+i}:{a+i+1}], v[{a+i}:{a+i+1}]")
    for i in (0, 2): o.append(f"v_pk_fma_f32 v[{T+i}:{T+i+1}], v[{T+i}:{T+i+1}], v[{cA}:{cB}], v[{cA}:{cB}] op_sel:[0,1,0] op_sel_hi:[1,1,0]")
    for i in (0, 2): o.append(f"v_pk_mul_f32 v[{T+i}:{T+i+1}], v[{a+i}:{a+i+1}], v[{T+i}:{T+i+1}]")
    for i in range(4): o.append(f"v_exp_f32_e64 v{T+i}, v{T+i}")
    for i in (0, 2): o.append(f"v_pk_fma_f32 v[{T+i}:{T+i+1}], v[{T+i}:{T+i+1}], v[{cI}:{cM}], v[{cI}:{cM}] op_sel:[0,0,0] op_sel_hi:[1,0,0]")
    for i in range(4): o.append(f"v_rcp_f32_e64 v{T+i}, v{T+i}")
    for i in (0, 2): o.append(f"v_pk_mul_f32 v[{T+i}:{T+i+1}], v[{a+i}:{a+i+1}], v[{T+i}:{T+i+1}]")
    o.append(f"v_cvt_pk_bf16_f32 v{dst[0]}, v{T}, v{T+1}")
    o.append(f"v_cvt_pk_bf16_f32 v{dst[1]}, v{T+2}, v{T+3}")
    return o


KSL = [(0, 0), (0, 1), (1, 0), (1, 1), (3, 0), (2, 0), (2, 1)]
W4G = []
for mm in range(4):
    W4G += [[(mm, 0), (mm, 1)], [(mm, 2), (mm, 3)]]
for mm in (0, 2):
    W4G += [[(mm, 5), (mm, 6)], [(mm + 1, 5), (mm + 1, 6)], [(mm, 4), (mm + 1, 4)]]
P4K = [k for g in W4G for k in g]
W4V = ["v7", "v57", "v58", "v59"]
w4s = dict(iss=0, con=0, free=0)


def w4_issue(n=1):
    for _ in range(n):
        i = w4s["iss"]
        if i >= 56:
            return
        g, n4 = i >> 2, i & 3
        assert 4 * (g - 1) <= w4s["free"], ("w4 ring overrun", i, w4s)
        mm, ksl = W4G[g][n4 >> 1]
        blk, c2 = KSL[ksl]
        set_m0(sStg, 4096 * (g & 1))
        if blk == 3:
            if n4 & 1 == 0:
                e(f"s_add_u32 {sW4o}, s{KF[mm]}, s{DH[mm&1]}")
                e(f"s_lshl4_add_u32 {sW4o}, {sW4o}, {(3072 - 8192*n4) & 0xffffffff}")
        elif n4 == 0:
            e(f"s_lshl4_add_u32 {sW4o}, s{KF[mm]}, {3072 + 32768*blk}")
        e(f"buffer_load_dwordx4 {W4V[n4]}, {SW4}, {sW4o} offen offset:{1024*n4} lds", tag=f"w4_{i}")
        w4s["iss"] += 1


def w4_read(n=4, wait=True):
    n = min(n, w4s["iss"] - w4s["con"])
    if n <= 0:
        return
    A.wait_vm(f"w4_{min(w4s['iss'], (w4s['con']+n+3)//4*4)-1}")
    for _ in range(n):
        i = w4s["con"]
        mm, ksl = W4G[i >> 2][(i >> 1) & 1]
        k, rd = 7 * mm + ksl, i & 1
        for b in range(2):
            e(f"ds_read_b64_tr_b16 {ar(8*k+4*b+2*rd, 2)}, v{W4T+b} offset:{1024*(i&7)}", tag=f"w4c{i}")
        w4s["con"] += 1


def w4_release():
    if w4s["free"] < w4s["con"]:
        A.wait_lg(f"w4c{w4s['con']-1}")
        w4s["free"] = w4s["con"]


def w4_cycle():
    return [lambda: w4_read(2), lambda: w4_read(2), None, lambda: (w4_release(), w4_issue(1)), lambda: w4_issue(1),
            lambda: w4_issue(1), lambda: w4_issue(1)]


m0c = [None]


def set_m0(sreg, lit):
    if m0c[0] != (sreg, lit):
        e(f"s_add_u32 m0, {sreg}, {lit}")
        m0c[0] = (sreg, lit)


W3B = [4, 5, 6, 7]
w3s = [0]


def w3_pump(cnt=1):
    for _ in range(cnt):
        i = w3s[0]
        if i >= 28:
            return
        period, n = i // 7, i % 7
        set_m0(sW3m, period * 4 * 7168 + (4096 if n >= 4 else 0))
        e(f"buffer_load_dwordx4 v{W3D+n}, {SW3}, s{W3B[period]} offen offset:{1024*(n&3)} lds", tag="w3")
        w3s[0] += 1


def tr_bases12(lbase, rot, t=TMP):
    e(f"v_lshrrev_b32 v{t}, 4, {vL}")
    e(f"v_bfe_u32 v{t+1}, {vL}, 2, 2")
    e(f"v_and_b32 v{t+2}, 3, {vL}")
    e(f"v_lshlrev_b32 v{t+3}, 9, v{t}")
    e(f"v_lshl_add_u32 v{t+3}, v{t+1}, 7, v{t+3}")
    e(f"v_lshl_add_u32 v{t+3}, v{t+2}, 3, v{t+3}")
    if lbase:
        e(f"v_add_u32 v{t+3}, {lbase}, v{t+3}")
    e(f"v_and_b32 v{t}, 1, v{t}")
    e(f"v_lshrrev_b32 v{t+1}, 1, v{t+1}")
    e(f"v_lshl_add_u32 v{t}, v{t}, 1, v{t+1}")
    if rot:
        e(f"v_xor_b32 v{t}, {sW}, v{t}")
    for i in range(4):
        e(f"v_xor_b32 v{t+1}, {i}, v{t}")
        e(f"v_lshl_add_u32 v{TRB+i}, v{t+1}, 5, v{t+3}")


def run(f):
    if f is None:
        return
    if callable(f):
        f()
    else:
        e(f)


class Cap:
    def __enter__(self):
        global e
        self.o = []
        self.old = e
        e = lambda s_, tag=None: self.o.extend([l for l in s_.split("\n") if l.strip()])
        return self.o

    def __exit__(self, *a):
        global e
        e = self.old


A.raw(f"; @launch grid=(256,1,1) block=(256,1,1) lds={LDS_TOTAL}")
A.raw('.amdgcn_target "amdgcn-amd-amdhsa--gfx950"')
A.raw(".text\n.globl standalone__mixer_s_mlp__prompt_kernel\n.p2align 8\n.type standalone__mixer_s_mlp__prompt_kernel,@function")
A.raw("standalone__mixer_s_mlp__prompt_kernel:")
e("s_cmp_ge_u32 s2, 256\ns_cbranch_scc1 L_end")
e("s_load_dwordx16 s[36:51], s[0:1], 0")
stamp(1, 2, 3, 4)
e("s_getpc_b64 s[68:69]")
A.raw("L_pc:")
VX, VW1, VW2 = 192, 196, 200
vXr = "v63"
XR = list(range(73, 81))
WK = [81, 60, 61, 64]
e(f"v_lshrrev_b32 v2, 6, v0")
e(f"v_and_b32 {vL}, 63, v0")
e(f"v_readfirstlane_b32 {sW}, v2")
e(f"s_and_b32 {sT1}, s2, 7\ns_lshr_b32 {sT2}, s2, 3")
e(f"s_lshr_b32 {sT3}, {sT2}, 4\ns_lshl_b32 {sG}, {sT1}, 1\ns_add_u32 {sG}, {sG}, {sT3}")
e(f"s_and_b32 {sM}, {sT2}, 15\ns_lshr_b32 {sS}, {sM}, 3\ns_and_b32 {sJ}, {sM}, 7")
e(f"s_lshr_b32 {sRep}, {sT2}, 3")
e(f"s_lshl_b32 {sRot1}, {sRep}, 1\ns_add_u32 {sRot1}, {sRot1}, {sJ}")
e(f"s_lshl_b32 {sT0}, {sG}, 7\ns_lshl_b32 {sT1}, {sS}, 6\ns_add_u32 {sT0}, {sT0}, {sT1}")
e(f"s_lshr_b32 {sT1}, {sJ}, 1\ns_lshr_b32 {sT2}, {sT1}, 1\ns_add_u32 {sT2}, {sT2}, 1")
e(f"s_and_b32 {sT1}, {sT1}, 1\ns_cmp_eq_u32 {sT1}, 0\ns_cselect_b32 {sT3}, -1, 1\ns_mul_i32 {sT2}, {sT2}, {sT3}")
e(f"s_lshl_b32 {sT1}, {sW}, 4\ns_add_u32 {sCnt}, {sT1}, {sT0}\ns_add_u32 {sT2}, {sT2}, {sCnt}")
e(f"v_lshrrev_b32 v40, 2, {vL}\nv_add_u32 v40, {sT2}, v40\nv_and_b32 v40, 0xfffff, v40\nv_lshlrev_b32 v40, 10, v40")
e(f"v_lshrrev_b32 v46, 5, {vL}\nv_and_b32 v41, 3, {vL}\nv_lshlrev_b32 v42, 1, v46\nv_xor_b32 v41, v41, v42\nv_lshl_add_u32 v40, v41, 4, v40")
for n in range(4):
    e(f"v_add_u32 v{VX+n}, {64*(n&1) - 1024*n + 3072}, v40")
e(f"v_bfe_u32 v47, {vL}, 3, 2\nv_bfe_u32 v48, {vL}, 1, 2\nv_and_b32 v49, 1, {vL}")
e(f"v_lshrrev_b32 v50, 1, v47\nv_add_u32 v50, v42, v50\nv_xor_b32 v50, v48, v50")
e(f"v_lshlrev_b32 v50, 5, v50\nv_lshl_add_u32 v50, v49, 4, v50\nv_lshl_add_u32 v50, v47, 10, v50")
e(f"v_lshl_add_u32 v{VW1}, v46, 13, v50\nv_lshl_add_u32 v{VW2}, v46, 12, v50")
for n in range(1, 4):
    e(f"v_add_u32 v{VW1+n}, {[0, 15, 2, 17][n]*1024}, v{VW1}")
e(f"v_lshlrev_b32 {vL16}, 4, {vL}")
e(f"s_lshl_b32 {sT1}, {sJ}, 7")
e(f"s_lshl_b32 {sMode}, {sW}, 12")
e(f"s_lshl_b32 {sT3}, {sT0}, 10\ns_add_u32 {sT3}, {sT3}, {sT1}")
e(f"s_lshl1_add_u32 {sKW}, {sRot1}, {sW}")
for pp in range(8):
    e(f"s_add_u32 s{XR[pp]}, {sRot1}, {pp}\ns_and_b32 s{XR[pp]}, s{XR[pp]}, 7\ns_lshl_b32 s{XR[pp]}, s{XR[pp]}, 7")
for c in range(4):
    e(f"s_add_u32 s{WK[c]}, {sKW}, {4*c}\ns_and_b32 s{WK[c]}, s{WK[c]}, 15\ns_lshl_b32 s{WK[c]}, s{WK[c]}, 15")
for i in range(4): e(f"v_mov_b32 v{52+i}, 0")
e(f"s_and_b32 {sT2}, {sM}, 3\ns_or_b32 {sT2}, {sT2}, {sW}")
e(f"s_lshl_b32 {sHello}, {sM}, 11\ns_add_u32 {sHello}, {sHello}, {FLAG_OFF}")
e(f"s_and_b32 {sT6}, {sJ}, 3\ns_lshl_b32 {sT6}, {sT6}, 2\ns_add_u32 {sT6}, {sT6}, {sW}\ns_lshl_b32 {sT6}, {sT6}, 11")
e(f"v_lshlrev_b32 v46, 7, {vL}\nv_add_u32 v46, {sT6}, v46\nv_min_u32 v46, L_codeend-L_pc-4, v46")
e(f"s_lshl_b32 {sT6}, {sG}, 20")
e(f"s_mov_b32 s6, {2048*1024 + 3072}\ns_mov_b32 s7, 0x20000")
A.wait_lg0()
stamp(2)
e(f"s_sub_u32 s4, s36, 3072\ns_subb_u32 s5, s37, 0")
srd(28, 50, add=sT6, size=WS_SIZE)
Lr = lab("Lr")
e(f"s_cmp_lg_u32 {sT2}, 0\ns_cbranch_scc1 {Lr}")
e(f"s_add_u32 s32, {sHello}, 4096")
for k in range(8):
    e(f"buffer_store_dwordx4 v[52:55], {vL16}, {SWS}, {sHello if k < 4 else 's32'} offen offset:{1024*(k&3)} sc1")
    A.untrack()
e(f"{Lr}:")


def x_issue(p):
    set_m0(sMode, LW2 + 16384 * (p >> 2))
    e(f"buffer_load_dwordx4 v{VX+(p&3)}, {SX}, s{XR[p>>1]} offen offset:{1024*(p&3)} lds", tag=f"x{p}")


def w12_issue(which, c, n):
    set_m0(sMode, (LW1 if which == 1 else LW2) + 16384 * c)
    e(f"buffer_load_dwordx4 v{(VW1 if which == 1 else VW2)+n}, {SW1 if which == 1 else SW2}, s{WK[c]} offen offset:{1024*n} lds",
      tag=f"w{which}c{c}")


x_issue(0)
x_issue(1)
srd(8, 38, add=sT1, size=512 * 1024 - 896)
for n in range(4): w12_issue(1, 0, n)
x_issue(2)
x_issue(3)
e("s_mov_b64 exec, 0xffff")
e("global_load_dword v255, v46, s[68:69]", tag="pf")
e("s_mov_b64 exec, -1")
stamp(2)
srd(12, 40, add=sT1, size=512 * 1024 - 896)
srd(24, 46, add=sT3, size=64 * 1024 - 896)
for n in range(1, 4):
    e(f"v_add_u32 v{VW2+n}, {7*1024*n}, v{VW2}")
e(f"v_lshlrev_b32 {vRep}, 6, {vL}")
e(f"v_mov_b32 {vOne}, 1")
e(f"s_mul_i32 {sT3}, {sM}, 224")
e(f"s_sub_u32 s16, s42, 3072\ns_subb_u32 s17, s43, 0")
e(f"s_add_u32 s16, s16, {sT3}\ns_addc_u32 s17, s17, 0")
e(f"s_mov_b32 s18, {512*3584 + 3072 - 224*15}\ns_mov_b32 s19, 0x20000")
e(f"s_mul_i32 {sT3}, {sW}, {448*1024}\ns_add_u32 {sT3}, {sT3}, {sT1}")
e(f"s_sub_u32 s20, s44, 3072\ns_subb_u32 s21, s45, 0")
e(f"s_add_u32 s20, s20, {sT3}\ns_addc_u32 s21, s21, 0")
e(f"s_mov_b32 s22, {448*1024 - 896 + 3072}\ns_mov_b32 s23, 0x20000")
e(f"s_lshl_b32 {sT3}, {sG}, 4\ns_add_u32 s62, s48, {sT3}\ns_addc_u32 s63, s49, 0")
e(f"v_lshl_add_u32 v60, {vL}, 2, {sT3}\nv_cmp_gt_u32 vcc, 4, {vL}\nv_cndmask_b32 v60, -1, v60, vcc")
e(f"v_lshlrev_b32 v62, 2, {vL}\nv_add_u32 v62, {FLAG_OFF + HEL_OFF}, v62\nv_cndmask_b32 v62, -1, v62, vcc")
e(f"s_add_u32 {sT3}, {sT3}, {sM}\nv_mov_b32 v19, {sT3}")
e(f"v_lshlrev_b32 v58, 7, {vL}\nv_add_u32 v58, {sHello}, v58")
e(f"s_add_u32 s42, s28, {FLAG_OFF + HEL_OFF}\ns_addc_u32 s43, s29, 0")
e(f"s_add_u32 {sT3}, {sM}, {FLAG_OFF + HEL_OFF}\nv_mov_b32 v57, {sT3}")
e(f"s_getreg_b32 {sHello}, hwreg(HW_REG_XCC_ID)")
e(f"s_and_b32 {sHello}, {sHello}, 15\ns_or_b32 {sHello}, {sHello}, 0x80")
if OPT["forceslow"]:
    e(f"s_cmp_eq_u32 {sM}, 5\ns_cselect_b32 {sHello}, 0x89, {sHello}")
e(f"v_mov_b32 v56, {sHello}")
e(f"s_mul_i32 {sHello}, {sHello}, 0x01010101")
e(f"s_mov_b32 s40, {sW}")
e(f"s_and_b32 {sT4}, {sG}, 1\ns_lshl_b32 {sT4}, {sT4}, 2\ns_add_u32 {sRot3}, {sT4}, {sM}")
if OPT["rot3"] == 0:
    e(f"s_mov_b32 {sRot3}, 0")
e(f"s_add_u32 {sRep}, {sRep}, {sJ}")
for i in range(4): e(f"v_mov_b32 v{ONES+i}, 0x3f803f80")
e(f"v_and_b32 v46, 15, {vL}\nv_lshrrev_b32 v47, 4, {vL}\nv_bfe_u32 v48, {vL}, 3, 1\nv_lshlrev_b32 v48, 1, v48\nv_xor_b32 v47, v47, v48")
e(f"v_lshlrev_b32 v46, 6, v46\nv_lshl_add_u32 v46, v47, 4, v46\ns_add_u32 {sT4}, {sMode}, {LW2}\nv_add_u32 {vXr}, {sT4}, v46")
e(f"v_lshrrev_b32 v46, 3, {vL}\nv_and_b32 v47, 7, {vL}\nv_lshrrev_b32 v48, 4, {vL}\nv_xor_b32 v47, v47, v48")
e(f"v_add_u32 v46, {sCnt}, v46\nv_lshlrev_b32 v46, 10, v46\nv_lshl_add_u32 {vMisc}, v47, 4, v46")
e(f"s_add_u32 {sT1}, {sT1}, 3072")
e(f"s_lshl_b32 {sT4}, {sW}, 13\ns_add_u32 {sT4}, {sT4}, {LST}")
e(f"v_lshrrev_b32 v46, 5, {vL}\nv_bfe_u32 v47, {vL}, 3, 2\nv_bfe_u32 v48, {vL}, 2, 1\nv_and_b32 v49, 3, {vL}")
e(f"v_lshrrev_b32 v50, 1, v47\nv_xor_b32 v50, v48, v50\nv_lshlrev_b32 v50, 6, v50\nv_lshl_add_u32 v50, v49, 4, v50")
e(f"v_lshl_add_u32 v47, v46, 2, v47\nv_lshl_add_u32 {vW4d}, v47, 10, v50")
e(f"v_bfe_u32 v47, {vL}, 2, 2\nv_bfe_u32 v48, {vL}, 4, 1")
e(f"v_lshlrev_b32 v50, 9, v46\nv_lshl_add_u32 v50, v47, 7, v50\nv_lshl_add_u32 v50, v48, 5, v50\nv_lshl_add_u32 v50, v49, 3, v50")
e(f"v_add_u32 v50, {sT4}, v50\nv_lshrrev_b32 v47, 1, v47")
e(f"v_lshl_add_u32 v{W4T}, v47, 6, v50\nv_xor_b32 v47, 1, v47\nv_lshl_add_u32 v{W4T+1}, v47, 6, v50")
e(f"s_and_b32 {sT4}, {sW}, 1\ns_lshl_b32 {sT4}, {sT4}, 6\nv_xor_b32 v{W4T}, {sT4}, v{W4T}\nv_xor_b32 v{W4T+1}, {sT4}, v{W4T+1}")
CX = 104
e(f"s_lshl_b32 {sT4}, {sW}, 10\ns_add_u32 {sT4}, {sT4}, {LCX}\nv_add_u32 v{CX}, {sT4}, {vL16}")
for i in range(1, 4):
    e(f"v_xor_b32 v{CX+i}, {1024*i}, v{CX}")
for g in range(448): assert (g * 1171) >> 16 == g // 56
e(f"s_and_b32 {sT6}, {sM}, 1")
e(f"s_lshl_b32 {sT4}, {sT6}, 5")
e(f"s_cmp_eq_u32 {sT6}, 0\ns_cselect_b32 {sT5}, 192, 0")
for n in range(7):
    e(f"v_add_u32 v46, {64*n}, {vL}")
    e(f"v_mul_u32_u24 v47, 1171, v46\nv_lshrrev_b32 v47, 16, v47")
    e(f"v_mul_u32_u24 v48, 56, v47\nv_sub_u32 v46, v46, v48")
    e(f"v_lshrrev_b32 v48, 4, v46\nv_and_b32 v49, 3, v46\nv_lshlrev_b32 v48, 6, v48\nv_lshl_add_u32 v48, v49, 4, v48")
    e(f"v_add_u32 v48, {sT4}, v48\nv_bfe_u32 v49, v46, 2, 2")
    e(f"v_and_b32 v50, 1, v46\nv_lshlrev_b32 v50, 4, v50\nv_add_u32 v50, {sT5}, v50\nv_bfe_u32 v51, v46, 1, 2")
    e(f"v_cmp_lt_u32 vcc, 47, v46")
    e(f"v_cndmask_b32 v48, v48, v50, vcc\nv_cndmask_b32 v49, v49, v51, vcc")
    e(f"v_lshl_add_u32 v47, v47, 2, v49\nv_mul_u32_u24 v47, 3584, v47")
    if (n & 3) != 3:
        e(f"v_add_u32 v48, {3072 - 1024*(n&3)}, v48")
    e(f"v_add_u32 v{W3D+n}, v47, v48")
NL = OPT["pfl"]
e(f"s_lshr_b32 {sT4}, s2, 3\ns_mul_i32 {sT5}, {sT4}, {128*NL}\ns_lshl_b32 {sT6}, {sJ}, 7\ns_sub_u32 {sT5}, {sT5}, {sT6}\ns_add_u32 {sT5}, {sT5}, 3072")
e(f"v_lshlrev_b32 v112, 7, {vL}\nv_add_u32 v113, {sT5}, v112")
e(f"s_lshl2_add_u32 {sT4}, {sT4}, {sW}\ns_mul_i32 {sT4}, {sT4}, {128*NL}\ns_mul_i32 {sT6}, {sM}, 224\ns_sub_u32 {sT4}, {sT4}, {sT6}\ns_add_u32 {sT4}, {sT4}, 3072")
e(f"v_add_u32 v112, {sT4}, v112")
e(f"v_cmp_gt_u32 vcc, {NL}, {vL}\nv_mov_b32 v114, 0x40000000\nv_cndmask_b32 v112, v114, v112, vcc\nv_cndmask_b32 v113, v114, v113, vcc")
pfs = [0]


def pf(dyn=False):
    k = pfs[0]
    which = 1 if (k >= 112 // NL or dyn or OPT["pf3"] == 0) else 0
    e(f"buffer_load_dword v114, v{112+which}, {SW4 if which else SW3}, 0 offen", tag="pf")
    if dyn:
        A.untrack()
        e(f"v_add_u32 v113, {4096*NL}, v113\nv_min_u32 v113, 0x40000000, v113")
    else:
        e(f"v_add_u32 v{112+which}, {4096*NL if which else 16384*NL}, v{112+which}")
        pfs[0] += 1


def hook(name):
    o = []
    for t in str(OPT[name]).split("_"):
        if t in ("", "0"):
            continue
        k, n = (t.split("x") + ["1"])[:2]
        f = {"q": pf, "w3": lambda: w3_pump(1), "w4": lambda: w4_issue(1), "n": None}[k]
        o += [f] * int(n)
    return o


srd(32, 48, size=256)
tr_bases12(LW1, True)
Lr = lab("Lr")
e(f"s_cmp_lg_u32 {sT2}, 0\ns_cbranch_scc1 {Lr}")
e(f"s_waitcnt vmcnt({len(A.vm)})")
e("s_mov_b64 exec, 1")
e(f"buffer_store_dword {vOne}, v19, {SDBG}, 0 offen sc1")
A.untrack()
e("s_mov_b64 exec, -1")
e(f"{Lr}:")
stamp(2)
for p in range(4, 8): x_issue(p)
for n in range(4): w12_issue(1, 1, n)


def reduce_q(s, q, t):
    e(f"v_permlane32_swap_b32 v{s}, v{q}")
    e(f"v_add_f32 v{s}, v{s}, v{q}")
    e(f"v_mov_b32 v{t}, v{s}")
    e(f"v_permlane16_swap_b32 v{s}, v{t}")
    e(f"v_add_f32 v{s}, v{s}, v{t}")
    e(f"v_mov_b32 v{t}, v{s}")
    e(f"v_permlane32_swap_b32 v{s}, v{t}")


def x_read(p):
    e(f"ds_read_b128 {vr(BF+4*p)}, {vXr} offset:{16384*(p>>2) + 1024*(p&3)}", tag=f"xr{p}")


gomark = [0]


def go_ld(mod):
    e(f"buffer_load_dword v59, v60, {SDBG}, 0 offen {mod}")
    A.untrack()
    gomark[0] = A.nvm


def go_load():
    L = lab("Lgo")
    e(f"s_cmp_lg_u32 s40, 0\ns_cbranch_scc1 {L}")
    go_ld("sc0")
    e(f"{L}:")


def go_check(final=False):
    L, L2, L0 = lab("Lgo"), lab("Lgp"), lab("Lgs")
    e(f"s_cmp_lg_u32 s40, 0\ns_cbranch_scc1 {L}")
    e(f"s_waitcnt vmcnt({A.nvm - gomark[0]})")
    if final:
        e(f"s_mov_b32 s41, 0")
        e(f"{L0}:")
    e("v_cmp_ne_u32 vcc, 0, v59")
    e("s_cmp_eq_u32 vcc_lo, 15")
    e(f"s_cbranch_scc1 {L2}")
    go_ld("sc1" if final else "sc0")
    if final:
        e("s_waitcnt vmcnt(0)")
        e(f"s_add_u32 s41, s41, 1\ns_cmp_gt_u32 s41, 30000\ns_cbranch_scc1 L_end")
        e(f"s_branch {L0}")
    else:
        e(f"s_branch {L}")
    e(f"{L2}:")
    e("s_mov_b64 exec, 1\ns_mov_b32 s40, 1")
    e(f"buffer_store_byte v56, v57, {SWS}, 0 offen sc1")
    A.untrack()
    e("s_mov_b64 exec, 0xffff")
    e(f"buffer_load_dword v61, v58, {SWS}, 0 offen sc1")
    A.untrack()
    e("s_mov_b64 exec, -1")
    e(f"{L}:")


def p1_pre(i):
    if i % 16 == 0:
        c = i // 16
        A.wait_vm(f"x3" if c == 0 else f"w1c{c}")
        for p in {0: range(0, 4), 1: range(4, 8), 2: range(8, 16), 3: []}[c]:
            x_read(p)
        e("s_barrier")
        stamp(2)


SUMA, GRAM = 96, 100


def stat_mfma(p, which):
    if which:
        return f"v_mfma_f32_16x16x32_bf16 {vr(GRAM)}, {vr(BF+4*p)}, {vr(BF+4*p)}, {vr(GRAM) if p else '0'}"
    return f"v_mfma_f32_16x16x32_bf16 {vr(SUMA)}, {vr(ONES)}, {vr(BF+4*p)}, {vr(SUMA) if p else '0'}"


F = {i: [] for i in range(64)}
lq = [lambda p=p: x_issue(p) for p in range(8, 16)] + [lambda c=c, n=n: w12_issue(1, c, n) for c in (2, 3) for n in range(4)]
for i in range(16):
    F[i].append(lq[i])
F[OPT["hel"]].append(go_load)
for k in range(1, 4):
    F[min(48, OPT["hel"] + OPT["held"] * k)].append(go_check)
for p in range(8):
    F[4 * p + 1].append(stat_mfma(p, 0))
    F[4 * p + 2].append(stat_mfma(p, 1))
for k in range(16):
    F[32 + k].append(stat_mfma(8 + (k >> 1), k & 1))
F[OPT["w2b"]].append(lambda: A.wait_lg("xr15"))
for k in range(8):
    F[OPT["w2a"] + OPT["w2d"] * k].append(lambda k=k: w12_issue(2, k >> 2, k & 3))
    F[OPT["w2b"] + OPT["w2d"] * k].append(lambda k=k: w12_issue(2, 2 + (k >> 2), k & 3))
with Cap() as st:
    for r in range(4):
        mk = sum(1 << (20 * g + r) for g in range(4))
        e(f"s_mov_b32 vcc_lo, {mk & 0xffffffff}\ns_mov_b32 vcc_hi, {mk >> 32}")
        e(f"v_cndmask_b32 v41, {'0' if r == 0 else 'v41'}, v{GRAM+r}, vcc")
    e("v_mov_b32 v42, v41\nv_permlane32_swap_b32 v41, v42\nv_add_f32 v41, v41, v42")
    e("v_mov_b32 v42, v41\nv_permlane16_swap_b32 v41, v42\nv_add_f32 v41, v41, v42")
    stat_consts(SUMA, 41, 44)
    e(f"s_lshl_b32 {sT4}, {sS}, 2\ns_add_u32 {sT4}, {sT4}, {sW}\ns_lshl_b32 {sT4}, {sT4}, 14")
    e(f"s_lshl_b32 {sT3}, {sJ}, 11\ns_add_u32 {sT3}, {sT3}, {sT4}")
    e(f"s_lshr_b32 {sT2}, {sW}, 1\ns_lshl_b32 {sT2}, {sT2}, 10")
    e(f"s_add_u32 {sCnt}, {sT3}, {sT2}\ns_xor_b32 {sT2}, {sT2}, 1024\ns_add_u32 {sT2}, {sT3}, {sT2}")
for k, s_ in enumerate(st):
    F[49 + k // 3].append(s_)
F[62].append(lambda: e(f"ds_write_b128 v{CX}, {vr(ACC+16)}", tag="csw"))


def xres():
    e(f"s_lshr_b32 {sT5}, {sMode}, 1\ns_add_u32 m0, {sT5}, {LXR}")
    m0c[0] = None
    e(f"buffer_load_dwordx4 {vMisc}, {SX}, {sT1} offen lds", tag="xres")
    e(f"v_xor_b32 {vMisc}, 64, {vMisc}\ns_add_u32 {sT1}, {sT1}, {8192-1024}")
    e(f"buffer_load_dwordx4 {vMisc}, {SX}, {sT1} offen offset:1024 lds", tag="xres")


F[16].append(xres)
for k in range(OPT["pfa"], 64, OPT["pfd"]):
    F[k].append(pf)
with Cap() as st:
    tr_bases12(LW2, False, 108)
for k, s_ in enumerate(st):
    F[55 + k // 2].append(s_)

D = 10


def rd1(i):
    ks, sl = i >> 2, i & 3
    p1_pre(i)
    b = 192 + 4 * (i & 15)
    for r in range(2):
        e(f"ds_read_b64_tr_b16 {ar(b+2*r, 2)}, v{TRB+sl} offset:{4096*ks+2048*r}", tag=f"a{i}")


for i in range(D):
    rd1(i)
for i in range(64):
    ks, sl = i >> 2, i & 3
    if i + D < 64:
        rd1(i + D)
    if i % 2 == 0:
        A.wait_lg(f"a{i+1}")
    c = vr(ACC + 4 * sl) if ks > 0 else "0"
    e(f"v_mfma_f32_16x16x32_bf16 {vr(ACC+4*sl)}, {ar(192+4*(i&15))}, {vr(BF+4*ks)}, {c}")
    if sl == 0:
        c = vr(ACC + 16) if ks > 0 else "0"
        e(f"v_mfma_f32_16x16x32_bf16 {vr(ACC+16)}, {ar(192+4*(i&15))}, {vr(ONES)}, {c}")
    for f in F[i]:
        run(f)
stamp(1, 2)
go_check(True)
A.wait_vm("w2c3")
stamp(3)
A.wait_lg0()
e("s_barrier")
for i in range(1, 4):
    e(f"ds_read_b128 {vr(ACC+16+4*i)}, v{CX+i}", tag=f"cs{i}")
e(f"buffer_load_dword v59, v62, {SWS}, 0 offen sc0", tag="hel")
A.wait_lg0()
for i in range(4):
    for h in (0, 2):
        e(f"v_pk_fma_f32 {vr(ACC+4*i+h, 2)}, {vr(ACC+16+4*i+h, 2)}, v[{cI}:{cM}], {vr(ACC+4*i+h, 2)} op_sel:[0,1,0] op_sel_hi:[1,1,1]")
hG = hook("hG")
for i in range(4):
    if hG: run(hG.pop(0))
    for s_ in gelu4pk(ACC + 4 * i, TMP + 4 * (i & 1), [TMP + 8 + 2 * i, TMP + 9 + 2 * i]):
        e(s_)
Lx = lab("Lx")
e(f"s_bitcmp0_b32 {sW}, 0\ns_cbranch_scc1 {Lx}")
for i2 in range(2):
    for d in range(2):
        e(f"v_swap_b32 v{TMP+8+4*i2+d}, v{TMP+10+4*i2+d}")
e(f"{Lx}:")
e(f"buffer_store_dwordx4 {vr(TMP+8)}, {vL16}, {SWS}, {sCnt} offen{fl('gst')}", tag="gst")
e(f"buffer_store_dwordx4 {vr(TMP+12)}, {vL16}, {SWS}, {sT2} offen{fl('gst')}", tag="gst")
stamp(2, 3)
e(f"s_mul_i32 {sW3m}, {sW}, 7168\ns_lshl_b32 {sStg}, {sW}, 13\ns_add_u32 {sStg}, {sStg}, {LST}")
e(f"s_and_b32 {sW3o}, {sW}, 1\ns_mul_i32 {sW3o}, {sW3o}, 114688\ns_lshr_b32 {sT5}, {sW}, 1\ns_add_u32 {sT5}, {sT5}, {sRot3}")
for per in range(4):
    e(f"s_add_u32 s{W3B[per]}, {sT5}, {2*per}\ns_and_b32 s{W3B[per]}, s{W3B[per]}, 7\ns_mul_i32 s{W3B[per]}, s{W3B[per]}, 229376\ns_add_u32 s{W3B[per]}, s{W3B[per]}, {sW3o}")
hA = hook("hA")
for i in range(64):
    ks, sl = i >> 2, i & 3
    for r in range(2):
        e(f"ds_read_b64_tr_b16 {ar(4*i+2*r, 2)}, v{TRB+sl} offset:{4096*ks+2048*r}", tag="w2f")
        k = 2 * i + r - OPT["fr0"]
        if k >= 0 and k % OPT["frd"] == 0 and hA:
            run(hA.pop(0))
for f in hA: run(f)
assert w3s[0] <= 21
e(f"s_add_u32 s60, s28, {FLAG_OFF}\ns_addc_u32 s61, s29, 0")
for mm in range(4):
    e(f"s_add_u32 {sT6}, {sRep}, {mm}\ns_and_b32 {sT6}, {sT6}, 3\ns_and_b32 {sT5}, {sT6}, 1\ns_mul_i32 {sT6}, {sT6}, 7\ns_add_u32 {sT6}, {sT6}, {sT5}\ns_lshl_b32 s{KF[mm]}, {sT6}, 10")
    if mm < 2:
        e(f"s_cmp_eq_u32 {sT5}, 0\ns_cselect_b32 s{DH[mm]}, 6, -1\ns_lshl_b32 s{DH[mm]}, s{DH[mm]}, 10")
XA = 96
e(f"v_and_b32 v44, 15, {vL}\nv_lshrrev_b32 v45, 5, {vL}\nv_bfe_u32 v46, {vL}, 1, 3\nv_xor_b32 v45, v45, v46\nv_bfe_u32 v46, {vL}, 4, 1")
e(f"v_lshlrev_b32 v44, 7, v44\nv_lshl_add_u32 v44, v46, 3, v44\nv_lshl_add_u32 v44, v45, 4, v44")
e(f"s_lshr_b32 {sT5}, {sMode}, 1\ns_add_u32 {sT5}, {sT5}, {LXR}\nv_add_u32 v{XA}, {sT5}, v44")
for fb in range(1, 4):
    e(f"v_xor_b32 v{XA+fb}, {32*fb}, v{XA}")
for fb in range(4):
    e(f"ds_read_b64 {vr(100+2*fb, 2)}, v{XA+fb}", tag="xrr")
e(f"s_and_b32 {sPar}, {sM}, 1")
e(f"s_lshl_b32 {sT1}, {sS}, 2\ns_add_u32 {sT1}, {sT1}, {sW}\ns_lshl_b32 {sT1}, {sT1}, 10")
e(f"s_lshl_b32 {sT2}, {sJ}, 2\ns_add_u32 {sT2}, {sT2}, {sT1}\ns_add_u32 {sT2}, {sT2}, {FLAG_OFF}")
stamp(3)
A.wait_vm("gst")
stamp(3)
Lh, Lh2, Lh3 = lab("Lh"), lab("Lh2"), lab("Lh3")
e(f"v_cmp_eq_u32 vcc, {sHello}, v59")
e(f"s_mov_b32 {sMode}, 0\ns_mov_b32 {sCnt}, 0")
e(f"s_cmp_eq_u32 vcc_lo, 15\ns_cbranch_scc1 {Lh3}")
e(f"{Lh}:")
A.raw(f"s_load_dwordx4 s[36:39], s[42:43], 0 glc")
e("s_waitcnt lgkmcnt(0)")
e("s_and_b64 s[40:41], s[36:37], s[38:39]\ns_and_b32 s40, s40, s41\ns_and_b32 s40, s40, 0x80808080")
e(f"s_cmp_eq_u32 s40, 0x80808080\ns_cbranch_scc1 {Lh2}")
e(f"s_add_u32 {sCnt}, {sCnt}, 1\ns_cmp_gt_u32 {sCnt}, 30000\ns_cbranch_scc1 L_end")
e(f"s_branch {Lh}")
e(f"{Lh2}:")
for i in range(4): e(f"s_xor_b32 s{36+i}, s{36+i}, {sHello}")
e("s_or_b64 s[36:37], s[36:37], s[38:39]\ns_or_b32 s36, s36, s37")
e(f"s_cselect_b32 {sMode}, 4096, 0")
e(f"{Lh3}:")
publish(sT2, 16)
A.wait_lg("xrr")
for fb in range(4):
    e(f"v_add_u32 v{XA+fb}, {LX1R-LXR}, v{XA+fb}")
    for d in range(2):
        e(f"v_lshlrev_b32 v{ACC+4*fb+2*d}, 16, v{100+2*fb+d}")
        e(f"v_and_b32 v{ACC+4*fb+2*d+1}, 0xffff0000, v{100+2*fb+d}")
for pp in range(8):
    e(f"s_add_u32 s{44+pp}, {sRot1}, {pp}\ns_and_b32 s{44+pp}, s{44+pp}, 7\ns_lshl_b32 s{44+pp}, s{44+pp}, 11\ns_add_u32 s{44+pp}, s{44+pp}, {sT4}")
A.wait_lg0()
e("s_barrier")
for n in range(1, 4):
    e(f"v_add_u32 {W4V[n]}, {7168*n}, {vW4d}")
for f in hook("hB"): run(f)
GB = BF + 64
poll(sT1, 8, 16, None, (lambda: pf(True)) if OPT["pfp"] & 1 else None)
stamp(1, 3)


def g_issue(p):
    e(f"buffer_load_dwordx4 {vr(GB+4*p)}, {vL16}, {SWS}, s{44+(p>>1)} offen offset:{1024*(p&1)}{fl('ld')}", tag=f"g{p}")


NG0 = OPT["ng0"]
for p in range(NG0):
    g_issue(p)
e(f"s_lshl_b32 {sT1}, {sS}, 1\ns_lshr_b32 {sT2}, {sW}, 1\ns_add_u32 {sT1}, {sT1}, {sT2}")
e(f"s_lshl_b32 {sT6}, {sT1}, 10")
e(f"s_lshl_b32 {sT2}, {sT1}, 15\ns_lshl_b32 {sT3}, {sJ}, 12\ns_add_u32 {sT2}, {sT2}, {sT3}")
e(f"s_and_b32 {sT3}, {sW}, 1\ns_lshl_b32 {sT4}, {sT3}, 8\ns_add_u32 {sT2}, {sT2}, {sT4}\ns_add_u32 {sT2}, {sT2}, {X1_OFF}")
e(f"s_lshl_b32 {sT1}, {sT1}, 11\ns_lshl_b32 {sT4}, {sJ}, 8\ns_add_u32 {sT1}, {sT1}, {sT4}")
e(f"s_lshl_b32 {sT4}, {sT3}, 7\ns_add_u32 {sT1}, {sT1}, {sT4}\ns_add_u32 {sT1}, {sT1}, {STAT_OFF}")
e(f"s_lshl_b32 {sT3}, {sT3}, 3\ns_add_u32 {sT3}, {sT3}, {sJ}\ns_lshl_b32 {sT3}, {sT3}, 2")
e(f"s_add_u32 {sT3}, {sT6}, {sT3}\ns_add_u32 {sT3}, {sT3}, {FLAG_OFF + 8192}")
e(f"v_and_b32 v54, 15, {vL}\nv_lshrrev_b32 v55, 4, {vL}\nv_lshlrev_b32 v56, 3, v54\nv_lshlrev_b32 v54, 4, v54\nv_lshl_add_u32 v54, v55, 10, v54")
e(f"v_lshrrev_b32 v40, 5, {vL}\nv_bfe_u32 v41, {vL}, 4, 1\nv_bfe_u32 v42, {vL}, 2, 2\nv_and_b32 v43, 3, {vL}")
e(f"v_mul_u32_u24 v44, {896*8}, v40")
e(f"v_lshl_add_u32 v45, v42, 6, v44\nv_lshl_add_u32 v45, v41, 5, v45\nv_lshl_add_u32 v{TRB}, v43, 3, v45")
e(f"v_add_u32 v{TRB+1}, {896*64}, v{TRB}")
e(f"v_mul_u32_u24 v45, 896, v41\nv_add_u32 v44, v44, v45\nv_lshl_add_u32 v44, v42, 5, v44")
e(f"v_and_b32 v45, 1, v43\nv_lshrrev_b32 v43, 1, v43\nv_lshl_add_u32 v43, v45, 1, v43\nv_lshl_add_u32 v44, v43, 3, v44")
e(f"v_add_u32 v{TRB+2}, 768, v44\nv_add_u32 v{TRB+3}, {768+896*64}, v44")
e(f"v_bfe_u32 v42, {vL}, 2, 1\nv_cmp_eq_u32 vcc, v42, v41")
e(f"v_cndmask_b32 v{ASEL}, 0, v{ONES}, vcc")
for i in range(1, 4): e(f"v_mov_b32 v{ASEL+i}, v{ASEL}")
CSA = 124
e(f"s_mul_i32 {sT4}, {sW}, {896*16}")
e(f"v_add_u32 v{CSA}, {sT4}, v{TRB}\nv_add_u32 v{CSA+1}, {sT4}, v{TRB+2}")
e(f"v_and_b32 v48, 31, {vL}\nv_lshlrev_b32 v48, 3, v48\nv_lshl_add_u32 v48, v40, 10, v48")
F = {i: [] for i in range(64)}
lq = [lambda p=p: g_issue(p) for p in range(NG0, 16)] + hook("hC")
for k, f in enumerate(lq):
    F[k * OPT["p2d"]].append(f)
for i in range(64):
    ks, sl = i >> 2, i & 3
    if sl == 0:
        A.wait_vm(f"g{ks}")
    e(f"v_mfma_f32_16x16x32_bf16 {vr(ACC+4*sl)}, {ar(4*i)}, {vr(GB+4*ks)}, {vr(ACC+4*sl)}")
    for f in F[i]:
        run(f)
stamp(1, 3)
for i in range(8):
    e(f"v_cvt_pk_bf16_f32 v{X1P+i}, v{ACC+2*i}, v{ACC+2*i+1}")
e(f"buffer_store_dwordx4 {vr(X1P)}, v54, {SWS}, {sT2} offen{fl('xst')}", tag="xst")
e(f"buffer_store_dwordx4 {vr(X1P+4)}, v54, {SWS}, {sT2} offen offset:512{fl('xst')}", tag="xst")
for i in range(8):
    e(f"v_dot2_f32_bf16 v40, v{X1P+i}, v{ONES}, {'0' if i == 0 else 'v40'}")
    e(f"v_dot2_f32_bf16 v42, v{X1P+i}, v{X1P+i}, {'0' if i == 0 else 'v42'}")
reduce_q(40, 42, 41)
e("s_mov_b64 exec, 0xffff")
e(f"buffer_store_dwordx2 v[40:41], v56, {SWS}, {sT1} offen{fl('xst')}", tag="xst")
e("s_mov_b64 exec, -1")
for f in hook("hD"): run(f)
for fb in range(4):
    e(f"ds_write_b64 v{XA+fb}, {vr(X1P+2*fb, 2)}", tag="x1r")
e(f"s_lshl_b32 {sT4}, {sW}, 11\ns_add_u32 {sT4}, {sT4}, {STAT_OFF}")
e(f"s_lshl_b32 {sT1}, {sW}, 10\ns_add_u32 {sT1}, {sT1}, 8192")
YT = list(range(8, 16))
e(f"s_lshl_b32 {sT5}, {sW}, 15\ns_add_u32 {sT5}, {sT5}, {X1_OFF}")
for bp in range(8):
    e(f"s_add_u32 s{YT[bp]}, {sRot3}, {bp}\ns_and_b32 s{YT[bp]}, s{YT[bp]}, 7\ns_lshl_b32 s{YT[bp]}, s{YT[bp]}, 12\ns_add_u32 s{YT[bp]}, s{YT[bp]}, {sT5}")
stamp(3)
A.wait_vm("xst")
stamp(3)
publish(sT3, 16)
for f in hook("hE"): run(f)
assert w3s[0] == 28
CS = ACC + 32


def cs_items(part):
    it = []
    for q in range(4):
        for b in range(3):
            it.append((CSA, 896 * (64 * part + q) + 256 * b, b))
        if q % 2 == 0:
            it.append((CSA + 1, 896 * (64 * part + q), 3))
    return it


sHs, sHh, sP3 = sT2, "s62", "s63"
e(f"s_mul_i32 {sHh}, {sW}, 112\ns_mul_i32 {sHs}, {sM}, 7\ns_add_u32 {sHh}, {sHh}, {sHs}\ns_lshl_b32 {sHh}, {sHh}, 10\ns_add_u32 {sHh}, {sHh}, {H3_OFF}")
e(f"s_lshl_b32 {sHs}, {sPar}, 10\ns_add_u32 {sHs}, {sHs}, {sHh}")
e(f"s_cmp_eq_u32 {sPar}, 0\ns_cselect_b32 {sT5}, 6144, 0\ns_add_u32 {sHh}, {sHh}, {sT5}")
e(f"s_lshr_b32 {sP3}, {sW}, 1\ns_lshl_b32 {sP3}, {sP3}, 2\ns_lshr_b32 {sT5}, {sM}, 2\ns_add_u32 {sP3}, {sP3}, {sT5}\ns_lshl_b32 {sP3}, {sP3}, 11")
e(f"s_and_b32 {sT5}, {sM}, 3\ns_lshl_b32 {sT5}, {sT5}, 3\ns_add_u32 {sP3}, {sP3}, {sT5}")
e(f"s_and_b32 {sT5}, {sW}, 1\ns_lshl_b32 {sT5}, {sT5}, 2\ns_add_u32 {sP3}, {sP3}, {sT5}")
e(f"s_add_u32 {sP3}, {sP3}, {FLAG_OFF + 16384}")
HA = [4, 5, 6, 7]
e(f"s_mul_i32 {sH0}, {sS}, 224\ns_mul_i32 {sT5}, {sW}, 28\ns_add_u32 {sH0}, {sH0}, {sT5}")
e(f"s_lshl_b32 {sH0}, {sH0}, 10\ns_add_u32 {sH0}, {sH0}, {H3_OFF}")
for mm in range(4):
    e(f"s_add_u32 s{HA[mm]}, {sH0}, s{KF[mm]}")
vH = ["v11", "v56"]
e(f"s_lshr_b32 {sT5}, {sW}, 1\ns_mul_i32 {sT5}, {sT5}, {112*1024}\nv_add_u32 {vH[0]}, {sT5}, {vL16}")
e(f"s_sub_u32 {sT5}, {112*1024}, {sT5}\nv_add_u32 {vH[1]}, {sT5}, {vL16}")
e(f"s_lshl_b32 {sT5}, {sW}, 10\ns_add_u32 {sT5}, {sT5}, {LMISC}")
e(f"v_add_u32 v126, {sT5}, {vL16}\nv_add_u32 v127, {LMISC}, {vL16}")
sQ3 = sT3
e(f"s_lshl_b32 {sQ3}, {sS}, 2\ns_add_u32 {sQ3}, {sQ3}, {sW}\ns_lshl_b32 {sQ3}, {sQ3}, 11\ns_add_u32 {sQ3}, {sQ3}, 16384")
A.wait_vm("w3")
A.wait_lg0()
e("s_barrier")
stamp(4)
for f in hook("hF"): run(f)
w4_issue(8 - w4s["iss"])
items = cs_items(0) + cs_items(1)
D = 6
cs_seen = set()
hS = hook("hS")
for i in range(len(items) + D):
    if i < len(items):
        bs, off, b = items[i]
        for r in range(2):
            e(f"ds_read_b64_tr_b16 {ar(AB+4*(i&7)+2*r, 2)}, v{bs} offset:{off+896*4*r}", tag=f"a{i}")
    k = i - D
    if k >= 0:
        if k % 2 == 0:
            A.wait_lg(f"a{k+1}")
        bs, off, b = items[k]
        c = vr(CS + 4 * b) if b in cs_seen else "0"
        cs_seen.add(b)
        if k % 4 == 1 and hS: run(hS.pop(0))
        e(f"v_mfma_f32_16x16x32_bf16 {vr(CS+4*b)}, {vr(ASEL if b < 3 else ONES)}, {ar(AB+4*(k&7))}, {c}")
HD = ACC + 48
AP = 12
BH = 22
BP = 120
S0 = TMP


def w3_addr(ks, b, r):
    j, q = ks >> 2, ks & 3
    hi = j >= 4
    off = 896 * (16 * (j - 4 * hi) + q + 4 * r)
    if b < 3:
        return TRB + hi, off + 256 * b
    return TRB + 2 + hi, off


items = [(ks, b) for ks in range(32) for b in range(2)]
NA = 64
for p in range(17):
    if p < 16:
        items += [(2 * p, 2), (2 * p + 1, 2)]
    if p > 0:
        items += [(2 * p - 2, 3)]
nrd = [0]


def rd3(upto):
    while nrd[0] <= upto and nrd[0] < len(items):
        i = nrd[0]
        ks, b = items[i]
        for r in range(2):
            bs, off = w3_addr(ks, b, r)
            e(f"ds_read_b64_tr_b16 {ar(AB+4*(i&7)+2*r, 2)}, v{bs} offset:{off}", tag=f"a{i}")
        nrd[0] += 1


def cs_exchange():
    for b in range(4):
        e(f"v_mov_b32 v{S0+b}, v{CS+4*b}")
    e(f"ds_write_b128 v126, {vr(S0)}", tag="csw")
    A.wait_lg0()
    e("s_barrier")
    for i in range(4):
        e(f"ds_read_b128 {vr(CS+4*i)}, v127 offset:{1024*i}", tag="cs")
    rd3(5)


cs_exchange()


def cs_finish():
    A.wait_lg("cs")
    for b in range(0, 4, 2):
        e(f"v_pk_add_f32 {vr(CS+b, 2)}, {vr(CS+b, 2)}, {vr(CS+4+b, 2)}\nv_pk_add_f32 {vr(CS+8+b, 2)}, {vr(CS+8+b, 2)}, {vr(CS+12+b, 2)}")
    for b in range(0, 4, 2):
        e(f"v_pk_add_f32 {vr(CS+b, 2)}, {vr(CS+b, 2)}, {vr(CS+8+b, 2)}")
    for b in range(4):
        e(f"v_cvt_pk_bf16_f32 v{AP+2*b}, v{CS+b}, v{CS+b}")
        e(f"v_and_b32 v{S0}, 0xffff0000, v{AP+2*b}")
        e(f"v_sub_f32 v{S0}, v{CS+b}, v{S0}")
        e(f"v_cvt_pk_bf16_f32 v{AP+2*b+1}, v{S0}, v{S0}")
    e(f"v_mov_b32 v{AP+8}, 0\nv_mov_b32 v{AP+9}, 0")
    e(f"v_mov_b32 v{BH}, 0\nv_mov_b32 v{BH+2}, 0\nv_mov_b32 v{BH+3}, 0\nv_mov_b32 v{BP+2}, 0\nv_mov_b32 v{BP+3}, 0")


poll(sT1, 16, 16, cs_finish, (lambda: pf(True)) if OPT["pfp"] & 2 else None)
stamp(1, 3, 4)


def y_issue(ks):
    e(f"buffer_load_dwordx4 {vr(BF+4*ks)}, {vL16}, {SWS}, s{YT[ks>>2]} offen offset:{1024*(ks&3)}{fl('ld')}", tag=f"y{ks}")


def st_issue(jj):
    e(f"buffer_load_dwordx2 {vr(S0+2*jj, 2)}, v48, {SWS}, {sT4} offen offset:{256*jj} sc1", tag="st")


NY0 = OPT["ny0"]
for ks in range(NY0):
    y_issue(ks)
    if ks == 3:
        for jj in range(4): st_issue(jj)
F = {i: [] for i in range(len(items))}
for k, ks in enumerate(range(NY0, 32)):
    F[2 * k].append(lambda ks=ks: y_issue(ks))
with Cap() as st:
    e(f"v_add_f32 v{S0}, v{S0}, v{S0+2}\nv_add_f32 v{S0+1}, v{S0+1}, v{S0+3}\nv_add_f32 v{S0+4}, v{S0+4}, v{S0+6}\nv_add_f32 v{S0+5}, v{S0+5}, v{S0+7}")
    e(f"v_add_f32 v{S0}, v{S0}, v{S0+4}\nv_add_f32 v{S0+1}, v{S0+1}, v{S0+5}")
    e(f"v_mov_b32 v{S0+2}, v{S0}\nv_mov_b32 v{S0+3}, v{S0+1}")
    e(f"v_permlane32_swap_b32 v{S0}, v{S0+2}\nv_permlane32_swap_b32 v{S0+1}, v{S0+3}")
    e(f"v_add_f32 v{S0}, v{S0}, v{S0+2}\nv_add_f32 v{S0+1}, v{S0+1}, v{S0+3}")
    stat_consts(S0, S0 + 1, S0 + 2)
    e(f"v_cvt_pk_bf16_f32 v{S0}, v{cM}, v{cM}\nv_and_b32 v{S0}, 0xffff0000, v{S0}\nv_sub_f32 v{S0}, v{cM}, v{S0}")
    e(f"v_cvt_pk_bf16_f32 v{S0}, v{cM}, v{S0}")
    e(f"v_cmp_gt_u32 vcc, 32, {vL}")
    e(f"v_cndmask_b32 v{BP}, 0, v{S0}, vcc")
    e(f"v_mov_b32 v{BP+1}, v{BP}\nv_mov_b32 v{BH+4}, v{BP}")
    e(f"v_permlane16_swap_b32 v{BH+4}, v{BH}")
    e(f"v_mov_b32 v{BH+5}, v{BH+4}\nv_mov_b32 v{BH+1}, v{BH}")
IS = 64 - (len(st) + 2) // 3
for k, s_ in enumerate(st):
    F[IS + k // 3].append(s_)
wq = []
for c in range(OPT["wa0"] and 2):
    wq += [lambda: w4_read(2), lambda: w4_read(2)]
for k, f in enumerate(wq):
    F[OPT["wa0"] + 2 * k + 1].append(f)
i0 = 2 * (32 - NY0)
if OPT["wa0"]:
    F[i0].append(w4_release)
    for k in range(8):
        F[i0 + k * OPT["wad"]].append(lambda: w4_issue(1))
for k, f in enumerate(hook("hP")):
    F[1 + 4 * k].append(f)
started = set()


def corr(b):
    e(f"v_mfma_f32_32x32x16_bf16 {vr(ACC+16*b, 16)}, {vr(AP+2*b)}, {vr(BP)}, {vr(ACC+16*b, 16)}")


def mf3(i):
    ks, b = items[i]
    if b < 3:
        c = vr(ACC + 16 * b, 16) if b in started else "0"
        e(f"v_mfma_f32_32x32x16_bf16 {vr(ACC+16*b, 16)}, {ar(AB+4*(i&7))}, {vr(BF+4*ks)}, {c}")
    else:
        for u in range(2):
            c = vr(HD + 4 * u) if b in started else "0"
            e(f"v_mfma_f32_16x16x32_bf16 {vr(HD+4*u)}, {ar(AB+4*(i&7))}, {vr(BF+4*ks+4*u)}, {c}")
    started.add(b)


for i in range(NA):
    ks, b = items[i]
    if b == 0:
        rd3(i + 7)
        A.wait_vm(f"y{ks}")
        A.wait_lg(f"a{i+1}")
    if i == 32:
        stamp(4)
    mf3(i)
    for f in F[i]:
        run(f)
corr(0)
corr(1)
stamp(1, 4)


def h3_store(dsts, blk):
    for c2 in range(2):
        off = 2048 * blk + 1024 * c2
        if off == 4096:
            e(f"s_add_u32 {sHs}, {sHs}, 4096")
        e(f"buffer_store_dwordx4 {vr(dsts+4*c2)}, {vL16}, {SWS}, {sHs} offen offset:{off&4095}{fl('hst')}", tag=f"h{blk}")


def epi_pk(acc, T, dsts, fill, ng=4):
    k = 0
    for g in range(ng):
        for s_ in gelu4pk(acc + 4 * g, T + 4 * (g & 1), [dsts + 2 * g, dsts + 2 * g + 1]):
            e(s_)
            k += 1
            if k % 5 == 0 and fill:
                run(fill.pop(0))


def pub3(tag):
    A.wait_vm(tag)
    publish(sP3, 8)
    e(f"s_add_u32 {sP3}, {sP3}, 512")


fill = []
for c in range(OPT["wg"]):
    fill += [f for f in w4_cycle()] + [None] * 7
epi_pk(ACC, TMP, TMP + 8, fill)
h3_store(TMP + 8, 0)
epi_pk(ACC + 16, TMP, X1P, fill)
h3_store(X1P, 1)
for f in fill:
    run(f)
stamp(4, 5)
fill = []
for c in range(OPT["wb"]):
    fill += w4_cycle() + [None] * OPT["wbg"]
zs = [0]


def z_issue(n=1):
    for _ in range(n):
        z = zs[0]
        if z >= 56:
            return
        mm, ksl = P4K[z >> 1]
        blk, c2 = KSL[ksl]
        tb = z & 1
        so, off = f"s{HA[mm]}", 2048 * blk + 1024 * c2
        if blk == 3:
            so, off = sT5, 0
            if tb == 0:
                e(f"s_add_u32 {sT5}, s{HA[mm]}, s{DH[mm&1]}")
        elif blk == 2:
            so, off = sT5, 1024 * c2
            if tb == 0 and c2 == 0:
                e(f"s_add_u32 {sT5}, s{HA[mm]}, 4096")
        e(f"buffer_load_dwordx4 {vr(BF+4*(z&31))}, {vH[tb]}, {SWS}, {so} offen offset:{off}{fl('ld')}", tag=f"z{z}")
        zs[0] += 1


def phb(lo, hi, zz):
    for i in range(lo, hi):
        ks, b = items[i]
        rd3(i + 6)
        A.wait_lg(f"a{i}")
        mf3(i)
        if b == 2 and ks % 2 == 0 and ks > 0 or i == len(items) - 2:
            k2 = ks - 2 if i != len(items) - 2 else 30
            if i == len(items) - 2:
                corr(2)
            for d in range(4):
                e(f"v_permlane16_swap_b32 v{BF+4*k2+d}, v{BF+4*k2+4+d}")
        if i == NA + 3 * OPT["pubb"]:
            pub3("h1")
        elif i > NA + 2:
            for _ in range(OPT["wbn"]):
                if fill:
                    run(fill.pop(0))
        if zz and zs[0] < OPT["zla"]:
            z_issue(1)


PA = NA + OPT["pola"]
phb(NA, PA, 0)
poll(sQ3, 8, 8, lambda: phb(PA, PA + 4, 0))
stamp(5)
e(f"s_add_u32 {sQ3}, {sQ3}, 512")
phb(PA + 4, len(items), 1)
e(f"v_mfma_f32_16x16x32_bf16 {vr(HD)}, {vr(AP+4)}, {vr(BH+2)}, {vr(HD)}")
e(f"v_mfma_f32_16x16x32_bf16 {vr(HD+4)}, {vr(AP+6)}, {vr(BH)}, {vr(HD+4)}")
for f in fill:
    run(f)
stamp(1, 4, 5)
sys.stderr.write(f"w4 state at P3 end {w4s}\n")
def tail1():
    e(f"v_and_b32 v60, 31, {vL}\nv_bfe_u32 v61, {vL}, 1, 3\nv_lshrrev_b32 v62, 5, {vL}")
    e(f"s_and_b32 {sT5}, {sW}, 1\ns_lshl_b32 {sT5}, {sT5}, 2\nv_xor_b32 v61, {sT5}, v61")
    e(f"s_lshr_b32 {sT5}, {sW}, 1\ns_lshl_b32 {sT5}, {sT5}, 12\ns_add_u32 {sT5}, {sT5}, {LX1R}")
    e(f"v_lshl_add_u32 v60, v60, 7, {sT5}\nv_lshl_add_u32 v60, v61, 4, v60\nv_lshl_add_u32 v60, v62, 3, v60")
    for g in range(1, 4):
        e(f"v_xor_b32 v{60+g}, {16*g}, v60")
    for g in range(4):
        e(f"ds_read_b64 {vr(ACC+16+2*g, 2)}, v{60+g}", tag="xr")
    epi_pk(ACC + 32, TMP, TMP + 8, [])
    h3_store(TMP + 8, 2)


z_issue(OPT["zla"] - zs[0])
tail1()
for d in range(4):
    e(f"v_permlane16_swap_b32 v{HD+d}, v{HD+4+d}")
epi_pk(HD, TMP, X1P, [], 2)
e(f"buffer_store_dwordx4 {vr(X1P)}, {vL16}, {SWS}, {sHh} offen{fl('hst')}", tag="h3")
A.wait_lg("xr")
for g in range(4):
    for d in range(2):
        e(f"v_lshlrev_b32 v{ACC+4*g+2*d}, 16, v{ACC+16+2*g+d}")
        e(f"v_and_b32 v{ACC+4*g+2*d+1}, 0xffff0000, v{ACC+16+2*g+d}")
stamp(1, 4, 5)
started = {0}
F = {i: [] for i in range(112)}
F[OPT["pub2"]].append(lambda: (pub3("h3"), stamp(5)))

fill = []
while len(fill) // 8 * 4 + w4s["con"] < 56:
    fill += w4_cycle() + [None]
for k, f in enumerate(fill):
    F[1 + k].append(f)
with Cap() as st:
    e("s_barrier")
    e(f"s_lshl_b32 {sT4}, {sW}, 14\nv_add_u32 v40, {sT4}, {vL16}")
    for i in range(1, 4):
        e(f"v_xor_b32 v{40+i}, {16384*i}, v40")
    e(f"s_lshr_b32 {sT1}, {sW}, 1\ns_lshl_b32 {sT1}, {sT1}, 15\ns_and_b32 {sT4}, {sW}, 1\ns_lshl_b32 {sT4}, {sT4}, 6\ns_add_u32 {sT1}, {sT1}, {sT4}")
    if OPT["otr"]:
        e(f"v_and_b32 v44, 31, {vL}\nv_lshrrev_b32 v45, 5, {vL}\nv_bfe_u32 v46, {vL}, 1, 2\nv_lshlrev_b32 v44, 6, v44")
        e(f"v_lshl_add_u32 v44, v45, 3, v44\nv_lshl_add_u32 v44, v46, 4, v44\ns_lshl_b32 {sT4}, {sW}, 14\nv_add_u32 v32, {sT4}, v44")
        for g in range(1, 4):
            e(f"v_xor_b32 v{32+g}, {16*g}, v32")
        e(f"v_bfe_u32 v45, {vL}, 3, 2\nv_lshlrev_b32 v45, 4, v45\nv_xor_b32 v36, v45, v40")
        e(f"v_lshrrev_b32 v44, 2, {vL}\nv_and_b32 v45, 3, {vL}\nv_lshlrev_b32 v44, 10, v44\nv_lshl_add_u32 v44, v45, 4, v44")
        e(f"s_add_u32 {sT4}, {sT1}, 16384")
    else:
        e(f"v_and_b32 v44, 31, {vL}\nv_lshrrev_b32 v45, 5, {vL}\nv_lshlrev_b32 v44, 10, v44\nv_lshl_add_u32 v44, v45, 4, v44")
for k, s_ in enumerate(st):
    F[92 + k // 2].append(s_)


def p4(lo, hi):
    for i in range(lo, hi):
        z, b = i >> 1, i & 1
        mm, ksl = P4K[z >> 1]
        if b == 0:
            A.wait_vm(f"z{z}")
            if z % 4 == 0:
                assert w4s["con"] >= z + 4, (z, w4s)
                A.wait_lg(f"w4c{z+3}")
        sl = 2 * (z & 1) + b
        c = vr(ACC + 16 * sl, 16) if sl in started else "0"
        started.add(sl)
        e(f"v_mfma_f32_32x32x16_bf16 {vr(ACC+16*sl, 16)}, {ar(8*(7*mm+ksl)+4*b)}, {vr(BF+4*(z&31))}, {c}")
        if b == 1 and zs[0] < lim[0] and zs[0] - z <= OPT["zla"]:
            z_issue(1)
        for f in F[i]:
            run(f)


lim = [32]
P2_ = OPT["pol2"]
p4(0, P2_)
stamp(5)
poll(sQ3, 8, 8, lambda: p4(P2_, P2_ + 8))
stamp(4, 5)
lim = [56]
z_issue(min(4, OPT["zla"] - (zs[0] - (P2_ + 8) // 2)))
p4(P2_ + 8, 112)
stamp(1, 5)
for i in range(1, 4):
    for g in range(4):
        e(f"ds_write_b128 v{40+i}, {vr(ACC+16*i+4*g)} offset:{RED+4096*i+1024*g}", tag="rw")
A.wait_lg0()
e("s_barrier")
for g in range(4):
    for i in range(1, 4):
        e(f"ds_read_b128 {vr(BF+16*i+4*g)}, v40 offset:{RED+4096*i+1024*g}", tag=f"rr{g}")
for g in range(4):
    A.wait_lg(f"rr{g}")
    r, a = BF + 4 * g, ACC + 4 * g
    for h in (0, 2):
        e(f"v_pk_add_f32 {vr(a+h, 2)}, {vr(a+h, 2)}, {vr(r+16+h, 2)}")
        e(f"v_pk_add_f32 {vr(r+32+h, 2)}, {vr(r+32+h, 2)}, {vr(r+48+h, 2)}")
    for h in (0, 2):
        e(f"v_pk_add_f32 {vr(a+h, 2)}, {vr(a+h, 2)}, {vr(r+32+h, 2)}")
    for d in range(2):
        e(f"v_cvt_pk_bf16_f32 v{TMP+8+2*g+d}, v{a+2*d}, v{a+2*d+1}")
    if OPT["otr"]:
        e(f"ds_write_b64 v{32+g}, {vr(TMP+8+2*g, 2)} offset:{RED}", tag="ow")
    elif g % 2 == 1:
        o = TMP + 8 + 4 * (g >> 1)
        e(f"v_permlane32_swap_b32 v{o}, v{o+2}\nv_permlane32_swap_b32 v{o+1}, v{o+3}")
        e(f"buffer_store_dwordx4 {vr(o)}, v44, {SOUT}, {sT1} offen offset:{32*(g>>1)}{fl('ost')}", tag="o")
if OPT["otr"]:
    for i2 in range(2):
        e(f"ds_read_b128 {vr(BF+4*i2)}, v36 offset:{RED+1024*i2}", tag=f"or{i2}")
    for i2 in range(2):
        A.wait_lg(f"or{i2}")
        e(f"buffer_store_dwordx4 {vr(BF+4*i2)}, v44, {SOUT}, {(sT1, sT4)[i2]} offen{fl('ost')}", tag="o")
if PROF:
    stamp(5)
    A.wait_vm0()
    stamp(1, 5)
    A.wait_lg0()
    e("s_load_dwordx2 s[36:37], s[0:1], 56")
    A.wait_lg0()
    e(f"s_mov_b32 {sT1}, {PROF_OFF}")
    srd(28, 36, add=sT1, size=1 << 20)
    e(f"s_lshl_b32 {sT1}, s2, 2\ns_add_u32 {sT1}, {sT1}, {sW}\ns_lshl_b32 {sT1}, {sT1}, 6")
    e("v_mov_b32 v2, 0")
    for i in range(nstamp[0]):
        e(f"v_mov_b32 v3, s{82+2*i}")
        e(f"buffer_store_dword v3, v2, {SWS}, {sT1} offen offset:{4*i}")
    e(f"v_mov_b32 v3, {sMode}")
    e(f"buffer_store_dword v3, v2, {SWS}, {sT1} offen offset:60")
e("L_end:")
e("s_endpgm")
A.raw("L_codeend:")
A.raw('.section .rodata,"a"\n.p2align 6\n.amdhsa_kernel standalone__mixer_s_mlp__prompt_kernel')
A.raw("""  .amdhsa_next_free_vgpr 512
  .amdhsa_next_free_sgpr 102
  .amdhsa_accum_offset 256
  .amdhsa_group_segment_fixed_size 0
  .amdhsa_kernarg_size 64
  .amdhsa_user_sgpr_count 2
  .amdhsa_user_sgpr_kernarg_segment_ptr 1
  .amdhsa_system_sgpr_workgroup_id_x 1
.end_amdhsa_kernel""")
sys.stdout.write(A.text())
sys.stderr.write(f"lines {len(A.lines)} nops {A.nnop} stamps {nstamp[0]}\n")
```

```python
import sys, math, struct
sys.path.insert(0, "tools")
from asmlib import Asm

OPT = dict(dbg=0, pfl=28, rot3=0, pfp=0, pfw=1, pfa=40, pfd=6, hG="", hS="", hP="", pola=30, wbn=2, wbg=1, otr=1, hA="nx8_w3x12", hB="q", hC="w3x16", hD="q_q", hE="q", hF="", wa0=22, wad=1, wg=3, wb=7, pubb=5, zla=12, pub2=20, pol2=40, w4p=0, w2a=17, w2b=25, w2d=1, pf3=1, pf4="-1", pf4a=0, pf4b=0, ld="sc1", ng0=12, p2n=7, nb1=7, na1=4, fr0=24, frd=5, tlb=1, hel=7, held=15, ny0=12, na0=10, p2s=4, p2d=2, nb0=0, w4o="la", w4s=50, w4d=3, prof=0, gst="sc1", xst="sc1", hst="sc1", ost="sc1", forceslow=0)
for a in sys.argv[1:]:
    k, v = a.split("=")
    OPT[k] = int(v) if v.lstrip("-").isdigit() else v
PROF = OPT["prof"]


def fl(name):
    v = OPT[name]
    return "" if v == "none" else " " + v.replace("_", " ")


def f32(x):
    return "0x%08x" % struct.unpack("<I", struct.pack("<f", x))[0]


G_OFF = 0
X1_OFF = 128 << 10
H3_OFF = 256 << 10
STAT_OFF = 704 << 10
FLAG_OFF = 720 << 10
HEL_OFF = 12288
PROF_OFF = 16 << 20
WS_SIZE = 1 << 20
LW1 = 0
LW2 = 98304
LST = 131072
LXR = 86016
LX1R = 114688
LMISC = 122880
LCX = 94208
LDS_TOTAL = 163840
RED = 0
sW = "s3"
SX, SW1, SW2, SW3, SW4, SOUT, SWS, SDBG = ("s[4:7]", "s[8:11]", "s[12:15]", "s[16:19]", "s[20:23]", "s[24:27]",
                                           "s[28:31]", "s[32:35]")
sG, sM, sS, sJ, sT0, sMode, sHello, sRot1 = "s52", "s53", "s54", "s55", "s56", "s57", "s58", "s59"
sRot3 = "s52"
sKW = "s56"
KF = [73, 74, 78, 79]
DH = [80, 81]
sFB = "s[60:61]"
sDB = "s[62:63]"
sStg = "s64"
sT1, sT2, sT3, sT4, sT5, sT6 = "s65", "s66", "s67", "s68", "s69", "s70"
sRep, sCnt = "s71", "s72"
sH0 = "s58"
sPar = "s75"
sW3o, sW3m = "s76", "s77"
sW4o = "s76"
vL, vL16, vRep, vW4d, vOne, vMisc = "v0", "v1", "v6", "v7", "v10", "v11"
TRB = 2
W4T = 8
W3D = 12
ONES = 20
ASEL = 24
cA, cB, cI, cM = 28, 29, 30, 31
X1P = 32
TMP = 40
ACC = 64
BF = 128
AB = 224

K1 = -2.0 * math.sqrt(2.0 / math.pi) * math.log2(math.e)
K3 = 0.044715

A = Asm()
e = A.e
nlab = [0]
nstamp = [0]


def lab(p="L"):
    nlab[0] += 1
    return f"{p}_{nlab[0]}"


def stamp(*sets):
    if not sets:
        sets = (1,)
    if PROF in sets:
        i = nstamp[0]
        assert i < 10
        e(f"s_memtime s[{82+2*i}:{83+2*i}]")
        nstamp[0] += 1


def vr(b, n=4):
    return f"v[{b}:{b+n-1}]"


def ar(b, n=4):
    return f"a[{b}:{b+n-1}]"


def srd(dst, ptr_lo, add=None, size=0x7fffffff):
    if add is None:
        e(f"s_mov_b32 s{dst}, s{ptr_lo}\ns_mov_b32 s{dst+1}, s{ptr_lo+1}")
    else:
        e(f"s_add_u32 s{dst}, s{ptr_lo}, {add}\ns_addc_u32 s{dst+1}, s{ptr_lo+1}, 0")
    e(f"s_mov_b32 s{dst+2}, {size}\ns_mov_b32 s{dst+3}, 0x20000")


def poll(soff, ndw, nrep, between=None, inloop=None):
    L, Lw, Ld = lab("Lp"), lab("Lw"), lab("Ld")

    def issue(nxt):
        Lg = lab("Lg")
        e(f"s_cmp_ge_u32 {sRep}, {nrep*64}\ns_cbranch_scc1 {Lg}")
        e(f"s_add_u32 {sT6}, {soff}, {sRep}")
        e(f"s_load_dwordx{ndw} s[36:{36+ndw-1}], {sFB}, {sT6}")
        e(f"s_add_u32 {sRep}, {sRep}, 64\ns_branch {nxt}")
        e(f"{Lg}:")
        e(f"s_load_dwordx{ndw} s[36:{36+ndw-1}], {sFB}, {soff} glc")

    e(f"s_mov_b32 {sRep}, {sMode}\ns_mov_b32 {sCnt}, 0")
    if between is not None:
        Lb = lab("Lb")
        issue(Lb)
        e(f"{Lb}:")
        between()
        e(f"s_branch {Lw}")
    e(f"{L}:")
    e(f"s_add_u32 {sCnt}, {sCnt}, 1\ns_cmp_gt_u32 {sCnt}, 30000\ns_cbranch_scc1 L_end")
    if inloop:
        inloop()
    issue(Lw)
    e(f"{Lw}:")
    A.wait_lg0()
    n = ndw
    while n > 2:
        for i in range(0, n // 2, 2):
            e(f"s_and_b64 s[{36+i}:{37+i}], s[{36+i}:{37+i}], s[{36+n//2+i}:{37+n//2+i}]")
        n //= 2
    e("s_and_b32 s36, s36, s37")
    e(f"s_cbranch_scc0 {L}")


def publish(soff, nrep):
    Ls, Ld = lab("Ls"), lab("Ld")
    e(f"s_cmp_lg_u32 {sMode}, 0\ns_cbranch_scc1 {Ls}")
    e(f"s_mov_b64 exec, {(1 << nrep) - 1}")
    e(f"buffer_store_dword {vOne}, {vRep}, {SWS}, {soff} offen", tag="flag")
    e(f"s_branch {Ld}")
    e(f"{Ls}:")
    e("s_mov_b64 exec, 1")
    e(f"buffer_store_dword {vOne}, {vRep}, {SWS}, {soff} offen sc1", tag="flag")
    A.untrack()
    e(f"{Ld}:")
    e("s_mov_b64 exec, -1")


def stat_consts(vS, vQ, t):
    e(f"v_mul_f32 v{cM}, {f32(-1.0/512)}, v{vS}")
    e(f"v_mul_f32 v{t}, v{cM}, v{cM}")
    e(f"v_mov_b32 v{t+1}, {f32(1.0/512)}")
    e(f"v_fma_f32 v{t}, v{vQ}, v{t+1}, -v{t}")
    e(f"v_max_f32 v{t}, 0, v{t}")
    e(f"v_add_f32 v{t}, {f32(1e-5)}, v{t}")
    e(f"v_rsq_f32 v{t+1}, v{t}")
    e(f"v_sqrt_f32 v{cI}, v{t}")
    e(f"v_mul_f32 v{cA}, {f32(K1)}, v{t+1}")
    e(f"v_mul_f32 v{t}, v{t+1}, v{t+1}")
    e(f"v_mul_f32 v{t}, {f32(K3)}, v{t}")
    e(f"v_mul_f32 v{cB}, v{cA}, v{t}")


def gelu4(a, T, dst):
    o = []
    for i in range(4): o.append(f"v_mul_f32_e64 v{T+i}, v{a[i]}, v{a[i]}")
    for i in range(4): o.append(f"v_fma_f32 v{T+i}, v{T+i}, v{cB}, v{cA}")
    for i in range(4): o.append(f"v_mul_f32_e64 v{T+i}, v{a[i]}, v{T+i}")
    for i in range(4): o.append(f"v_exp_f32_e64 v{T+i}, v{T+i}")
    for i in range(4): o.append(f"v_fma_f32 v{T+i}, v{T+i}, v{cI}, v{cI}")
    for i in range(4): o.append(f"v_rcp_f32_e64 v{T+i}, v{T+i}")
    for i in range(4): o.append(f"v_mul_f32_e64 v{T+i}, v{a[i]}, v{T+i}")
    o.append(f"v_cvt_pk_bf16_f32 v{dst[0]}, v{T}, v{T+1}")
    o.append(f"v_cvt_pk_bf16_f32 v{dst[1]}, v{T+2}, v{T+3}")
    return o


def gelu4pk(a, T, dst):
    o = []
    for i in (0, 2): o.append(f"v_pk_mul_f32 v[{T+i}:{T+i+1}], v[{a+i}:{a+i+1}], v[{a+i}:{a+i+1}]")
    for i in (0, 2): o.append(f"v_pk_fma_f32 v[{T+i}:{T+i+1}], v[{T+i}:{T+i+1}], v[{cA}:{cB}], v[{cA}:{cB}] op_sel:[0,1,0] op_sel_hi:[1,1,0]")
    for i in (0, 2): o.append(f"v_pk_mul_f32 v[{T+i}:{T+i+1}], v[{a+i}:{a+i+1}], v[{T+i}:{T+i+1}]")
    for i in range(4): o.append(f"v_exp_f32_e64 v{T+i}, v{T+i}")
    for i in (0, 2): o.append(f"v_pk_fma_f32 v[{T+i}:{T+i+1}], v[{T+i}:{T+i+1}], v[{cI}:{cM}], v[{cI}:{cM}] op_sel:[0,0,0] op_sel_hi:[1,0,0]")
    for i in range(4): o.append(f"v_rcp_f32_e64 v{T+i}, v{T+i}")
    for i in (0, 2): o.append(f"v_pk_mul_f32 v[{T+i}:{T+i+1}], v[{a+i}:{a+i+1}], v[{T+i}:{T+i+1}]")
    o.append(f"v_cvt_pk_bf16_f32 v{dst[0]}, v{T}, v{T+1}")
    o.append(f"v_cvt_pk_bf16_f32 v{dst[1]}, v{T+2}, v{T+3}")
    return o


KSL = [(0, 0), (0, 1), (1, 0), (1, 1), (3, 0), (2, 0), (2, 1)]
W4G = []
for mm in range(4):
    W4G += [[(mm, 0), (mm, 1)], [(mm, 2), (mm, 3)]]
for mm in (0, 2):
    W4G += [[(mm, 5), (mm, 6)], [(mm + 1, 5), (mm + 1, 6)], [(mm, 4), (mm + 1, 4)]]
P4K = [k for g in W4G for k in g]
W4V = ["v7", "v57", "v58", "v59"]
w4s = dict(iss=0, con=0, free=0)


def w4_issue(n=1):
    for _ in range(n):
        i = w4s["iss"]
        if i >= 56:
            return
        g, n4 = i >> 2, i & 3
        assert 4 * (g - 1) <= w4s["free"], ("w4 ring overrun", i, w4s)
        mm, ksl = W4G[g][n4 >> 1]
        blk, c2 = KSL[ksl]
        set_m0(sStg, 4096 * (g & 1))
        if blk == 3:
            if n4 & 1 == 0:
                e(f"s_add_u32 {sW4o}, s{KF[mm]}, s{DH[mm&1]}")
                e(f"s_lshl4_add_u32 {sW4o}, {sW4o}, {(3072 - 8192*n4) & 0xffffffff}")
        elif n4 == 0:
            e(f"s_lshl4_add_u32 {sW4o}, s{KF[mm]}, {3072 + 32768*blk}")
        e(f"buffer_load_dwordx4 {W4V[n4]}, {SW4}, {sW4o} offen offset:{1024*n4} lds", tag=f"w4_{i}")
        w4s["iss"] += 1


def w4_read(n=4, wait=True):
    n = min(n, w4s["iss"] - w4s["con"])
    if n <= 0:
        return
    A.wait_vm(f"w4_{min(w4s['iss'], (w4s['con']+n+3)//4*4)-1}")
    for _ in range(n):
        i = w4s["con"]
        mm, ksl = W4G[i >> 2][(i >> 1) & 1]
        k, rd = 7 * mm + ksl, i & 1
        for b in range(2):
            e(f"ds_read_b64_tr_b16 {ar(8*k+4*b+2*rd, 2)}, v{W4T+b} offset:{1024*(i&7)}", tag=f"w4c{i}")
        w4s["con"] += 1


def w4_release():
    if w4s["free"] < w4s["con"]:
        A.wait_lg(f"w4c{w4s['con']-1}")
        w4s["free"] = w4s["con"]


def w4_cycle():
    return [lambda: w4_read(2), lambda: w4_read(2), None, lambda: (w4_release(), w4_issue(1)), lambda: w4_issue(1),
            lambda: w4_issue(1), lambda: w4_issue(1)]


m0c = [None]


def set_m0(sreg, lit):
    if m0c[0] != (sreg, lit):
        e(f"s_add_u32 m0, {sreg}, {lit}")
        m0c[0] = (sreg, lit)


W3B = [4, 5, 6, 7]
w3s = [0]


def w3_pump(cnt=1):
    for _ in range(cnt):
        i = w3s[0]
        if i >= 28:
            return
        period, n = i // 7, i % 7
        set_m0(sW3m, period * 4 * 7168 + (4096 if n >= 4 else 0))
        e(f"buffer_load_dwordx4 v{W3D+n}, {SW3}, s{W3B[period]} offen offset:{1024*(n&3)} lds", tag="w3")
        w3s[0] += 1


def tr_bases12(lbase, rot, t=TMP):
    e(f"v_lshrrev_b32 v{t}, 4, {vL}")
    e(f"v_bfe_u32 v{t+1}, {vL}, 2, 2")
    e(f"v_and_b32 v{t+2}, 3, {vL}")
    e(f"v_lshlrev_b32 v{t+3}, 9, v{t}")
    e(f"v_lshl_add_u32 v{t+3}, v{t+1}, 7, v{t+3}")
    e(f"v_lshl_add_u32 v{t+3}, v{t+2}, 3, v{t+3}")
    if lbase:
        e(f"v_add_u32 v{t+3}, {lbase}, v{t+3}")
    e(f"v_and_b32 v{t}, 1, v{t}")
    e(f"v_lshrrev_b32 v{t+1}, 1, v{t+1}")
    e(f"v_lshl_add_u32 v{t}, v{t}, 1, v{t+1}")
    if rot:
        e(f"v_xor_b32 v{t}, {sW}, v{t}")
    for i in range(4):
        e(f"v_xor_b32 v{t+1}, {i}, v{t}")
        e(f"v_lshl_add_u32 v{TRB+i}, v{t+1}, 5, v{t+3}")


def run(f):
    if f is None:
        return
    if callable(f):
        f()
    else:
        e(f)


class Cap:
    def __enter__(self):
        global e
        self.o = []
        self.old = e
        e = lambda s_, tag=None: self.o.extend([l for l in s_.split("\n") if l.strip()])
        return self.o

    def __exit__(self, *a):
        global e
        e = self.old


A.raw(f"; @launch grid=(256,1,1) block=(256,1,1) lds={LDS_TOTAL}")
A.raw('.amdgcn_target "amdgcn-amd-amdhsa--gfx950"')
A.raw(".text\n.globl standalone__mixer_s_mlp__prompt_kernel\n.p2align 8\n.type standalone__mixer_s_mlp__prompt_kernel,@function")
A.raw("standalone__mixer_s_mlp__prompt_kernel:")
e("s_cmp_ge_u32 s2, 256\ns_cbranch_scc1 L_end")
e("s_load_dwordx16 s[36:51], s[0:1], 0")
stamp(1, 2, 3, 4)
e("s_getpc_b64 s[68:69]")
A.raw("L_pc:")
VX, VW1, VW2 = 192, 196, 200
vXr = "v63"
XR = list(range(73, 81))
WK = [81, 60, 61, 64]
e(f"v_lshrrev_b32 v2, 6, v0")
e(f"v_and_b32 {vL}, 63, v0")
e(f"v_readfirstlane_b32 {sW}, v2")
e(f"s_and_b32 {sT1}, s2, 7\ns_lshr_b32 {sT2}, s2, 3")
e(f"s_lshr_b32 {sT3}, {sT2}, 4\ns_lshl_b32 {sG}, {sT1}, 1\ns_add_u32 {sG}, {sG}, {sT3}")
e(f"s_and_b32 {sM}, {sT2}, 15\ns_lshr_b32 {sS}, {sM}, 3\ns_and_b32 {sJ}, {sM}, 7")
e(f"s_lshr_b32 {sRep}, {sT2}, 3")
e(f"s_lshl_b32 {sRot1}, {sRep}, 1\ns_add_u32 {sRot1}, {sRot1}, {sJ}")
e(f"s_lshl_b32 {sT0}, {sG}, 7\ns_lshl_b32 {sT1}, {sS}, 6\ns_add_u32 {sT0}, {sT0}, {sT1}")
e(f"s_lshr_b32 {sT1}, {sJ}, 1\ns_lshr_b32 {sT2}, {sT1}, 1\ns_add_u32 {sT2}, {sT2}, 1")
e(f"s_and_b32 {sT1}, {sT1}, 1\ns_cmp_eq_u32 {sT1}, 0\ns_cselect_b32 {sT3}, -1, 1\ns_mul_i32 {sT2}, {sT2}, {sT3}")
e(f"s_lshl_b32 {sT1}, {sW}, 4\ns_add_u32 {sCnt}, {sT1}, {sT0}\ns_add_u32 {sT2}, {sT2}, {sCnt}")
e(f"v_lshrrev_b32 v40, 2, {vL}\nv_add_u32 v40, {sT2}, v40\nv_and_b32 v40, 0xfffff, v40\nv_lshlrev_b32 v40, 10, v40")
e(f"v_lshrrev_b32 v46, 5, {vL}\nv_and_b32 v41, 3, {vL}\nv_lshlrev_b32 v42, 1, v46\nv_xor_b32 v41, v41, v42\nv_lshl_add_u32 v40, v41, 4, v40")
for n in range(4):
    e(f"v_add_u32 v{VX+n}, {64*(n&1) - 1024*n + 3072}, v40")
e(f"v_bfe_u32 v47, {vL}, 3, 2\nv_bfe_u32 v48, {vL}, 1, 2\nv_and_b32 v49, 1, {vL}")
e(f"v_lshrrev_b32 v50, 1, v47\nv_add_u32 v50, v42, v50\nv_xor_b32 v50, v48, v50")
e(f"v_lshlrev_b32 v50, 5, v50\nv_lshl_add_u32 v50, v49, 4, v50\nv_lshl_add_u32 v50, v47, 10, v50")
e(f"v_lshl_add_u32 v{VW1}, v46, 13, v50\nv_lshl_add_u32 v{VW2}, v46, 12, v50")
for n in range(1, 4):
    e(f"v_add_u32 v{VW1+n}, {[0, 15, 2, 17][n]*1024}, v{VW1}")
e(f"v_lshlrev_b32 {vL16}, 4, {vL}")
e(f"s_lshl_b32 {sT1}, {sJ}, 7")
e(f"s_lshl_b32 {sMode}, {sW}, 12")
e(f"s_lshl_b32 {sT3}, {sT0}, 10\ns_add_u32 {sT3}, {sT3}, {sT1}")
e(f"s_lshl1_add_u32 {sKW}, {sRot1}, {sW}")
for pp in range(8):
    e(f"s_add_u32 s{XR[pp]}, {sRot1}, {pp}\ns_and_b32 s{XR[pp]}, s{XR[pp]}, 7\ns_lshl_b32 s{XR[pp]}, s{XR[pp]}, 7")
for c in range(4):
    e(f"s_add_u32 s{WK[c]}, {sKW}, {4*c}\ns_and_b32 s{WK[c]}, s{WK[c]}, 15\ns_lshl_b32 s{WK[c]}, s{WK[c]}, 15")
for i in range(4): e(f"v_mov_b32 v{52+i}, 0")
e(f"s_and_b32 {sT2}, {sM}, 3\ns_or_b32 {sT2}, {sT2}, {sW}")
e(f"s_lshl_b32 {sHello}, {sM}, 11\ns_add_u32 {sHello}, {sHello}, {FLAG_OFF}")
e(f"s_and_b32 {sT6}, {sJ}, 3\ns_lshl_b32 {sT6}, {sT6}, 2\ns_add_u32 {sT6}, {sT6}, {sW}\ns_lshl_b32 {sT6}, {sT6}, 11")
e(f"v_lshlrev_b32 v46, 7, {vL}\nv_add_u32 v46, {sT6}, v46\nv_min_u32 v46, L_codeend-L_pc-4, v46")
e(f"s_lshl_b32 {sT6}, {sG}, 20")
e(f"s_mov_b32 s6, {2048*1024 + 3072}\ns_mov_b32 s7, 0x20000")
A.wait_lg0()
stamp(2)
e(f"s_sub_u32 s4, s36, 3072\ns_subb_u32 s5, s37, 0")
srd(28, 50, add=sT6, size=WS_SIZE)
Lr = lab("Lr")
e(f"s_cmp_lg_u32 {sT2}, 0\ns_cbranch_scc1 {Lr}")
e(f"s_add_u32 s32, {sHello}, 4096")
for k in range(8):
    e(f"buffer_store_dwordx4 v[52:55], {vL16}, {SWS}, {sHello if k < 4 else 's32'} offen offset:{1024*(k&3)} sc1")
    A.untrack()
e(f"{Lr}:")


def x_issue(p):
    set_m0(sMode, LW2 + 16384 * (p >> 2))
    e(f"buffer_load_dwordx4 v{VX+(p&3)}, {SX}, s{XR[p>>1]} offen offset:{1024*(p&3)} lds", tag=f"x{p}")


def w12_issue(which, c, n):
    set_m0(sMode, (LW1 if which == 1 else LW2) + 16384 * c)
    e(f"buffer_load_dwordx4 v{(VW1 if which == 1 else VW2)+n}, {SW1 if which == 1 else SW2}, s{WK[c]} offen offset:{1024*n} lds",
      tag=f"w{which}c{c}")


x_issue(0)
x_issue(1)
srd(8, 38, add=sT1, size=512 * 1024 - 896)
for n in range(4): w12_issue(1, 0, n)
x_issue(2)
x_issue(3)
e("s_mov_b64 exec, 0xffff")
e("global_load_dword v255, v46, s[68:69]", tag="pf")
e("s_mov_b64 exec, -1")
stamp(2)
srd(12, 40, add=sT1, size=512 * 1024 - 896)
srd(24, 46, add=sT3, size=64 * 1024 - 896)
for n in range(1, 4):
    e(f"v_add_u32 v{VW2+n}, {7*1024*n}, v{VW2}")
e(f"v_lshlrev_b32 {vRep}, 6, {vL}")
e(f"v_mov_b32 {vOne}, 1")
e(f"s_mul_i32 {sT3}, {sM}, 224")
e(f"s_sub_u32 s16, s42, 3072\ns_subb_u32 s17, s43, 0")
e(f"s_add_u32 s16, s16, {sT3}\ns_addc_u32 s17, s17, 0")
e(f"s_mov_b32 s18, {512*3584 + 3072 - 224*15}\ns_mov_b32 s19, 0x20000")
e(f"s_mul_i32 {sT3}, {sW}, {448*1024}\ns_add_u32 {sT3}, {sT3}, {sT1}")
e(f"s_sub_u32 s20, s44, 3072\ns_subb_u32 s21, s45, 0")
e(f"s_add_u32 s20, s20, {sT3}\ns_addc_u32 s21, s21, 0")
e(f"s_mov_b32 s22, {448*1024 - 896 + 3072}\ns_mov_b32 s23, 0x20000")
e(f"s_lshl_b32 {sT3}, {sG}, 4\ns_add_u32 s62, s48, {sT3}\ns_addc_u32 s63, s49, 0")
e(f"v_lshl_add_u32 v60, {vL}, 2, {sT3}\nv_cmp_gt_u32 vcc, 4, {vL}\nv_cndmask_b32 v60, -1, v60, vcc")
e(f"v_lshlrev_b32 v62, 2, {vL}\nv_add_u32 v62, {FLAG_OFF + HEL_OFF}, v62\nv_cndmask_b32 v62, -1, v62, vcc")
e(f"s_add_u32 {sT3}, {sT3}, {sM}\nv_mov_b32 v19, {sT3}")
e(f"v_lshlrev_b32 v58, 7, {vL}\nv_add_u32 v58, {sHello}, v58")
e(f"s_add_u32 s42, s28, {FLAG_OFF + HEL_OFF}\ns_addc_u32 s43, s29, 0")
e(f"s_add_u32 {sT3}, {sM}, {FLAG_OFF + HEL_OFF}\nv_mov_b32 v57, {sT3}")
e(f"s_getreg_b32 {sHello}, hwreg(HW_REG_XCC_ID)")
e(f"s_and_b32 {sHello}, {sHello}, 15\ns_or_b32 {sHello}, {sHello}, 0x80")
if OPT["forceslow"]:
    e(f"s_cmp_eq_u32 {sM}, 5\ns_cselect_b32 {sHello}, 0x89, {sHello}")
e(f"v_mov_b32 v56, {sHello}")
e(f"s_mul_i32 {sHello}, {sHello}, 0x01010101")
e(f"s_mov_b32 s40, {sW}")
e(f"s_and_b32 {sT4}, {sG}, 1\ns_lshl_b32 {sT4}, {sT4}, 2\ns_add_u32 {sRot3}, {sT4}, {sM}")
if OPT["rot3"] == 0:
    e(f"s_mov_b32 {sRot3}, 0")
e(f"s_add_u32 {sRep}, {sRep}, {sJ}")
for i in range(4): e(f"v_mov_b32 v{ONES+i}, 0x3f803f80")
e(f"v_and_b32 v46, 15, {vL}\nv_lshrrev_b32 v47, 4, {vL}\nv_bfe_u32 v48, {vL}, 3, 1\nv_lshlrev_b32 v48, 1, v48\nv_xor_b32 v47, v47, v48")
e(f"v_lshlrev_b32 v46, 6, v46\nv_lshl_add_u32 v46, v47, 4, v46\ns_add_u32 {sT4}, {sMode}, {LW2}\nv_add_u32 {vXr}, {sT4}, v46")
e(f"v_lshrrev_b32 v46, 3, {vL}\nv_and_b32 v47, 7, {vL}\nv_lshrrev_b32 v48, 4, {vL}\nv_xor_b32 v47, v47, v48")
e(f"v_add_u32 v46, {sCnt}, v46\nv_lshlrev_b32 v46, 10, v46\nv_lshl_add_u32 {vMisc}, v47, 4, v46")
e(f"s_add_u32 {sT1}, {sT1}, 3072")
e(f"s_lshl_b32 {sT4}, {sW}, 13\ns_add_u32 {sT4}, {sT4}, {LST}")
e(f"v_lshrrev_b32 v46, 5, {vL}\nv_bfe_u32 v47, {vL}, 3, 2\nv_bfe_u32 v48, {vL}, 2, 1\nv_and_b32 v49, 3, {vL}")
e(f"v_lshrrev_b32 v50, 1, v47\nv_xor_b32 v50, v48, v50\nv_lshlrev_b32 v50, 6, v50\nv_lshl_add_u32 v50, v49, 4, v50")
e(f"v_lshl_add_u32 v47, v46, 2, v47\nv_lshl_add_u32 {vW4d}, v47, 10, v50")
e(f"v_bfe_u32 v47, {vL}, 2, 2\nv_bfe_u32 v48, {vL}, 4, 1")
e(f"v_lshlrev_b32 v50, 9, v46\nv_lshl_add_u32 v50, v47, 7, v50\nv_lshl_add_u32 v50, v48, 5, v50\nv_lshl_add_u32 v50, v49, 3, v50")
e(f"v_add_u32 v50, {sT4}, v50\nv_lshrrev_b32 v47, 1, v47")
e(f"v_lshl_add_u32 v{W4T}, v47, 6, v50\nv_xor_b32 v47, 1, v47\nv_lshl_add_u32 v{W4T+1}, v47, 6, v50")
e(f"s_and_b32 {sT4}, {sW}, 1\ns_lshl_b32 {sT4}, {sT4}, 6\nv_xor_b32 v{W4T}, {sT4}, v{W4T}\nv_xor_b32 v{W4T+1}, {sT4}, v{W4T+1}")
CX = 104
e(f"s_lshl_b32 {sT4}, {sW}, 10\ns_add_u32 {sT4}, {sT4}, {LCX}\nv_add_u32 v{CX}, {sT4}, {vL16}")
for i in range(1, 4):
    e(f"v_xor_b32 v{CX+i}, {1024*i}, v{CX}")
for g in range(448): assert (g * 1171) >> 16 == g // 56
e(f"s_and_b32 {sT6}, {sM}, 1")
e(f"s_lshl_b32 {sT4}, {sT6}, 5")
e(f"s_cmp_eq_u32 {sT6}, 0\ns_cselect_b32 {sT5}, 192, 0")
for n in range(7):
    e(f"v_add_u32 v46, {64*n}, {vL}")
    e(f"v_mul_u32_u24 v47, 1171, v46\nv_lshrrev_b32 v47, 16, v47")
    e(f"v_mul_u32_u24 v48, 56, v47\nv_sub_u32 v46, v46, v48")
    e(f"v_lshrrev_b32 v48, 4, v46\nv_and_b32 v49, 3, v46\nv_lshlrev_b32 v48, 6, v48\nv_lshl_add_u32 v48, v49, 4, v48")
    e(f"v_add_u32 v48, {sT4}, v48\nv_bfe_u32 v49, v46, 2, 2")
    e(f"v_and_b32 v50, 1, v46\nv_lshlrev_b32 v50, 4, v50\nv_add_u32 v50, {sT5}, v50\nv_bfe_u32 v51, v46, 1, 2")
    e(f"v_cmp_lt_u32 vcc, 47, v46")
    e(f"v_cndmask_b32 v48, v48, v50, vcc\nv_cndmask_b32 v49, v49, v51, vcc")
    e(f"v_lshl_add_u32 v47, v47, 2, v49\nv_mul_u32_u24 v47, 3584, v47")
    if (n & 3) != 3:
        e(f"v_add_u32 v48, {3072 - 1024*(n&3)}, v48")
    e(f"v_add_u32 v{W3D+n}, v47, v48")
NL = OPT["pfl"]
e(f"s_lshr_b32 {sT4}, s2, 3\ns_mul_i32 {sT5}, {sT4}, {128*NL}\ns_lshl_b32 {sT6}, {sJ}, 7\ns_sub_u32 {sT5}, {sT5}, {sT6}\ns_add_u32 {sT5}, {sT5}, 3072")
e(f"v_lshlrev_b32 v112, 7, {vL}\nv_add_u32 v113, {sT5}, v112")
e(f"s_lshl2_add_u32 {sT4}, {sT4}, {sW}\ns_mul_i32 {sT4}, {sT4}, {128*NL}\ns_mul_i32 {sT6}, {sM}, 224\ns_sub_u32 {sT4}, {sT4}, {sT6}\ns_add_u32 {sT4}, {sT4}, 3072")
e(f"v_add_u32 v112, {sT4}, v112")
e(f"v_cmp_gt_u32 vcc, {NL}, {vL}\nv_mov_b32 v114, 0x40000000\nv_cndmask_b32 v112, v114, v112, vcc\nv_cndmask_b32 v113, v114, v113, vcc")
pfs = [0]


def pf(dyn=False):
    k = pfs[0]
    which = 1 if (k >= 112 // NL or dyn or OPT["pf3"] == 0) else 0
    e(f"buffer_load_dword v114, v{112+which}, {SW4 if which else SW3}, 0 offen", tag="pf")
    if dyn:
        A.untrack()
        e(f"v_add_u32 v113, {4096*NL}, v113\nv_min_u32 v113, 0x40000000, v113")
    else:
        e(f"v_add_u32 v{112+which}, {4096*NL if which else 16384*NL}, v{112+which}")
        pfs[0] += 1


def hook(name):
    o = []
    for t in str(OPT[name]).split("_"):
        if t in ("", "0"):
            continue
        k, n = (t.split("x") + ["1"])[:2]
        f = {"q": pf, "w3": lambda: w3_pump(1), "w4": lambda: w4_issue(1), "n": None}[k]
        o += [f] * int(n)
    return o


srd(32, 48, size=256)
tr_bases12(LW1, True)
Lr = lab("Lr")
e(f"s_cmp_lg_u32 {sT2}, 0\ns_cbranch_scc1 {Lr}")
e(f"s_waitcnt vmcnt({len(A.vm)})")
e("s_mov_b64 exec, 1")
e(f"buffer_store_dword {vOne}, v19, {SDBG}, 0 offen sc1")
A.untrack()
e("s_mov_b64 exec, -1")
e(f"{Lr}:")
stamp(2)
for p in range(4, 8): x_issue(p)
for n in range(4): w12_issue(1, 1, n)


def reduce_q(s, q, t):
    e(f"v_permlane32_swap_b32 v{s}, v{q}")
    e(f"v_add_f32 v{s}, v{s}, v{q}")
    e(f"v_mov_b32 v{t}, v{s}")
    e(f"v_permlane16_swap_b32 v{s}, v{t}")
    e(f"v_add_f32 v{s}, v{s}, v{t}")
    e(f"v_mov_b32 v{t}, v{s}")
    e(f"v_permlane32_swap_b32 v{s}, v{t}")


def x_read(p):
    e(f"ds_read_b128 {vr(BF+4*p)}, {vXr} offset:{16384*(p>>2) + 1024*(p&3)}", tag=f"xr{p}")


gomark = [0]


def go_ld(mod):
    e(f"buffer_load_dword v59, v60, {SDBG}, 0 offen {mod}")
    A.untrack()
    gomark[0] = A.nvm


def go_load():
    L = lab("Lgo")
    e(f"s_cmp_lg_u32 s40, 0\ns_cbranch_scc1 {L}")
    go_ld("sc0")
    e(f"{L}:")


def go_check(final=False):
    L, L2, L0 = lab("Lgo"), lab("Lgp"), lab("Lgs")
    e(f"s_cmp_lg_u32 s40, 0\ns_cbranch_scc1 {L}")
    e(f"s_waitcnt vmcnt({A.nvm - gomark[0]})")
    if final:
        e(f"s_mov_b32 s41, 0")
        e(f"{L0}:")
    e("v_cmp_ne_u32 vcc, 0, v59")
    e("s_cmp_eq_u32 vcc_lo, 15")
    e(f"s_cbranch_scc1 {L2}")
    go_ld("sc1" if final else "sc0")
    if final:
        e("s_waitcnt vmcnt(0)")
        e(f"s_add_u32 s41, s41, 1\ns_cmp_gt_u32 s41, 30000\ns_cbranch_scc1 L_end")
        e(f"s_branch {L0}")
    else:
        e(f"s_branch {L}")
    e(f"{L2}:")
    e("s_mov_b64 exec, 1\ns_mov_b32 s40, 1")
    e(f"buffer_store_byte v56, v57, {SWS}, 0 offen sc1")
    A.untrack()
    e("s_mov_b64 exec, 0xffff")
    e(f"buffer_load_dword v61, v58, {SWS}, 0 offen sc1")
    A.untrack()
    e("s_mov_b64 exec, -1")
    e(f"{L}:")


def p1_pre(i):
    if i % 16 == 0:
        c = i // 16
        A.wait_vm(f"x3" if c == 0 else f"w1c{c}")
        for p in {0: range(0, 4), 1: range(4, 8), 2: range(8, 16), 3: []}[c]:
            x_read(p)
        e("s_barrier")
        stamp(2)


SUMA, GRAM = 96, 100


def stat_mfma(p, which):
    if which:
        return f"v_mfma_f32_16x16x32_bf16 {vr(GRAM)}, {vr(BF+4*p)}, {vr(BF+4*p)}, {vr(GRAM) if p else '0'}"
    return f"v_mfma_f32_16x16x32_bf16 {vr(SUMA)}, {vr(ONES)}, {vr(BF+4*p)}, {vr(SUMA) if p else '0'}"


F = {i: [] for i in range(64)}
lq = [lambda p=p: x_issue(p) for p in range(8, 16)] + [lambda c=c, n=n: w12_issue(1, c, n) for c in (2, 3) for n in range(4)]
for i in range(16):
    F[i].append(lq[i])
F[OPT["hel"]].append(go_load)
for k in range(1, 4):
    F[min(48, OPT["hel"] + OPT["held"] * k)].append(go_check)
for p in range(8):
    F[4 * p + 1].append(stat_mfma(p, 0))
    F[4 * p + 2].append(stat_mfma(p, 1))
for k in range(16):
    F[32 + k].append(stat_mfma(8 + (k >> 1), k & 1))
F[OPT["w2b"]].append(lambda: A.wait_lg("xr15"))
for k in range(8):
    F[OPT["w2a"] + OPT["w2d"] * k].append(lambda k=k: w12_issue(2, k >> 2, k & 3))
    F[OPT["w2b"] + OPT["w2d"] * k].append(lambda k=k: w12_issue(2, 2 + (k >> 2), k & 3))
with Cap() as st:
    for r in range(4):
        mk = sum(1 << (20 * g + r) for g in range(4))
        e(f"s_mov_b32 vcc_lo, {mk & 0xffffffff}\ns_mov_b32 vcc_hi, {mk >> 32}")
        e(f"v_cndmask_b32 v41, {'0' if r == 0 else 'v41'}, v{GRAM+r}, vcc")
    e("v_mov_b32 v42, v41\nv_permlane32_swap_b32 v41, v42\nv_add_f32 v41, v41, v42")
    e("v_mov_b32 v42, v41\nv_permlane16_swap_b32 v41, v42\nv_add_f32 v41, v41, v42")
    stat_consts(SUMA, 41, 44)
    e(f"s_lshl_b32 {sT4}, {sS}, 2\ns_add_u32 {sT4}, {sT4}, {sW}\ns_lshl_b32 {sT4}, {sT4}, 14")
    e(f"s_lshl_b32 {sT3}, {sJ}, 11\ns_add_u32 {sT3}, {sT3}, {sT4}")
    e(f"s_lshr_b32 {sT2}, {sW}, 1\ns_lshl_b32 {sT2}, {sT2}, 10")
    e(f"s_add_u32 {sCnt}, {sT3}, {sT2}\ns_xor_b32 {sT2}, {sT2}, 1024\ns_add_u32 {sT2}, {sT3}, {sT2}")
for k, s_ in enumerate(st):
    F[49 + k // 3].append(s_)
F[62].append(lambda: e(f"ds_write_b128 v{CX}, {vr(ACC+16)}", tag="csw"))


def xres():
    e(f"s_lshr_b32 {sT5}, {sMode}, 1\ns_add_u32 m0, {sT5}, {LXR}")
    m0c[0] = None
    e(f"buffer_load_dwordx4 {vMisc}, {SX}, {sT1} offen lds", tag="xres")
    e(f"v_xor_b32 {vMisc}, 64, {vMisc}\ns_add_u32 {sT1}, {sT1}, {8192-1024}")
    e(f"buffer_load_dwordx4 {vMisc}, {SX}, {sT1} offen offset:1024 lds", tag="xres")


F[16].append(xres)
for k in range(OPT["pfa"], 64, OPT["pfd"]):
    F[k].append(pf)
with Cap() as st:
    tr_bases12(LW2, False, 108)
for k, s_ in enumerate(st):
    F[55 + k // 2].append(s_)

D = 10


def rd1(i):
    ks, sl = i >> 2, i & 3
    p1_pre(i)
    b = 192 + 4 * (i & 15)
    for r in range(2):
        e(f"ds_read_b64_tr_b16 {ar(b+2*r, 2)}, v{TRB+sl} offset:{4096*ks+2048*r}", tag=f"a{i}")


for i in range(D):
    rd1(i)
for i in range(64):
    ks, sl = i >> 2, i & 3
    if i + D < 64:
        rd1(i + D)
    if i % 2 == 0:
        A.wait_lg(f"a{i+1}")
    c = vr(ACC + 4 * sl) if ks > 0 else "0"
    e(f"v_mfma_f32_16x16x32_bf16 {vr(ACC+4*sl)}, {ar(192+4*(i&15))}, {vr(BF+4*ks)}, {c}")
    if sl == 0:
        c = vr(ACC + 16) if ks > 0 else "0"
        e(f"v_mfma_f32_16x16x32_bf16 {vr(ACC+16)}, {ar(192+4*(i&15))}, {vr(ONES)}, {c}")
    for f in F[i]:
        run(f)
stamp(1, 2)
go_check(True)
A.wait_vm("w2c3")
stamp(3)
A.wait_lg0()
e("s_barrier")
for i in range(1, 4):
    e(f"ds_read_b128 {vr(ACC+16+4*i)}, v{CX+i}", tag=f"cs{i}")
e(f"buffer_load_dword v59, v62, {SWS}, 0 offen sc0", tag="hel")
A.wait_lg0()
for i in range(4):
    for h in (0, 2):
        e(f"v_pk_fma_f32 {vr(ACC+4*i+h, 2)}, {vr(ACC+16+4*i+h, 2)}, v[{cI}:{cM}], {vr(ACC+4*i+h, 2)} op_sel:[0,1,0] op_sel_hi:[1,1,1]")
hG = hook("hG")
for i in range(4):
    if hG: run(hG.pop(0))
    for s_ in gelu4pk(ACC + 4 * i, TMP + 4 * (i & 1), [TMP + 8 + 2 * i, TMP + 9 + 2 * i]):
        e(s_)
Lx = lab("Lx")
e(f"s_bitcmp0_b32 {sW}, 0\ns_cbranch_scc1 {Lx}")
for i2 in range(2):
    for d in range(2):
        e(f"v_swap_b32 v{TMP+8+4*i2+d}, v{TMP+10+4*i2+d}")
e(f"{Lx}:")
e(f"buffer_store_dwordx4 {vr(TMP+8)}, {vL16}, {SWS}, {sCnt} offen{fl('gst')}", tag="gst")
e(f"buffer_store_dwordx4 {vr(TMP+12)}, {vL16}, {SWS}, {sT2} offen{fl('gst')}", tag="gst")
stamp(2, 3)
e(f"s_mul_i32 {sW3m}, {sW}, 7168\ns_lshl_b32 {sStg}, {sW}, 13\ns_add_u32 {sStg}, {sStg}, {LST}")
e(f"s_and_b32 {sW3o}, {sW}, 1\ns_mul_i32 {sW3o}, {sW3o}, 114688\ns_lshr_b32 {sT5}, {sW}, 1\ns_add_u32 {sT5}, {sT5}, {sRot3}")
for per in range(4):
    e(f"s_add_u32 s{W3B[per]}, {sT5}, {2*per}\ns_and_b32 s{W3B[per]}, s{W3B[per]}, 7\ns_mul_i32 s{W3B[per]}, s{W3B[per]}, 229376\ns_add_u32 s{W3B[per]}, s{W3B[per]}, {sW3o}")
hA = hook("hA")
for i in range(64):
    ks, sl = i >> 2, i & 3
    for r in range(2):
        e(f"ds_read_b64_tr_b16 {ar(4*i+2*r, 2)}, v{TRB+sl} offset:{4096*ks+2048*r}", tag="w2f")
        k = 2 * i + r - OPT["fr0"]
        if k >= 0 and k % OPT["frd"] == 0 and hA:
            run(hA.pop(0))
for f in hA: run(f)
assert w3s[0] <= 21
e(f"s_add_u32 s60, s28, {FLAG_OFF}\ns_addc_u32 s61, s29, 0")
for mm in range(4):
    e(f"s_add_u32 {sT6}, {sRep}, {mm}\ns_and_b32 {sT6}, {sT6}, 3\ns_and_b32 {sT5}, {sT6}, 1\ns_mul_i32 {sT6}, {sT6}, 7\ns_add_u32 {sT6}, {sT6}, {sT5}\ns_lshl_b32 s{KF[mm]}, {sT6}, 10")
    if mm < 2:
        e(f"s_cmp_eq_u32 {sT5}, 0\ns_cselect_b32 s{DH[mm]}, 6, -1\ns_lshl_b32 s{DH[mm]}, s{DH[mm]}, 10")
XA = 96
e(f"v_and_b32 v44, 15, {vL}\nv_lshrrev_b32 v45, 5, {vL}\nv_bfe_u32 v46, {vL}, 1, 3\nv_xor_b32 v45, v45, v46\nv_bfe_u32 v46, {vL}, 4, 1")
e(f"v_lshlrev_b32 v44, 7, v44\nv_lshl_add_u32 v44, v46, 3, v44\nv_lshl_add_u32 v44, v45, 4, v44")
e(f"s_lshr_b32 {sT5}, {sMode}, 1\ns_add_u32 {sT5}, {sT5}, {LXR}\nv_add_u32 v{XA}, {sT5}, v44")
for fb in range(1, 4):
    e(f"v_xor_b32 v{XA+fb}, {32*fb}, v{XA}")
for fb in range(4):
    e(f"ds_read_b64 {vr(100+2*fb, 2)}, v{XA+fb}", tag="xrr")
e(f"s_and_b32 {sPar}, {sM}, 1")
e(f"s_lshl_b32 {sT1}, {sS}, 2\ns_add_u32 {sT1}, {sT1}, {sW}\ns_lshl_b32 {sT1}, {sT1}, 10")
e(f"s_lshl_b32 {sT2}, {sJ}, 2\ns_add_u32 {sT2}, {sT2}, {sT1}\ns_add_u32 {sT2}, {sT2}, {FLAG_OFF}")
stamp(3)
A.wait_vm("gst")
stamp(3)
Lh, Lh2, Lh3 = lab("Lh"), lab("Lh2"), lab("Lh3")
e(f"v_cmp_eq_u32 vcc, {sHello}, v59")
e(f"s_mov_b32 {sMode}, 0\ns_mov_b32 {sCnt}, 0")
e(f"s_cmp_eq_u32 vcc_lo, 15\ns_cbranch_scc1 {Lh3}")
e(f"{Lh}:")
A.raw(f"s_load_dwordx4 s[36:39], s[42:43], 0 glc")
e("s_waitcnt lgkmcnt(0)")
e("s_and_b64 s[40:41], s[36:37], s[38:39]\ns_and_b32 s40, s40, s41\ns_and_b32 s40, s40, 0x80808080")
e(f"s_cmp_eq_u32 s40, 0x80808080\ns_cbranch_scc1 {Lh2}")
e(f"s_add_u32 {sCnt}, {sCnt}, 1\ns_cmp_gt_u32 {sCnt}, 30000\ns_cbranch_scc1 L_end")
e(f"s_branch {Lh}")
e(f"{Lh2}:")
for i in range(4): e(f"s_xor_b32 s{36+i}, s{36+i}, {sHello}")
e("s_or_b64 s[36:37], s[36:37], s[38:39]\ns_or_b32 s36, s36, s37")
e(f"s_cselect_b32 {sMode}, 4096, 0")
e(f"{Lh3}:")
publish(sT2, 16)
A.wait_lg("xrr")
for fb in range(4):
    e(f"v_add_u32 v{XA+fb}, {LX1R-LXR}, v{XA+fb}")
    for d in range(2):
        e(f"v_lshlrev_b32 v{ACC+4*fb+2*d}, 16, v{100+2*fb+d}")
        e(f"v_and_b32 v{ACC+4*fb+2*d+1}, 0xffff0000, v{100+2*fb+d}")
for pp in range(8):
    e(f"s_add_u32 s{44+pp}, {sRot1}, {pp}\ns_and_b32 s{44+pp}, s{44+pp}, 7\ns_lshl_b32 s{44+pp}, s{44+pp}, 11\ns_add_u32 s{44+pp}, s{44+pp}, {sT4}")
A.wait_lg0()
e("s_barrier")
for n in range(1, 4):
    e(f"v_add_u32 {W4V[n]}, {7168*n}, {vW4d}")
for f in hook("hB"): run(f)
GB = BF + 64
poll(sT1, 8, 16, None, (lambda: pf(True)) if OPT["pfp"] & 1 else None)
stamp(1, 3)


def g_issue(p):
    e(f"buffer_load_dwordx4 {vr(GB+4*p)}, {vL16}, {SWS}, s{44+(p>>1)} offen offset:{1024*(p&1)}{fl('ld')}", tag=f"g{p}")


NG0 = OPT["ng0"]
for p in range(NG0):
    g_issue(p)
e(f"s_lshl_b32 {sT1}, {sS}, 1\ns_lshr_b32 {sT2}, {sW}, 1\ns_add_u32 {sT1}, {sT1}, {sT2}")
e(f"s_lshl_b32 {sT6}, {sT1}, 10")
e(f"s_lshl_b32 {sT2}, {sT1}, 15\ns_lshl_b32 {sT3}, {sJ}, 12\ns_add_u32 {sT2}, {sT2}, {sT3}")
e(f"s_and_b32 {sT3}, {sW}, 1\ns_lshl_b32 {sT4}, {sT3}, 8\ns_add_u32 {sT2}, {sT2}, {sT4}\ns_add_u32 {sT2}, {sT2}, {X1_OFF}")
e(f"s_lshl_b32 {sT1}, {sT1}, 11\ns_lshl_b32 {sT4}, {sJ}, 8\ns_add_u32 {sT1}, {sT1}, {sT4}")
e(f"s_lshl_b32 {sT4}, {sT3}, 7\ns_add_u32 {sT1}, {sT1}, {sT4}\ns_add_u32 {sT1}, {sT1}, {STAT_OFF}")
e(f"s_lshl_b32 {sT3}, {sT3}, 3\ns_add_u32 {sT3}, {sT3}, {sJ}\ns_lshl_b32 {sT3}, {sT3}, 2")
e(f"s_add_u32 {sT3}, {sT6}, {sT3}\ns_add_u32 {sT3}, {sT3}, {FLAG_OFF + 8192}")
e(f"v_and_b32 v54, 15, {vL}\nv_lshrrev_b32 v55, 4, {vL}\nv_lshlrev_b32 v56, 3, v54\nv_lshlrev_b32 v54, 4, v54\nv_lshl_add_u32 v54, v55, 10, v54")
e(f"v_lshrrev_b32 v40, 5, {vL}\nv_bfe_u32 v41, {vL}, 4, 1\nv_bfe_u32 v42, {vL}, 2, 2\nv_and_b32 v43, 3, {vL}")
e(f"v_mul_u32_u24 v44, {896*8}, v40")
e(f"v_lshl_add_u32 v45, v42, 6, v44\nv_lshl_add_u32 v45, v41, 5, v45\nv_lshl_add_u32 v{TRB}, v43, 3, v45")
e(f"v_add_u32 v{TRB+1}, {896*64}, v{TRB}")
e(f"v_mul_u32_u24 v45, 896, v41\nv_add_u32 v44, v44, v45\nv_lshl_add_u32 v44, v42, 5, v44")
e(f"v_and_b32 v45, 1, v43\nv_lshrrev_b32 v43, 1, v43\nv_lshl_add_u32 v43, v45, 1, v43\nv_lshl_add_u32 v44, v43, 3, v44")
e(f"v_add_u32 v{TRB+2}, 768, v44\nv_add_u32 v{TRB+3}, {768+896*64}, v44")
e(f"v_bfe_u32 v42, {vL}, 2, 1\nv_cmp_eq_u32 vcc, v42, v41")
e(f"v_cndmask_b32 v{ASEL}, 0, v{ONES}, vcc")
for i in range(1, 4): e(f"v_mov_b32 v{ASEL+i}, v{ASEL}")
CSA = 124
e(f"s_mul_i32 {sT4}, {sW}, {896*16}")
e(f"v_add_u32 v{CSA}, {sT4}, v{TRB}\nv_add_u32 v{CSA+1}, {sT4}, v{TRB+2}")
e(f"v_and_b32 v48, 31, {vL}\nv_lshlrev_b32 v48, 3, v48\nv_lshl_add_u32 v48, v40, 10, v48")
F = {i: [] for i in range(64)}
lq = [lambda p=p: g_issue(p) for p in range(NG0, 16)] + hook("hC")
for k, f in enumerate(lq):
    F[k * OPT["p2d"]].append(f)
for i in range(64):
    ks, sl = i >> 2, i & 3
    if sl == 0:
        A.wait_vm(f"g{ks}")
    e(f"v_mfma_f32_16x16x32_bf16 {vr(ACC+4*sl)}, {ar(4*i)}, {vr(GB+4*ks)}, {vr(ACC+4*sl)}")
    for f in F[i]:
        run(f)
stamp(1, 3)
for i in range(8):
    e(f"v_cvt_pk_bf16_f32 v{X1P+i}, v{ACC+2*i}, v{ACC+2*i+1}")
e(f"buffer_store_dwordx4 {vr(X1P)}, v54, {SWS}, {sT2} offen{fl('xst')}", tag="xst")
e(f"buffer_store_dwordx4 {vr(X1P+4)}, v54, {SWS}, {sT2} offen offset:512{fl('xst')}", tag="xst")
for i in range(8):
    e(f"v_dot2_f32_bf16 v40, v{X1P+i}, v{ONES}, {'0' if i == 0 else 'v40'}")
    e(f"v_dot2_f32_bf16 v42, v{X1P+i}, v{X1P+i}, {'0' if i == 0 else 'v42'}")
reduce_q(40, 42, 41)
e("s_mov_b64 exec, 0xffff")
e(f"buffer_store_dwordx2 v[40:41], v56, {SWS}, {sT1} offen{fl('xst')}", tag="xst")
e("s_mov_b64 exec, -1")
for f in hook("hD"): run(f)
for fb in range(4):
    e(f"ds_write_b64 v{XA+fb}, {vr(X1P+2*fb, 2)}", tag="x1r")
e(f"s_lshl_b32 {sT4}, {sW}, 11\ns_add_u32 {sT4}, {sT4}, {STAT_OFF}")
e(f"s_lshl_b32 {sT1}, {sW}, 10\ns_add_u32 {sT1}, {sT1}, 8192")
YT = list(range(8, 16))
e(f"s_lshl_b32 {sT5}, {sW}, 15\ns_add_u32 {sT5}, {sT5}, {X1_OFF}")
for bp in range(8):
    e(f"s_add_u32 s{YT[bp]}, {sRot3}, {bp}\ns_and_b32 s{YT[bp]}, s{YT[bp]}, 7\ns_lshl_b32 s{YT[bp]}, s{YT[bp]}, 12\ns_add_u32 s{YT[bp]}, s{YT[bp]}, {sT5}")
stamp(3)
A.wait_vm("xst")
stamp(3)
publish(sT3, 16)
for f in hook("hE"): run(f)
assert w3s[0] == 28
CS = ACC + 32


def cs_items(part):
    it = []
    for q in range(4):
        for b in range(3):
            it.append((CSA, 896 * (64 * part + q) + 256 * b, b))
        if q % 2 == 0:
            it.append((CSA + 1, 896 * (64 * part + q), 3))
    return it


sHs, sHh, sP3 = sT2, "s62", "s63"
e(f"s_mul_i32 {sHh}, {sW}, 112\ns_mul_i32 {sHs}, {sM}, 7\ns_add_u32 {sHh}, {sHh}, {sHs}\ns_lshl_b32 {sHh}, {sHh}, 10\ns_add_u32 {sHh}, {sHh}, {H3_OFF}")
e(f"s_lshl_b32 {sHs}, {sPar}, 10\ns_add_u32 {sHs}, {sHs}, {sHh}")
e(f"s_cmp_eq_u32 {sPar}, 0\ns_cselect_b32 {sT5}, 6144, 0\ns_add_u32 {sHh}, {sHh}, {sT5}")
e(f"s_lshr_b32 {sP3}, {sW}, 1\ns_lshl_b32 {sP3}, {sP3}, 2\ns_lshr_b32 {sT5}, {sM}, 2\ns_add_u32 {sP3}, {sP3}, {sT5}\ns_lshl_b32 {sP3}, {sP3}, 11")
e(f"s_and_b32 {sT5}, {sM}, 3\ns_lshl_b32 {sT5}, {sT5}, 3\ns_add_u32 {sP3}, {sP3}, {sT5}")
e(f"s_and_b32 {sT5}, {sW}, 1\ns_lshl_b32 {sT5}, {sT5}, 2\ns_add_u32 {sP3}, {sP3}, {sT5}")
e(f"s_add_u32 {sP3}, {sP3}, {FLAG_OFF + 16384}")
HA = [4, 5, 6, 7]
e(f"s_mul_i32 {sH0}, {sS}, 224\ns_mul_i32 {sT5}, {sW}, 28\ns_add_u32 {sH0}, {sH0}, {sT5}")
e(f"s_lshl_b32 {sH0}, {sH0}, 10\ns_add_u32 {sH0}, {sH0}, {H3_OFF}")
for mm in range(4):
    e(f"s_add_u32 s{HA[mm]}, {sH0}, s{KF[mm]}")
vH = ["v11", "v56"]
e(f"s_lshr_b32 {sT5}, {sW}, 1\ns_mul_i32 {sT5}, {sT5}, {112*1024}\nv_add_u32 {vH[0]}, {sT5}, {vL16}")
e(f"s_sub_u32 {sT5}, {112*1024}, {sT5}\nv_add_u32 {vH[1]}, {sT5}, {vL16}")
e(f"s_lshl_b32 {sT5}, {sW}, 10\ns_add_u32 {sT5}, {sT5}, {LMISC}")
e(f"v_add_u32 v126, {sT5}, {vL16}\nv_add_u32 v127, {LMISC}, {vL16}")
sQ3 = sT3
e(f"s_lshl_b32 {sQ3}, {sS}, 2\ns_add_u32 {sQ3}, {sQ3}, {sW}\ns_lshl_b32 {sQ3}, {sQ3}, 11\ns_add_u32 {sQ3}, {sQ3}, 16384")
A.wait_vm("w3")
A.wait_lg0()
e("s_barrier")
stamp(4)
for f in hook("hF"): run(f)
w4_issue(8 - w4s["iss"])
items = cs_items(0) + cs_items(1)
D = 6
cs_seen = set()
hS = hook("hS")
for i in range(len(items) + D):
    if i < len(items):
        bs, off, b = items[i]
        for r in range(2):
            e(f"ds_read_b64_tr_b16 {ar(AB+4*(i&7)+2*r, 2)}, v{bs} offset:{off+896*4*r}", tag=f"a{i}")
    k = i - D
    if k >= 0:
        if k % 2 == 0:
            A.wait_lg(f"a{k+1}")
        bs, off, b = items[k]
        c = vr(CS + 4 * b) if b in cs_seen else "0"
        cs_seen.add(b)
        if k % 4 == 1 and hS: run(hS.pop(0))
        e(f"v_mfma_f32_16x16x32_bf16 {vr(CS+4*b)}, {vr(ASEL if b < 3 else ONES)}, {ar(AB+4*(k&7))}, {c}")
HD = ACC + 48
AP = 12
BH = 22
BP = 120
S0 = TMP


def w3_addr(ks, b, r):
    j, q = ks >> 2, ks & 3
    hi = j >= 4
    off = 896 * (16 * (j - 4 * hi) + q + 4 * r)
    if b < 3:
        return TRB + hi, off + 256 * b
    return TRB + 2 + hi, off


items = [(ks, b) for ks in range(32) for b in range(2)]
NA = 64
for p in range(17):
    if p < 16:
        items += [(2 * p, 2), (2 * p + 1, 2)]
    if p > 0:
        items += [(2 * p - 2, 3)]
nrd = [0]


def rd3(upto):
    while nrd[0] <= upto and nrd[0] < len(items):
        i = nrd[0]
        ks, b = items[i]
        for r in range(2):
            bs, off = w3_addr(ks, b, r)
            e(f"ds_read_b64_tr_b16 {ar(AB+4*(i&7)+2*r, 2)}, v{bs} offset:{off}", tag=f"a{i}")
        nrd[0] += 1


def cs_exchange():
    for b in range(4):
        e(f"v_mov_b32 v{S0+b}, v{CS+4*b}")
    e(f"ds_write_b128 v126, {vr(S0)}", tag="csw")
    A.wait_lg0()
    e("s_barrier")
    for i in range(4):
        e(f"ds_read_b128 {vr(CS+4*i)}, v127 offset:{1024*i}", tag="cs")
    rd3(5)


cs_exchange()


def cs_finish():
    A.wait_lg("cs")
    for b in range(0, 4, 2):
        e(f"v_pk_add_f32 {vr(CS+b, 2)}, {vr(CS+b, 2)}, {vr(CS+4+b, 2)}\nv_pk_add_f32 {vr(CS+8+b, 2)}, {vr(CS+8+b, 2)}, {vr(CS+12+b, 2)}")
    for b in range(0, 4, 2):
        e(f"v_pk_add_f32 {vr(CS+b, 2)}, {vr(CS+b, 2)}, {vr(CS+8+b, 2)}")
    for b in range(4):
        e(f"v_cvt_pk_bf16_f32 v{AP+2*b}, v{CS+b}, v{CS+b}")
        e(f"v_and_b32 v{S0}, 0xffff0000, v{AP+2*b}")
        e(f"v_sub_f32 v{S0}, v{CS+b}, v{S0}")
        e(f"v_cvt_pk_bf16_f32 v{AP+2*b+1}, v{S0}, v{S0}")
    e(f"v_mov_b32 v{AP+8}, 0\nv_mov_b32 v{AP+9}, 0")
    e(f"v_mov_b32 v{BH}, 0\nv_mov_b32 v{BH+2}, 0\nv_mov_b32 v{BH+3}, 0\nv_mov_b32 v{BP+2}, 0\nv_mov_b32 v{BP+3}, 0")


poll(sT1, 16, 16, cs_finish, (lambda: pf(True)) if OPT["pfp"] & 2 else None)
stamp(1, 3, 4)


def y_issue(ks):
    e(f"buffer_load_dwordx4 {vr(BF+4*ks)}, {vL16}, {SWS}, s{YT[ks>>2]} offen offset:{1024*(ks&3)}{fl('ld')}", tag=f"y{ks}")


def st_issue(jj):
    e(f"buffer_load_dwordx2 {vr(S0+2*jj, 2)}, v48, {SWS}, {sT4} offen offset:{256*jj} sc1", tag="st")


NY0 = OPT["ny0"]
for ks in range(NY0):
    y_issue(ks)
    if ks == 3:
        for jj in range(4): st_issue(jj)
F = {i: [] for i in range(len(items))}
for k, ks in enumerate(range(NY0, 32)):
    F[2 * k].append(lambda ks=ks: y_issue(ks))
with Cap() as st:
    e(f"v_add_f32 v{S0}, v{S0}, v{S0+2}\nv_add_f32 v{S0+1}, v{S0+1}, v{S0+3}\nv_add_f32 v{S0+4}, v{S0+4}, v{S0+6}\nv_add_f32 v{S0+5}, v{S0+5}, v{S0+7}")
    e(f"v_add_f32 v{S0}, v{S0}, v{S0+4}\nv_add_f32 v{S0+1}, v{S0+1}, v{S0+5}")
    e(f"v_mov_b32 v{S0+2}, v{S0}\nv_mov_b32 v{S0+3}, v{S0+1}")
    e(f"v_permlane32_swap_b32 v{S0}, v{S0+2}\nv_permlane32_swap_b32 v{S0+1}, v{S0+3}")
    e(f"v_add_f32 v{S0}, v{S0}, v{S0+2}\nv_add_f32 v{S0+1}, v{S0+1}, v{S0+3}")
    stat_consts(S0, S0 + 1, S0 + 2)
    e(f"v_cvt_pk_bf16_f32 v{S0}, v{cM}, v{cM}\nv_and_b32 v{S0}, 0xffff0000, v{S0}\nv_sub_f32 v{S0}, v{cM}, v{S0}")
    e(f"v_cvt_pk_bf16_f32 v{S0}, v{cM}, v{S0}")
    e(f"v_cmp_gt_u32 vcc, 32, {vL}")
    e(f"v_cndmask_b32 v{BP}, 0, v{S0}, vcc")
    e(f"v_mov_b32 v{BP+1}, v{BP}\nv_mov_b32 v{BH+4}, v{BP}")
    e(f"v_permlane16_swap_b32 v{BH+4}, v{BH}")
    e(f"v_mov_b32 v{BH+5}, v{BH+4}\nv_mov_b32 v{BH+1}, v{BH}")
IS = 64 - (len(st) + 2) // 3
for k, s_ in enumerate(st):
    F[IS + k // 3].append(s_)
wq = []
for c in range(OPT["wa0"] and 2):
    wq += [lambda: w4_read(2), lambda: w4_read(2)]
for k, f in enumerate(wq):
    F[OPT["wa0"] + 2 * k + 1].append(f)
i0 = 2 * (32 - NY0)
if OPT["wa0"]:
    F[i0].append(w4_release)
    for k in range(8):
        F[i0 + k * OPT["wad"]].append(lambda: w4_issue(1))
for k, f in enumerate(hook("hP")):
    F[1 + 4 * k].append(f)
started = set()


def corr(b):
    e(f"v_mfma_f32_32x32x16_bf16 {vr(ACC+16*b, 16)}, {vr(AP+2*b)}, {vr(BP)}, {vr(ACC+16*b, 16)}")


def mf3(i):
    ks, b = items[i]
    if b < 3:
        c = vr(ACC + 16 * b, 16) if b in started else "0"
        e(f"v_mfma_f32_32x32x16_bf16 {vr(ACC+16*b, 16)}, {ar(AB+4*(i&7))}, {vr(BF+4*ks)}, {c}")
    else:
        for u in range(2):
            c = vr(HD + 4 * u) if b in started else "0"
            e(f"v_mfma_f32_16x16x32_bf16 {vr(HD+4*u)}, {ar(AB+4*(i&7))}, {vr(BF+4*ks+4*u)}, {c}")
    started.add(b)


for i in range(NA):
    ks, b = items[i]
    if b == 0:
        rd3(i + 7)
        A.wait_vm(f"y{ks}")
        A.wait_lg(f"a{i+1}")
    if i == 32:
        stamp(4)
    mf3(i)
    for f in F[i]:
        run(f)
corr(0)
corr(1)
stamp(1, 4)


def h3_store(dsts, blk):
    for c2 in range(2):
        off = 2048 * blk + 1024 * c2
        if off == 4096:
            e(f"s_add_u32 {sHs}, {sHs}, 4096")
        e(f"buffer_store_dwordx4 {vr(dsts+4*c2)}, {vL16}, {SWS}, {sHs} offen offset:{off&4095}{fl('hst')}", tag=f"h{blk}")


def epi_pk(acc, T, dsts, fill, ng=4):
    k = 0
    for g in range(ng):
        for s_ in gelu4pk(acc + 4 * g, T + 4 * (g & 1), [dsts + 2 * g, dsts + 2 * g + 1]):
            e(s_)
            k += 1
            if k % 5 == 0 and fill:
                run(fill.pop(0))


def pub3(tag):
    A.wait_vm(tag)
    publish(sP3, 8)
    e(f"s_add_u32 {sP3}, {sP3}, 512")


fill = []
for c in range(OPT["wg"]):
    fill += [f for f in w4_cycle()] + [None] * 7
epi_pk(ACC, TMP, TMP + 8, fill)
h3_store(TMP + 8, 0)
epi_pk(ACC + 16, TMP, X1P, fill)
h3_store(X1P, 1)
for f in fill:
    run(f)
stamp(4, 5)
fill = []
for c in range(OPT["wb"]):
    fill += w4_cycle() + [None] * OPT["wbg"]
zs = [0]


def z_issue(n=1):
    for _ in range(n):
        z = zs[0]
        if z >= 56:
            return
        mm, ksl = P4K[z >> 1]
        blk, c2 = KSL[ksl]
        tb = z & 1
        so, off = f"s{HA[mm]}", 2048 * blk + 1024 * c2
        if blk == 3:
            so, off = sT5, 0
            if tb == 0:
                e(f"s_add_u32 {sT5}, s{HA[mm]}, s{DH[mm&1]}")
        elif blk == 2:
            so, off = sT5, 1024 * c2
            if tb == 0 and c2 == 0:
                e(f"s_add_u32 {sT5}, s{HA[mm]}, 4096")
        e(f"buffer_load_dwordx4 {vr(BF+4*(z&31))}, {vH[tb]}, {SWS}, {so} offen offset:{off}{fl('ld')}", tag=f"z{z}")
        zs[0] += 1


def phb(lo, hi, zz):
    for i in range(lo, hi):
        ks, b = items[i]
        rd3(i + 6)
        A.wait_lg(f"a{i}")
        mf3(i)
        if b == 2 and ks % 2 == 0 and ks > 0 or i == len(items) - 2:
            k2 = ks - 2 if i != len(items) - 2 else 30
            if i == len(items) - 2:
                corr(2)
            for d in range(4):
                e(f"v_permlane16_swap_b32 v{BF+4*k2+d}, v{BF+4*k2+4+d}")
        if i == NA + 3 * OPT["pubb"]:
            pub3("h1")
        elif i > NA + 2:
            for _ in range(OPT["wbn"]):
                if fill:
                    run(fill.pop(0))
        if zz and zs[0] < OPT["zla"]:
            z_issue(1)


PA = NA + OPT["pola"]
phb(NA, PA, 0)
poll(sQ3, 8, 8, lambda: phb(PA, PA + 4, 0))
stamp(5)
e(f"s_add_u32 {sQ3}, {sQ3}, 512")
phb(PA + 4, len(items), 1)
e(f"v_mfma_f32_16x16x32_bf16 {vr(HD)}, {vr(AP+4)}, {vr(BH+2)}, {vr(HD)}")
e(f"v_mfma_f32_16x16x32_bf16 {vr(HD+4)}, {vr(AP+6)}, {vr(BH)}, {vr(HD+4)}")
for f in fill:
    run(f)
stamp(1, 4, 5)
sys.stderr.write(f"w4 state at P3 end {w4s}\n")
def tail1():
    e(f"v_and_b32 v60, 31, {vL}\nv_bfe_u32 v61, {vL}, 1, 3\nv_lshrrev_b32 v62, 5, {vL}")
    e(f"s_and_b32 {sT5}, {sW}, 1\ns_lshl_b32 {sT5}, {sT5}, 2\nv_xor_b32 v61, {sT5}, v61")
    e(f"s_lshr_b32 {sT5}, {sW}, 1\ns_lshl_b32 {sT5}, {sT5}, 12\ns_add_u32 {sT5}, {sT5}, {LX1R}")
    e(f"v_lshl_add_u32 v60, v60, 7, {sT5}\nv_lshl_add_u32 v60, v61, 4, v60\nv_lshl_add_u32 v60, v62, 3, v60")
    for g in range(1, 4):
        e(f"v_xor_b32 v{60+g}, {16*g}, v60")
    for g in range(4):
        e(f"ds_read_b64 {vr(ACC+16+2*g, 2)}, v{60+g}", tag="xr")
    epi_pk(ACC + 32, TMP, TMP + 8, [])
    h3_store(TMP + 8, 2)


z_issue(OPT["zla"] - zs[0])
tail1()
for d in range(4):
    e(f"v_permlane16_swap_b32 v{HD+d}, v{HD+4+d}")
epi_pk(HD, TMP, X1P, [], 2)
e(f"buffer_store_dwordx4 {vr(X1P)}, {vL16}, {SWS}, {sHh} offen{fl('hst')}", tag="h3")
A.wait_lg("xr")
for g in range(4):
    for d in range(2):
        e(f"v_lshlrev_b32 v{ACC+4*g+2*d}, 16, v{ACC+16+2*g+d}")
        e(f"v_and_b32 v{ACC+4*g+2*d+1}, 0xffff0000, v{ACC+16+2*g+d}")
stamp(1, 4, 5)
started = {0}
F = {i: [] for i in range(112)}
F[OPT["pub2"]].append(lambda: (pub3("h3"), stamp(5)))

fill = []
while len(fill) // 8 * 4 + w4s["con"] < 56:
    fill += w4_cycle() + [None]
for k, f in enumerate(fill):
    F[1 + k].append(f)
with Cap() as st:
    e("s_barrier")
    e(f"s_lshl_b32 {sT4}, {sW}, 14\nv_add_u32 v40, {sT4}, {vL16}")
    for i in range(1, 4):
        e(f"v_xor_b32 v{40+i}, {16384*i}, v40")
    e(f"s_lshr_b32 {sT1}, {sW}, 1\ns_lshl_b32 {sT1}, {sT1}, 15\ns_and_b32 {sT4}, {sW}, 1\ns_lshl_b32 {sT4}, {sT4}, 6\ns_add_u32 {sT1}, {sT1}, {sT4}")
    if OPT["otr"]:
        e(f"v_and_b32 v44, 31, {vL}\nv_lshrrev_b32 v45, 5, {vL}\nv_bfe_u32 v46, {vL}, 1, 2\nv_lshlrev_b32 v44, 6, v44")
        e(f"v_lshl_add_u32 v44, v45, 3, v44\nv_lshl_add_u32 v44, v46, 4, v44\ns_lshl_b32 {sT4}, {sW}, 14\nv_add_u32 v32, {sT4}, v44")
        for g in range(1, 4):
            e(f"v_xor_b32 v{32+g}, {16*g}, v32")
        e(f"v_bfe_u32 v45, {vL}, 3, 2\nv_lshlrev_b32 v45, 4, v45\nv_xor_b32 v36, v45, v40")
        e(f"v_lshrrev_b32 v44, 2, {vL}\nv_and_b32 v45, 3, {vL}\nv_lshlrev_b32 v44, 10, v44\nv_lshl_add_u32 v44, v45, 4, v44")
        e(f"s_add_u32 {sT4}, {sT1}, 16384")
    else:
        e(f"v_and_b32 v44, 31, {vL}\nv_lshrrev_b32 v45, 5, {vL}\nv_lshlrev_b32 v44, 10, v44\nv_lshl_add_u32 v44, v45, 4, v44")
for k, s_ in enumerate(st):
    F[92 + k // 2].append(s_)


def p4(lo, hi):
    for i in range(lo, hi):
        z, b = i >> 1, i & 1
        mm, ksl = P4K[z >> 1]
        if b == 0:
            A.wait_vm(f"z{z}")
            if z % 4 == 0:
                assert w4s["con"] >= z + 4, (z, w4s)
                A.wait_lg(f"w4c{z+3}")
        sl = 2 * (z & 1) + b
        c = vr(ACC + 16 * sl, 16) if sl in started else "0"
        started.add(sl)
        e(f"v_mfma_f32_32x32x16_bf16 {vr(ACC+16*sl, 16)}, {ar(8*(7*mm+ksl)+4*b)}, {vr(BF+4*(z&31))}, {c}")
        if b == 1 and zs[0] < lim[0] and zs[0] - z <= OPT["zla"]:
            z_issue(1)
        for f in F[i]:
            run(f)


lim = [32]
P2_ = OPT["pol2"]
p4(0, P2_)
stamp(5)
poll(sQ3, 8, 8, lambda: p4(P2_, P2_ + 8))
stamp(4, 5)
lim = [56]
z_issue(min(4, OPT["zla"] - (zs[0] - (P2_ + 8) // 2)))
p4(P2_ + 8, 112)
stamp(1, 5)
for i in range(1, 4):
    for g in range(4):
        e(f"ds_write_b128 v{40+i}, {vr(ACC+16*i+4*g)} offset:{RED+4096*i+1024*g}", tag="rw")
A.wait_lg0()
e("s_barrier")
for g in range(4):
    for i in range(1, 4):
        e(f"ds_read_b128 {vr(BF+16*i+4*g)}, v40 offset:{RED+4096*i+1024*g}", tag=f"rr{g}")
for g in range(4):
    A.wait_lg(f"rr{g}")
    r, a = BF + 4 * g, ACC + 4 * g
    for h in (0, 2):
        e(f"v_pk_add_f32 {vr(a+h, 2)}, {vr(a+h, 2)}, {vr(r+16+h, 2)}")
        e(f"v_pk_add_f32 {vr(r+32+h, 2)}, {vr(r+32+h, 2)}, {vr(r+48+h, 2)}")
    for h in (0, 2):
        e(f"v_pk_add_f32 {vr(a+h, 2)}, {vr(a+h, 2)}, {vr(r+32+h, 2)}")
    for d in range(2):
        e(f"v_cvt_pk_bf16_f32 v{TMP+8+2*g+d}, v{a+2*d}, v{a+2*d+1}")
    if OPT["otr"]:
        e(f"ds_write_b64 v{32+g}, {vr(TMP+8+2*g, 2)} offset:{RED}", tag="ow")
    elif g % 2 == 1:
        o = TMP + 8 + 4 * (g >> 1)
        e(f"v_permlane32_swap_b32 v{o}, v{o+2}\nv_permlane32_swap_b32 v{o+1}, v{o+3}")
        e(f"buffer_store_dwordx4 {vr(o)}, v44, {SOUT}, {sT1} offen offset:{32*(g>>1)}{fl('ost')}", tag="o")
if OPT["otr"]:
    for i2 in range(2):
        e(f"ds_read_b128 {vr(BF+4*i2)}, v36 offset:{RED+1024*i2}", tag=f"or{i2}")
    for i2 in range(2):
        A.wait_lg(f"or{i2}")
        e(f"buffer_store_dwordx4 {vr(BF+4*i2)}, v44, {SOUT}, {(sT1, sT4)[i2]} offen{fl('ost')}", tag="o")
if PROF:
    stamp(5)
    A.wait_vm0()
    stamp(1, 5)
    A.wait_lg0()
    e("s_load_dwordx2 s[36:37], s[0:1], 56")
    A.wait_lg0()
    e(f"s_mov_b32 {sT1}, {PROF_OFF}")
    srd(28, 36, add=sT1, size=1 << 20)
    e(f"s_lshl_b32 {sT1}, s2, 2\ns_add_u32 {sT1}, {sT1}, {sW}\ns_lshl_b32 {sT1}, {sT1}, 6")
    e("v_mov_b32 v2, 0")
    for i in range(nstamp[0]):
        e(f"v_mov_b32 v3, s{82+2*i}")
        e(f"buffer_store_dword v3, v2, {SWS}, {sT1} offen offset:{4*i}")
    if OPT["dbg"]:
        e(f"s_lshl_b32 {sT4}, s2, 2\ns_add_u32 {sT4}, {sT4}, {sW}\ns_cmp_lg_u32 {sT4}, {OPT['dbg']}\ns_cbranch_scc1 L_end")
        e("s_mov_b64 exec, 1")
        for i in range(nstamp[0]):
            e(f"s_sub_u32 {sT4}, s{82+2*i}, s82\nv_mov_b32 v3, {sT4}")
            e(f"buffer_store_dword v3, v2, {SDBG}, 0 offen offset:{4*i} sc1")
        e(f"v_mov_b32 v3, {sMode}\nbuffer_store_dword v3, v2, {SDBG}, 0 offen offset:40 sc1")
        e("s_mov_b64 exec, -1")
    e(f"v_mov_b32 v3, {sMode}")
    e(f"buffer_store_dword v3, v2, {SWS}, {sT1} offen offset:60")
e("L_end:")
e("s_endpgm")
A.raw("L_codeend:")
A.raw('.section .rodata,"a"\n.p2align 6\n.amdhsa_kernel standalone__mixer_s_mlp__prompt_kernel')
A.raw("""  .amdhsa_next_free_vgpr 512
  .amdhsa_next_free_sgpr 102
  .amdhsa_accum_offset 256
  .amdhsa_group_segment_fixed_size 0
  .amdhsa_kernarg_size 64
  .amdhsa_user_sgpr_count 2
  .amdhsa_user_sgpr_kernarg_segment_ptr 1
  .amdhsa_system_sgpr_workgroup_id_x 1
.end_amdhsa_kernel""")
sys.stdout.write(A.text())
sys.stderr.write(f"lines {len(A.lines)} nops {A.nnop} stamps {nstamp[0]}\n")
```

```python
import sys, math, struct
sys.path.insert(0, "tools")
from asmlib import Asm

OPT = dict(dbg=0, pfl=56, rot3=0, pfp=0, pfw=1, pfa=34, pfd=15, hG="", hS="", hP="nx9_q", pola=30, wbn=1, wbg=1, otr=1, hA="nx6_w3x14", hB="", hC="w3x14", hD="q", hE="", hF="", wa0=22, wad=1, wg=3, wb=5, pubb=5, zla=12, pub2=20, pol2=40, w4p=0, w2a=17, w2b=25, w2d=1, pf3=1, pf4="-1", pf4a=0, pf4b=0, ld="sc1", ng0=12, p2n=7, nb1=7, na1=4, fr0=24, frd=5, tlb=0, hel=7, held=15, ny0=12, na0=10, p2s=4, p2d=2, nb0=0, w4o="la", w4s=50, w4d=3, prof=0, gst="sc1", xst="sc1", hst="sc1", ost="sc1", forceslow=0)
for a in sys.argv[1:]:
    k, v = a.split("=")
    OPT[k] = int(v) if v.lstrip("-").isdigit() else v
PROF = OPT["prof"]


def fl(name):
    v = OPT[name]
    return "" if v == "none" else " " + v.replace("_", " ")


def f32(x):
    return "0x%08x" % struct.unpack("<I", struct.pack("<f", x))[0]


G_OFF = 0
X1_OFF = 128 << 10
H3_OFF = 256 << 10
STAT_OFF = 704 << 10
FLAG_OFF = 720 << 10
HEL_OFF = 12288
PROF_OFF = 16 << 20
WS_SIZE = 1 << 20
LW1 = 0
LW2 = 98304
LST = 131072
LXR = 86016
LX1R = 114688
LMISC = 122880
LCX = 94208
LDS_TOTAL = 163840
RED = 0
sW = "s3"
SX, SW1, SW2, SW3, SW4, SOUT, SWS, SDBG = ("s[4:7]", "s[8:11]", "s[12:15]", "s[16:19]", "s[20:23]", "s[24:27]",
                                           "s[28:31]", "s[32:35]")
sG, sM, sS, sJ, sT0, sMode, sHello, sRot1 = "s52", "s53", "s54", "s55", "s56", "s57", "s58", "s59"
sRot3 = "s52"
sKW = "s56"
KF = [73, 74, 78, 79]
DH = [80, 81]
sFB = "s[60:61]"
sDB = "s[62:63]"
sStg = "s64"
sT1, sT2, sT3, sT4, sT5, sT6 = "s65", "s66", "s67", "s68", "s69", "s70"
sRep, sCnt = "s71", "s72"
sH0 = "s58"
sPar = "s75"
sW3o, sW3m = "s76", "s77"
sW4o = "s76"
vL, vL16, vRep, vW4d, vOne, vMisc = "v0", "v1", "v6", "v7", "v10", "v11"
TRB = 2
W4T = 8
W3D = 12
ONES = 20
ASEL = 24
cA, cB, cI, cM = 28, 29, 30, 31
X1P = 32
TMP = 40
ACC = 64
BF = 128
AB = 224

K1 = -2.0 * math.sqrt(2.0 / math.pi) * math.log2(math.e)
K3 = 0.044715

A = Asm()
e = A.e
nlab = [0]
nstamp = [0]


def lab(p="L"):
    nlab[0] += 1
    return f"{p}_{nlab[0]}"


def stamp(*sets):
    if not sets:
        sets = (1,)
    if PROF in sets:
        i = nstamp[0]
        assert i < 10
        e(f"s_memtime s[{82+2*i}:{83+2*i}]")
        nstamp[0] += 1


def vr(b, n=4):
    return f"v[{b}:{b+n-1}]"


def ar(b, n=4):
    return f"a[{b}:{b+n-1}]"


def srd(dst, ptr_lo, add=None, size=0x7fffffff):
    if add is None:
        e(f"s_mov_b32 s{dst}, s{ptr_lo}\ns_mov_b32 s{dst+1}, s{ptr_lo+1}")
    else:
        e(f"s_add_u32 s{dst}, s{ptr_lo}, {add}\ns_addc_u32 s{dst+1}, s{ptr_lo+1}, 0")
    e(f"s_mov_b32 s{dst+2}, {size}\ns_mov_b32 s{dst+3}, 0x20000")


def poll(soff, ndw, nrep, between=None, inloop=None):
    L, Lw, Ld = lab("Lp"), lab("Lw"), lab("Ld")

    def issue(nxt):
        Lg = lab("Lg")
        e(f"s_cmp_ge_u32 {sRep}, {nrep*64}\ns_cbranch_scc1 {Lg}")
        e(f"s_add_u32 {sT6}, {soff}, {sRep}")
        e(f"s_load_dwordx{ndw} s[36:{36+ndw-1}], {sFB}, {sT6}")
        e(f"s_add_u32 {sRep}, {sRep}, 64\ns_branch {nxt}")
        e(f"{Lg}:")
        e(f"s_load_dwordx{ndw} s[36:{36+ndw-1}], {sFB}, {soff} glc")

    e(f"s_mov_b32 {sRep}, {sMode}\ns_mov_b32 {sCnt}, 0")
    if between is not None:
        Lb = lab("Lb")
        issue(Lb)
        e(f"{Lb}:")
        between()
        e(f"s_branch {Lw}")
    e(f"{L}:")
    e(f"s_add_u32 {sCnt}, {sCnt}, 1\ns_cmp_gt_u32 {sCnt}, 30000\ns_cbranch_scc1 L_end")
    if inloop:
        inloop()
    issue(Lw)
    e(f"{Lw}:")
    A.wait_lg0()
    n = ndw
    while n > 2:
        for i in range(0, n // 2, 2):
            e(f"s_and_b64 s[{36+i}:{37+i}], s[{36+i}:{37+i}], s[{36+n//2+i}:{37+n//2+i}]")
        n //= 2
    e("s_and_b32 s36, s36, s37")
    e(f"s_cbranch_scc0 {L}")


def publish(soff, nrep):
    Ls, Ld = lab("Ls"), lab("Ld")
    e(f"s_cmp_lg_u32 {sMode}, 0\ns_cbranch_scc1 {Ls}")
    e(f"s_mov_b64 exec, {(1 << nrep) - 1}")
    e(f"buffer_store_dword {vOne}, {vRep}, {SWS}, {soff} offen", tag="flag")
    e(f"s_branch {Ld}")
    e(f"{Ls}:")
    e("s_mov_b64 exec, 1")
    e(f"buffer_store_dword {vOne}, {vRep}, {SWS}, {soff} offen sc1", tag="flag")
    A.untrack()
    e(f"{Ld}:")
    e("s_mov_b64 exec, -1")


def stat_consts(vS, vQ, t):
    e(f"v_mul_f32 v{cM}, {f32(-1.0/512)}, v{vS}")
    e(f"v_mul_f32 v{t}, v{cM}, v{cM}")
    e(f"v_mov_b32 v{t+1}, {f32(1.0/512)}")
    e(f"v_fma_f32 v{t}, v{vQ}, v{t+1}, -v{t}")
    e(f"v_max_f32 v{t}, 0, v{t}")
    e(f"v_add_f32 v{t}, {f32(1e-5)}, v{t}")
    e(f"v_rsq_f32 v{t+1}, v{t}")
    e(f"v_sqrt_f32 v{cI}, v{t}")
    e(f"v_mul_f32 v{cA}, {f32(K1)}, v{t+1}")
    e(f"v_mul_f32 v{t}, v{t+1}, v{t+1}")
    e(f"v_mul_f32 v{t}, {f32(K3)}, v{t}")
    e(f"v_mul_f32 v{cB}, v{cA}, v{t}")


def gelu4(a, T, dst):
    o = []
    for i in range(4): o.append(f"v_mul_f32_e64 v{T+i}, v{a[i]}, v{a[i]}")
    for i in range(4): o.append(f"v_fma_f32 v{T+i}, v{T+i}, v{cB}, v{cA}")
    for i in range(4): o.append(f"v_mul_f32_e64 v{T+i}, v{a[i]}, v{T+i}")
    for i in range(4): o.append(f"v_exp_f32_e64 v{T+i}, v{T+i}")
    for i in range(4): o.append(f"v_fma_f32 v{T+i}, v{T+i}, v{cI}, v{cI}")
    for i in range(4): o.append(f"v_rcp_f32_e64 v{T+i}, v{T+i}")
    for i in range(4): o.append(f"v_mul_f32_e64 v{T+i}, v{a[i]}, v{T+i}")
    o.append(f"v_cvt_pk_bf16_f32 v{dst[0]}, v{T}, v{T+1}")
    o.append(f"v_cvt_pk_bf16_f32 v{dst[1]}, v{T+2}, v{T+3}")
    return o


def gelu4pk(a, T, dst):
    o = []
    for i in (0, 2): o.append(f"v_pk_mul_f32 v[{T+i}:{T+i+1}], v[{a+i}:{a+i+1}], v[{a+i}:{a+i+1}]")
    for i in (0, 2): o.append(f"v_pk_fma_f32 v[{T+i}:{T+i+1}], v[{T+i}:{T+i+1}], v[{cA}:{cB}], v[{cA}:{cB}] op_sel:[0,1,0] op_sel_hi:[1,1,0]")
    for i in (0, 2): o.append(f"v_pk_mul_f32 v[{T+i}:{T+i+1}], v[{a+i}:{a+i+1}], v[{T+i}:{T+i+1}]")
    for i in range(4): o.append(f"v_exp_f32_e64 v{T+i}, v{T+i}")
    for i in (0, 2): o.append(f"v_pk_fma_f32 v[{T+i}:{T+i+1}], v[{T+i}:{T+i+1}], v[{cI}:{cM}], v[{cI}:{cM}] op_sel:[0,0,0] op_sel_hi:[1,0,0]")
    for i in range(4): o.append(f"v_rcp_f32_e64 v{T+i}, v{T+i}")
    for i in (0, 2): o.append(f"v_pk_mul_f32 v[{T+i}:{T+i+1}], v[{a+i}:{a+i+1}], v[{T+i}:{T+i+1}]")
    o.append(f"v_cvt_pk_bf16_f32 v{dst[0]}, v{T}, v{T+1}")
    o.append(f"v_cvt_pk_bf16_f32 v{dst[1]}, v{T+2}, v{T+3}")
    return o


KSL = [(0, 0), (0, 1), (1, 0), (1, 1), (3, 0), (2, 0), (2, 1)]
W4G = []
for mm in range(4):
    W4G += [[(mm, 0), (mm, 1)], [(mm, 2), (mm, 3)]]
for mm in (0, 2):
    W4G += [[(mm, 5), (mm, 6)], [(mm + 1, 5), (mm + 1, 6)], [(mm, 4), (mm + 1, 4)]]
P4K = [k for g in W4G for k in g]
W4V = ["v7", "v57", "v58", "v59"]
w4s = dict(iss=0, con=0, free=0)


def w4_issue(n=1):
    for _ in range(n):
        i = w4s["iss"]
        if i >= 56:
            return
        g, n4 = i >> 2, i & 3
        assert 4 * (g - 1) <= w4s["free"], ("w4 ring overrun", i, w4s)
        mm, ksl = W4G[g][n4 >> 1]
        blk, c2 = KSL[ksl]
        set_m0(sStg, 4096 * (g & 1))
        if blk == 3:
            if n4 & 1 == 0:
                e(f"s_add_u32 {sW4o}, s{KF[mm]}, s{DH[mm&1]}")
                e(f"s_lshl4_add_u32 {sW4o}, {sW4o}, {(3072 - 8192*n4) & 0xffffffff}")
        elif n4 == 0:
            e(f"s_lshl4_add_u32 {sW4o}, s{KF[mm]}, {3072 + 32768*blk}")
        e(f"buffer_load_dwordx4 {W4V[n4]}, {SW4}, {sW4o} offen offset:{1024*n4} lds", tag=f"w4_{i}")
        w4s["iss"] += 1


def w4_read(n=4, wait=True):
    n = min(n, w4s["iss"] - w4s["con"])
    if n <= 0:
        return
    A.wait_vm(f"w4_{min(w4s['iss'], (w4s['con']+n+3)//4*4)-1}")
    for _ in range(n):
        i = w4s["con"]
        mm, ksl = W4G[i >> 2][(i >> 1) & 1]
        k, rd = 7 * mm + ksl, i & 1
        for b in range(2):
            e(f"ds_read_b64_tr_b16 {ar(8*k+4*b+2*rd, 2)}, v{W4T+b} offset:{1024*(i&7)}", tag=f"w4c{i}")
        w4s["con"] += 1


def w4_release():
    if w4s["free"] < w4s["con"]:
        A.wait_lg(f"w4c{w4s['con']-1}")
        w4s["free"] = w4s["con"]


def w4_cycle():
    return [lambda: w4_read(2), lambda: w4_read(2), None, lambda: (w4_release(), w4_issue(1)), lambda: w4_issue(1),
            lambda: w4_issue(1), lambda: w4_issue(1)]


m0c = [None]


def set_m0(sreg, lit):
    if m0c[0] != (sreg, lit):
        e(f"s_add_u32 m0, {sreg}, {lit}")
        m0c[0] = (sreg, lit)


W3B = [4, 5, 6, 7]
w3s = [0]


def w3_pump(cnt=1):
    for _ in range(cnt):
        i = w3s[0]
        if i >= 28:
            return
        period, n = i // 7, i % 7
        set_m0(sW3m, period * 4 * 7168 + (4096 if n >= 4 else 0))
        e(f"buffer_load_dwordx4 v{W3D+n}, {SW3}, s{W3B[period]} offen offset:{1024*(n&3)} lds", tag="w3")
        w3s[0] += 1


def tr_bases12(lbase, rot, t=TMP):
    e(f"v_lshrrev_b32 v{t}, 4, {vL}")
    e(f"v_bfe_u32 v{t+1}, {vL}, 2, 2")
    e(f"v_and_b32 v{t+2}, 3, {vL}")
    e(f"v_lshlrev_b32 v{t+3}, 9, v{t}")
    e(f"v_lshl_add_u32 v{t+3}, v{t+1}, 7, v{t+3}")
    e(f"v_lshl_add_u32 v{t+3}, v{t+2}, 3, v{t+3}")
    if lbase:
        e(f"v_add_u32 v{t+3}, {lbase}, v{t+3}")
    e(f"v_and_b32 v{t}, 1, v{t}")
    e(f"v_lshrrev_b32 v{t+1}, 1, v{t+1}")
    e(f"v_lshl_add_u32 v{t}, v{t}, 1, v{t+1}")
    if rot:
        e(f"v_xor_b32 v{t}, {sW}, v{t}")
    for i in range(4):
        e(f"v_xor_b32 v{t+1}, {i}, v{t}")
        e(f"v_lshl_add_u32 v{TRB+i}, v{t+1}, 5, v{t+3}")


def run(f):
    if f is None:
        return
    if callable(f):
        f()
    else:
        e(f)


class Cap:
    def __enter__(self):
        global e
        self.o = []
        self.old = e
        e = lambda s_, tag=None: self.o.extend([l for l in s_.split("\n") if l.strip()])
        return self.o

    def __exit__(self, *a):
        global e
        e = self.old


A.raw(f"; @launch grid=(256,1,1) block=(256,1,1) lds={LDS_TOTAL}")
A.raw('.amdgcn_target "amdgcn-amd-amdhsa--gfx950"')
A.raw(".text\n.globl standalone__mixer_s_mlp__prompt_kernel\n.p2align 8\n.type standalone__mixer_s_mlp__prompt_kernel,@function")
A.raw("standalone__mixer_s_mlp__prompt_kernel:")
e("s_cmp_ge_u32 s2, 256\ns_cbranch_scc1 L_end")
e("s_load_dwordx16 s[36:51], s[0:1], 0")
stamp(1, 2, 3, 4)
e("s_getpc_b64 s[68:69]")
A.raw("L_pc:")
VX, VW1, VW2 = 192, 196, 200
vXr = "v63"
XR = list(range(73, 81))
WK = [81, 60, 61, 64]
e(f"v_lshrrev_b32 v2, 6, v0")
e(f"v_and_b32 {vL}, 63, v0")
e(f"v_readfirstlane_b32 {sW}, v2")
e(f"s_and_b32 {sT1}, s2, 7\ns_lshr_b32 {sT2}, s2, 3")
e(f"s_lshr_b32 {sT3}, {sT2}, 4\ns_lshl_b32 {sG}, {sT1}, 1\ns_add_u32 {sG}, {sG}, {sT3}")
e(f"s_and_b32 {sM}, {sT2}, 15\ns_lshr_b32 {sS}, {sM}, 3\ns_and_b32 {sJ}, {sM}, 7")
e(f"s_lshr_b32 {sRep}, {sT2}, 3")
e(f"s_lshl_b32 {sRot1}, {sRep}, 1\ns_add_u32 {sRot1}, {sRot1}, {sJ}")
e(f"s_lshl_b32 {sT0}, {sG}, 7\ns_lshl_b32 {sT1}, {sS}, 6\ns_add_u32 {sT0}, {sT0}, {sT1}")
e(f"s_lshr_b32 {sT1}, {sJ}, 1\ns_lshr_b32 {sT2}, {sT1}, 1\ns_add_u32 {sT2}, {sT2}, 1")
e(f"s_and_b32 {sT1}, {sT1}, 1\ns_cmp_eq_u32 {sT1}, 0\ns_cselect_b32 {sT3}, -1, 1\ns_mul_i32 {sT2}, {sT2}, {sT3}")
e(f"s_lshl_b32 {sT1}, {sW}, 4\ns_add_u32 {sCnt}, {sT1}, {sT0}\ns_add_u32 {sT2}, {sT2}, {sCnt}")
e(f"v_lshrrev_b32 v40, 2, {vL}\nv_add_u32 v40, {sT2}, v40\nv_and_b32 v40, 0xfffff, v40\nv_lshlrev_b32 v40, 10, v40")
e(f"v_lshrrev_b32 v46, 5, {vL}\nv_and_b32 v41, 3, {vL}\nv_lshlrev_b32 v42, 1, v46\nv_xor_b32 v41, v41, v42\nv_lshl_add_u32 v40, v41, 4, v40")
for n in range(4):
    e(f"v_add_u32 v{VX+n}, {64*(n&1) - 1024*n + 3072}, v40")
e(f"v_bfe_u32 v47, {vL}, 3, 2\nv_bfe_u32 v48, {vL}, 1, 2\nv_and_b32 v49, 1, {vL}")
e(f"v_lshrrev_b32 v50, 1, v47\nv_add_u32 v50, v42, v50\nv_xor_b32 v50, v48, v50")
e(f"v_lshlrev_b32 v50, 5, v50\nv_lshl_add_u32 v50, v49, 4, v50\nv_lshl_add_u32 v50, v47, 10, v50")
e(f"v_lshl_add_u32 v{VW1}, v46, 13, v50\nv_lshl_add_u32 v{VW2}, v46, 12, v50")
for n in range(1, 4):
    e(f"v_add_u32 v{VW1+n}, {[0, 15, 2, 17][n]*1024}, v{VW1}")
e(f"v_lshlrev_b32 {vL16}, 4, {vL}")
e(f"s_lshl_b32 {sT1}, {sJ}, 7")
e(f"s_lshl_b32 {sMode}, {sW}, 12")
e(f"s_lshl_b32 {sT3}, {sT0}, 10\ns_add_u32 {sT3}, {sT3}, {sT1}")
e(f"s_lshl1_add_u32 {sKW}, {sRot1}, {sW}")
for pp in range(8):
    e(f"s_add_u32 s{XR[pp]}, {sRot1}, {pp}\ns_and_b32 s{XR[pp]}, s{XR[pp]}, 7\ns_lshl_b32 s{XR[pp]}, s{XR[pp]}, 7")
for c in range(4):
    e(f"s_add_u32 s{WK[c]}, {sKW}, {4*c}\ns_and_b32 s{WK[c]}, s{WK[c]}, 15\ns_lshl_b32 s{WK[c]}, s{WK[c]}, 15")
for i in range(4): e(f"v_mov_b32 v{52+i}, 0")
e(f"s_and_b32 {sT2}, {sM}, 3\ns_or_b32 {sT2}, {sT2}, {sW}")
e(f"s_lshl_b32 {sHello}, {sM}, 11\ns_add_u32 {sHello}, {sHello}, {FLAG_OFF}")
e(f"s_and_b32 {sT6}, {sJ}, 3\ns_lshl_b32 {sT6}, {sT6}, 2\ns_add_u32 {sT6}, {sT6}, {sW}\ns_lshl_b32 {sT6}, {sT6}, 11")
e(f"v_lshlrev_b32 v46, 7, {vL}\nv_add_u32 v46, {sT6}, v46\nv_min_u32 v46, L_codeend-L_pc-4, v46")
e(f"s_lshl_b32 {sT6}, {sG}, 20")
e(f"s_mov_b32 s6, {2048*1024 + 3072}\ns_mov_b32 s7, 0x20000")
A.wait_lg0()
stamp(2)
e(f"s_sub_u32 s4, s36, 3072\ns_subb_u32 s5, s37, 0")
srd(28, 50, add=sT6, size=WS_SIZE)
Lr = lab("Lr")
e(f"s_cmp_lg_u32 {sT2}, 0\ns_cbranch_scc1 {Lr}")
e(f"s_add_u32 s32, {sHello}, 4096")
for k in range(8):
    e(f"buffer_store_dwordx4 v[52:55], {vL16}, {SWS}, {sHello if k < 4 else 's32'} offen offset:{1024*(k&3)} sc1")
    A.untrack()
e(f"{Lr}:")


def x_issue(p):
    set_m0(sMode, LW2 + 16384 * (p >> 2))
    e(f"buffer_load_dwordx4 v{VX+(p&3)}, {SX}, s{XR[p>>1]} offen offset:{1024*(p&3)} lds", tag=f"x{p}")


def w12_issue(which, c, n):
    set_m0(sMode, (LW1 if which == 1 else LW2) + 16384 * c)
    e(f"buffer_load_dwordx4 v{(VW1 if which == 1 else VW2)+n}, {SW1 if which == 1 else SW2}, s{WK[c]} offen offset:{1024*n} lds",
      tag=f"w{which}c{c}")


x_issue(0)
x_issue(1)
srd(8, 38, add=sT1, size=512 * 1024 - 896)
for n in range(4): w12_issue(1, 0, n)
x_issue(2)
x_issue(3)
e("s_mov_b64 exec, 0xffff")
e("global_load_dword v255, v46, s[68:69]", tag="pf")
e("s_mov_b64 exec, -1")
stamp(2)
srd(12, 40, add=sT1, size=512 * 1024 - 896)
srd(24, 46, add=sT3, size=64 * 1024 - 896)
for n in range(1, 4):
    e(f"v_add_u32 v{VW2+n}, {7*1024*n}, v{VW2}")
e(f"v_lshlrev_b32 {vRep}, 6, {vL}")
e(f"v_mov_b32 {vOne}, 1")
e(f"s_mul_i32 {sT3}, {sM}, 224")
e(f"s_sub_u32 s16, s42, 3072\ns_subb_u32 s17, s43, 0")
e(f"s_add_u32 s16, s16, {sT3}\ns_addc_u32 s17, s17, 0")
e(f"s_mov_b32 s18, {512*3584 + 3072 - 224*15}\ns_mov_b32 s19, 0x20000")
e(f"s_mul_i32 {sT3}, {sW}, {448*1024}\ns_add_u32 {sT3}, {sT3}, {sT1}")
e(f"s_sub_u32 s20, s44, 3072\ns_subb_u32 s21, s45, 0")
e(f"s_add_u32 s20, s20, {sT3}\ns_addc_u32 s21, s21, 0")
e(f"s_mov_b32 s22, {448*1024 - 896 + 3072}\ns_mov_b32 s23, 0x20000")
if OPT["tlb"]:
    e(f"s_lshl_b32 {sT3}, {sW}, 4\nv_add_u32 v46, {sT3}, {vL}\nv_mul_u32_u24 v47, 28672, v46\nv_mul_u32_u24 v48, 28672, {vL}")
    e(f"v_lshlrev_b32 v49, 13, v46\nv_lshlrev_b32 v46, 10, v46")
    e("s_mov_b64 exec, 0xffff")
    e(f"buffer_load_dword v255, v49, {SW2}, 0 offen", tag="pf")
    e(f"buffer_load_dword v255, v47, {SW3}, 0 offen offset:3072", tag="pf")
    e(f"buffer_load_dword v255, v48, {SW4}, 0 offen offset:3072", tag="pf")
    e("s_mov_b64 exec, 1")
    e(f"buffer_load_dword v255, v46, {SOUT}, 0 offen", tag="pf")
    e("s_mov_b64 exec, -1")
e(f"s_lshl_b32 {sT3}, {sG}, 4\ns_add_u32 s62, s48, {sT3}\ns_addc_u32 s63, s49, 0")
e(f"v_lshl_add_u32 v60, {vL}, 2, {sT3}\nv_cmp_gt_u32 vcc, 4, {vL}\nv_cndmask_b32 v60, -1, v60, vcc")
e(f"v_lshlrev_b32 v62, 2, {vL}\nv_add_u32 v62, {FLAG_OFF + HEL_OFF}, v62\nv_cndmask_b32 v62, -1, v62, vcc")
e(f"s_add_u32 {sT3}, {sT3}, {sM}\nv_mov_b32 v19, {sT3}")
e(f"v_lshlrev_b32 v58, 7, {vL}\nv_add_u32 v58, {sHello}, v58")
e(f"s_add_u32 s42, s28, {FLAG_OFF + HEL_OFF}\ns_addc_u32 s43, s29, 0")
e(f"s_add_u32 {sT3}, {sM}, {FLAG_OFF + HEL_OFF}\nv_mov_b32 v57, {sT3}")
e(f"s_getreg_b32 {sHello}, hwreg(HW_REG_XCC_ID)")
e(f"s_and_b32 {sHello}, {sHello}, 15\ns_or_b32 {sHello}, {sHello}, 0x80")
if OPT["forceslow"]:
    e(f"s_cmp_eq_u32 {sM}, 5\ns_cselect_b32 {sHello}, 0x89, {sHello}")
e(f"v_mov_b32 v56, {sHello}")
e(f"s_mul_i32 {sHello}, {sHello}, 0x01010101")
e(f"s_mov_b32 s40, {sW}")
e(f"s_and_b32 {sT4}, {sG}, 1\ns_lshl_b32 {sT4}, {sT4}, 2\ns_add_u32 {sRot3}, {sT4}, {sM}")
if OPT["rot3"] == 0:
    e(f"s_mov_b32 {sRot3}, 0")
e(f"s_add_u32 {sRep}, {sRep}, {sJ}")
for i in range(4): e(f"v_mov_b32 v{ONES+i}, 0x3f803f80")
e(f"v_and_b32 v46, 15, {vL}\nv_lshrrev_b32 v47, 4, {vL}\nv_bfe_u32 v48, {vL}, 3, 1\nv_lshlrev_b32 v48, 1, v48\nv_xor_b32 v47, v47, v48")
e(f"v_lshlrev_b32 v46, 6, v46\nv_lshl_add_u32 v46, v47, 4, v46\ns_add_u32 {sT4}, {sMode}, {LW2}\nv_add_u32 {vXr}, {sT4}, v46")
e(f"v_lshrrev_b32 v46, 3, {vL}\nv_and_b32 v47, 7, {vL}\nv_lshrrev_b32 v48, 4, {vL}\nv_xor_b32 v47, v47, v48")
e(f"v_add_u32 v46, {sCnt}, v46\nv_lshlrev_b32 v46, 10, v46\nv_lshl_add_u32 {vMisc}, v47, 4, v46")
e(f"s_add_u32 {sT1}, {sT1}, 3072")
e(f"s_lshl_b32 {sT4}, {sW}, 13\ns_add_u32 {sT4}, {sT4}, {LST}")
e(f"v_lshrrev_b32 v46, 5, {vL}\nv_bfe_u32 v47, {vL}, 3, 2\nv_bfe_u32 v48, {vL}, 2, 1\nv_and_b32 v49, 3, {vL}")
e(f"v_lshrrev_b32 v50, 1, v47\nv_xor_b32 v50, v48, v50\nv_lshlrev_b32 v50, 6, v50\nv_lshl_add_u32 v50, v49, 4, v50")
e(f"v_lshl_add_u32 v47, v46, 2, v47\nv_lshl_add_u32 {vW4d}, v47, 10, v50")
e(f"v_bfe_u32 v47, {vL}, 2, 2\nv_bfe_u32 v48, {vL}, 4, 1")
e(f"v_lshlrev_b32 v50, 9, v46\nv_lshl_add_u32 v50, v47, 7, v50\nv_lshl_add_u32 v50, v48, 5, v50\nv_lshl_add_u32 v50, v49, 3, v50")
e(f"v_add_u32 v50, {sT4}, v50\nv_lshrrev_b32 v47, 1, v47")
e(f"v_lshl_add_u32 v{W4T}, v47, 6, v50\nv_xor_b32 v47, 1, v47\nv_lshl_add_u32 v{W4T+1}, v47, 6, v50")
e(f"s_and_b32 {sT4}, {sW}, 1\ns_lshl_b32 {sT4}, {sT4}, 6\nv_xor_b32 v{W4T}, {sT4}, v{W4T}\nv_xor_b32 v{W4T+1}, {sT4}, v{W4T+1}")
CX = 104
e(f"s_lshl_b32 {sT4}, {sW}, 10\ns_add_u32 {sT4}, {sT4}, {LCX}\nv_add_u32 v{CX}, {sT4}, {vL16}")
for i in range(1, 4):
    e(f"v_xor_b32 v{CX+i}, {1024*i}, v{CX}")
for g in range(448): assert (g * 1171) >> 16 == g // 56
e(f"s_and_b32 {sT6}, {sM}, 1")
e(f"s_lshl_b32 {sT4}, {sT6}, 5")
e(f"s_cmp_eq_u32 {sT6}, 0\ns_cselect_b32 {sT5}, 192, 0")
for n in range(7):
    e(f"v_add_u32 v46, {64*n}, {vL}")
    e(f"v_mul_u32_u24 v47, 1171, v46\nv_lshrrev_b32 v47, 16, v47")
    e(f"v_mul_u32_u24 v48, 56, v47\nv_sub_u32 v46, v46, v48")
    e(f"v_lshrrev_b32 v48, 4, v46\nv_and_b32 v49, 3, v46\nv_lshlrev_b32 v48, 6, v48\nv_lshl_add_u32 v48, v49, 4, v48")
    e(f"v_add_u32 v48, {sT4}, v48\nv_bfe_u32 v49, v46, 2, 2")
    e(f"v_and_b32 v50, 1, v46\nv_lshlrev_b32 v50, 4, v50\nv_add_u32 v50, {sT5}, v50\nv_bfe_u32 v51, v46, 1, 2")
    e(f"v_cmp_lt_u32 vcc, 47, v46")
    e(f"v_cndmask_b32 v48, v48, v50, vcc\nv_cndmask_b32 v49, v49, v51, vcc")
    e(f"v_lshl_add_u32 v47, v47, 2, v49\nv_mul_u32_u24 v47, 3584, v47")
    if (n & 3) != 3:
        e(f"v_add_u32 v48, {3072 - 1024*(n&3)}, v48")
    e(f"v_add_u32 v{W3D+n}, v47, v48")
NL = OPT["pfl"]
e(f"s_lshr_b32 {sT4}, s2, 3\ns_mul_i32 {sT5}, {sT4}, {128*NL}\ns_lshl_b32 {sT6}, {sJ}, 7\ns_sub_u32 {sT5}, {sT5}, {sT6}\ns_add_u32 {sT5}, {sT5}, 3072")
e(f"v_lshlrev_b32 v112, 7, {vL}\nv_add_u32 v113, {sT5}, v112")
e(f"s_lshl2_add_u32 {sT4}, {sT4}, {sW}\ns_mul_i32 {sT4}, {sT4}, {128*NL}\ns_mul_i32 {sT6}, {sM}, 224\ns_sub_u32 {sT4}, {sT4}, {sT6}\ns_add_u32 {sT4}, {sT4}, 3072")
e(f"v_add_u32 v112, {sT4}, v112")
e(f"v_cmp_gt_u32 vcc, {NL}, {vL}\nv_mov_b32 v114, 0x40000000\nv_cndmask_b32 v112, v114, v112, vcc\nv_cndmask_b32 v113, v114, v113, vcc")
pfs = [0]


def pf(dyn=False):
    k = pfs[0]
    which = 1 if (k >= 112 // NL or dyn or OPT["pf3"] == 0) else 0
    e(f"buffer_load_dword v114, v{112+which}, {SW4 if which else SW3}, 0 offen", tag="pf")
    if dyn:
        A.untrack()
        e(f"v_add_u32 v113, {4096*NL}, v113\nv_min_u32 v113, 0x40000000, v113")
    else:
        e(f"v_add_u32 v{112+which}, {4096*NL if which else 16384*NL}, v{112+which}")
        pfs[0] += 1


def hook(name):
    o = []
    for t in str(OPT[name]).split("_"):
        if t in ("", "0"):
            continue
        k, n = (t.split("x") + ["1"])[:2]
        f = {"q": pf, "w3": lambda: w3_pump(1), "w4": lambda: w4_issue(1), "n": None}[k]
        o += [f] * int(n)
    return o


srd(32, 48, size=256)
tr_bases12(LW1, True)
Lr = lab("Lr")
e(f"s_cmp_lg_u32 {sT2}, 0\ns_cbranch_scc1 {Lr}")
e(f"s_waitcnt vmcnt({len(A.vm)})")
e("s_mov_b64 exec, 1")
e(f"buffer_store_dword {vOne}, v19, {SDBG}, 0 offen sc1")
A.untrack()
e("s_mov_b64 exec, -1")
e(f"{Lr}:")
stamp(2)
for p in range(4, 8): x_issue(p)
for n in range(4): w12_issue(1, 1, n)


def reduce_q(s, q, t):
    e(f"v_permlane32_swap_b32 v{s}, v{q}")
    e(f"v_add_f32 v{s}, v{s}, v{q}")
    e(f"v_mov_b32 v{t}, v{s}")
    e(f"v_permlane16_swap_b32 v{s}, v{t}")
    e(f"v_add_f32 v{s}, v{s}, v{t}")
    e(f"v_mov_b32 v{t}, v{s}")
    e(f"v_permlane32_swap_b32 v{s}, v{t}")


def x_read(p):
    e(f"ds_read_b128 {vr(BF+4*p)}, {vXr} offset:{16384*(p>>2) + 1024*(p&3)}", tag=f"xr{p}")


gomark = [0]


def go_ld(mod):
    e(f"buffer_load_dword v59, v60, {SDBG}, 0 offen {mod}")
    A.untrack()
    gomark[0] = A.nvm


def go_load():
    L = lab("Lgo")
    e(f"s_cmp_lg_u32 s40, 0\ns_cbranch_scc1 {L}")
    go_ld("sc0")
    e(f"{L}:")


def go_check(final=False):
    L, L2, L0 = lab("Lgo"), lab("Lgp"), lab("Lgs")
    e(f"s_cmp_lg_u32 s40, 0\ns_cbranch_scc1 {L}")
    e(f"s_waitcnt vmcnt({A.nvm - gomark[0]})")
    if final:
        e(f"s_mov_b32 s41, 0")
        e(f"{L0}:")
    e("v_cmp_ne_u32 vcc, 0, v59")
    e("s_cmp_eq_u32 vcc_lo, 15")
    e(f"s_cbranch_scc1 {L2}")
    go_ld("sc1" if final else "sc0")
    if final:
        e("s_waitcnt vmcnt(0)")
        e(f"s_add_u32 s41, s41, 1\ns_cmp_gt_u32 s41, 30000\ns_cbranch_scc1 L_end")
        e(f"s_branch {L0}")
    else:
        e(f"s_branch {L}")
    e(f"{L2}:")
    e("s_mov_b64 exec, 1\ns_mov_b32 s40, 1")
    e(f"buffer_store_byte v56, v57, {SWS}, 0 offen sc1")
    A.untrack()
    e("s_mov_b64 exec, 0xffff")
    e(f"buffer_load_dword v61, v58, {SWS}, 0 offen sc1")
    A.untrack()
    e("s_mov_b64 exec, -1")
    e(f"{L}:")


def p1_pre(i):
    if i % 16 == 0:
        c = i // 16
        A.wait_vm(f"x3" if c == 0 else f"w1c{c}")
        for p in {0: range(0, 4), 1: range(4, 8), 2: range(8, 16), 3: []}[c]:
            x_read(p)
        e("s_barrier")
        stamp(2)


SUMA, GRAM = 96, 100


def stat_mfma(p, which):
    if which:
        return f"v_mfma_f32_16x16x32_bf16 {vr(GRAM)}, {vr(BF+4*p)}, {vr(BF+4*p)}, {vr(GRAM) if p else '0'}"
    return f"v_mfma_f32_16x16x32_bf16 {vr(SUMA)}, {vr(ONES)}, {vr(BF+4*p)}, {vr(SUMA) if p else '0'}"


F = {i: [] for i in range(64)}
lq = [lambda p=p: x_issue(p) for p in range(8, 16)] + [lambda c=c, n=n: w12_issue(1, c, n) for c in (2, 3) for n in range(4)]
for i in range(16):
    F[i].append(lq[i])
F[OPT["hel"]].append(go_load)
for k in range(1, 4):
    F[min(48, OPT["hel"] + OPT["held"] * k)].append(go_check)
for p in range(8):
    F[4 * p + 1].append(stat_mfma(p, 0))
    F[4 * p + 2].append(stat_mfma(p, 1))
for k in range(16):
    F[32 + k].append(stat_mfma(8 + (k >> 1), k & 1))
F[OPT["w2b"]].append(lambda: A.wait_lg("xr15"))
for k in range(8):
    F[OPT["w2a"] + OPT["w2d"] * k].append(lambda k=k: w12_issue(2, k >> 2, k & 3))
    F[OPT["w2b"] + OPT["w2d"] * k].append(lambda k=k: w12_issue(2, 2 + (k >> 2), k & 3))
with Cap() as st:
    for r in range(4):
        mk = sum(1 << (20 * g + r) for g in range(4))
        e(f"s_mov_b32 vcc_lo, {mk & 0xffffffff}\ns_mov_b32 vcc_hi, {mk >> 32}")
        e(f"v_cndmask_b32 v41, {'0' if r == 0 else 'v41'}, v{GRAM+r}, vcc")
    e("v_mov_b32 v42, v41\nv_permlane32_swap_b32 v41, v42\nv_add_f32 v41, v41, v42")
    e("v_mov_b32 v42, v41\nv_permlane16_swap_b32 v41, v42\nv_add_f32 v41, v41, v42")
    stat_consts(SUMA, 41, 44)
    e(f"s_lshl_b32 {sT4}, {sS}, 2\ns_add_u32 {sT4}, {sT4}, {sW}\ns_lshl_b32 {sT4}, {sT4}, 14")
    e(f"s_lshl_b32 {sT3}, {sJ}, 11\ns_add_u32 {sT3}, {sT3}, {sT4}")
    e(f"s_lshr_b32 {sT2}, {sW}, 1\ns_lshl_b32 {sT2}, {sT2}, 10")
    e(f"s_add_u32 {sCnt}, {sT3}, {sT2}\ns_xor_b32 {sT2}, {sT2}, 1024\ns_add_u32 {sT2}, {sT3}, {sT2}")
for k, s_ in enumerate(st):
    F[49 + k // 3].append(s_)
F[62].append(lambda: e(f"ds_write_b128 v{CX}, {vr(ACC+16)}", tag="csw"))


def xres():
    e(f"s_lshr_b32 {sT5}, {sMode}, 1\ns_add_u32 m0, {sT5}, {LXR}")
    m0c[0] = None
    e(f"buffer_load_dwordx4 {vMisc}, {SX}, {sT1} offen lds", tag="xres")
    e(f"v_xor_b32 {vMisc}, 64, {vMisc}\ns_add_u32 {sT1}, {sT1}, {8192-1024}")
    e(f"buffer_load_dwordx4 {vMisc}, {SX}, {sT1} offen offset:1024 lds", tag="xres")


F[16].append(xres)
for k in range(OPT["pfa"], 64, OPT["pfd"]):
    F[k].append(pf)
with Cap() as st:
    tr_bases12(LW2, False, 108)
for k, s_ in enumerate(st):
    F[55 + k // 2].append(s_)

D = 10


def rd1(i):
    ks, sl = i >> 2, i & 3
    p1_pre(i)
    b = 192 + 4 * (i & 15)
    for r in range(2):
        e(f"ds_read_b64_tr_b16 {ar(b+2*r, 2)}, v{TRB+sl} offset:{4096*ks+2048*r}", tag=f"a{i}")


for i in range(D):
    rd1(i)
for i in range(64):
    ks, sl = i >> 2, i & 3
    if i + D < 64:
        rd1(i + D)
    if i % 2 == 0:
        A.wait_lg(f"a{i+1}")
    c = vr(ACC + 4 * sl) if ks > 0 else "0"
    e(f"v_mfma_f32_16x16x32_bf16 {vr(ACC+4*sl)}, {ar(192+4*(i&15))}, {vr(BF+4*ks)}, {c}")
    if sl == 0:
        c = vr(ACC + 16) if ks > 0 else "0"
        e(f"v_mfma_f32_16x16x32_bf16 {vr(ACC+16)}, {ar(192+4*(i&15))}, {vr(ONES)}, {c}")
    for f in F[i]:
        run(f)
stamp(1, 2)
go_check(True)
A.wait_vm("w2c3")
stamp(3)
A.wait_lg0()
e("s_barrier")
for i in range(1, 4):
    e(f"ds_read_b128 {vr(ACC+16+4*i)}, v{CX+i}", tag=f"cs{i}")
e(f"buffer_load_dword v59, v62, {SWS}, 0 offen sc0", tag="hel")
A.wait_lg0()
for i in range(4):
    for h in (0, 2):
        e(f"v_pk_fma_f32 {vr(ACC+4*i+h, 2)}, {vr(ACC+16+4*i+h, 2)}, v[{cI}:{cM}], {vr(ACC+4*i+h, 2)} op_sel:[0,1,0] op_sel_hi:[1,1,1]")
hG = hook("hG")
for i in range(4):
    if hG: run(hG.pop(0))
    for s_ in gelu4pk(ACC + 4 * i, TMP + 4 * (i & 1), [TMP + 8 + 2 * i, TMP + 9 + 2 * i]):
        e(s_)
Lx = lab("Lx")
e(f"s_bitcmp0_b32 {sW}, 0\ns_cbranch_scc1 {Lx}")
for i2 in range(2):
    for d in range(2):
        e(f"v_swap_b32 v{TMP+8+4*i2+d}, v{TMP+10+4*i2+d}")
e(f"{Lx}:")
e(f"buffer_store_dwordx4 {vr(TMP+8)}, {vL16}, {SWS}, {sCnt} offen{fl('gst')}", tag="gst")
e(f"buffer_store_dwordx4 {vr(TMP+12)}, {vL16}, {SWS}, {sT2} offen{fl('gst')}", tag="gst")
stamp(2, 3)
e(f"s_mul_i32 {sW3m}, {sW}, 7168\ns_lshl_b32 {sStg}, {sW}, 13\ns_add_u32 {sStg}, {sStg}, {LST}")
e(f"s_and_b32 {sW3o}, {sW}, 1\ns_mul_i32 {sW3o}, {sW3o}, 114688\ns_lshr_b32 {sT5}, {sW}, 1\ns_add_u32 {sT5}, {sT5}, {sRot3}")
for per in range(4):
    e(f"s_add_u32 s{W3B[per]}, {sT5}, {2*per}\ns_and_b32 s{W3B[per]}, s{W3B[per]}, 7\ns_mul_i32 s{W3B[per]}, s{W3B[per]}, 229376\ns_add_u32 s{W3B[per]}, s{W3B[per]}, {sW3o}")
hA = hook("hA")
for i in range(64):
    ks, sl = i >> 2, i & 3
    for r in range(2):
        e(f"ds_read_b64_tr_b16 {ar(4*i+2*r, 2)}, v{TRB+sl} offset:{4096*ks+2048*r}", tag="w2f")
        k = 2 * i + r - OPT["fr0"]
        if k >= 0 and k % OPT["frd"] == 0 and hA:
            run(hA.pop(0))
for f in hA: run(f)
assert w3s[0] <= 21
e(f"s_add_u32 s60, s28, {FLAG_OFF}\ns_addc_u32 s61, s29, 0")
for mm in range(4):
    e(f"s_add_u32 {sT6}, {sRep}, {mm}\ns_and_b32 {sT6}, {sT6}, 3\ns_and_b32 {sT5}, {sT6}, 1\ns_mul_i32 {sT6}, {sT6}, 7\ns_add_u32 {sT6}, {sT6}, {sT5}\ns_lshl_b32 s{KF[mm]}, {sT6}, 10")
    if mm < 2:
        e(f"s_cmp_eq_u32 {sT5}, 0\ns_cselect_b32 s{DH[mm]}, 6, -1\ns_lshl_b32 s{DH[mm]}, s{DH[mm]}, 10")
XA = 96
e(f"v_and_b32 v44, 15, {vL}\nv_lshrrev_b32 v45, 5, {vL}\nv_bfe_u32 v46, {vL}, 1, 3\nv_xor_b32 v45, v45, v46\nv_bfe_u32 v46, {vL}, 4, 1")
e(f"v_lshlrev_b32 v44, 7, v44\nv_lshl_add_u32 v44, v46, 3, v44\nv_lshl_add_u32 v44, v45, 4, v44")
e(f"s_lshr_b32 {sT5}, {sMode}, 1\ns_add_u32 {sT5}, {sT5}, {LXR}\nv_add_u32 v{XA}, {sT5}, v44")
for fb in range(1, 4):
    e(f"v_xor_b32 v{XA+fb}, {32*fb}, v{XA}")
for fb in range(4):
    e(f"ds_read_b64 {vr(100+2*fb, 2)}, v{XA+fb}", tag="xrr")
e(f"s_and_b32 {sPar}, {sM}, 1")
e(f"s_lshl_b32 {sT1}, {sS}, 2\ns_add_u32 {sT1}, {sT1}, {sW}\ns_lshl_b32 {sT1}, {sT1}, 10")
e(f"s_lshl_b32 {sT2}, {sJ}, 2\ns_add_u32 {sT2}, {sT2}, {sT1}\ns_add_u32 {sT2}, {sT2}, {FLAG_OFF}")
stamp(3)
A.wait_vm("gst")
stamp(3)
Lh, Lh2, Lh3 = lab("Lh"), lab("Lh2"), lab("Lh3")
e(f"v_cmp_eq_u32 vcc, {sHello}, v59")
e(f"s_mov_b32 {sMode}, 0\ns_mov_b32 {sCnt}, 0")
e(f"s_cmp_eq_u32 vcc_lo, 15\ns_cbranch_scc1 {Lh3}")
e(f"{Lh}:")
A.raw(f"s_load_dwordx4 s[36:39], s[42:43], 0 glc")
e("s_waitcnt lgkmcnt(0)")
e("s_and_b64 s[40:41], s[36:37], s[38:39]\ns_and_b32 s40, s40, s41\ns_and_b32 s40, s40, 0x80808080")
e(f"s_cmp_eq_u32 s40, 0x80808080\ns_cbranch_scc1 {Lh2}")
e(f"s_add_u32 {sCnt}, {sCnt}, 1\ns_cmp_gt_u32 {sCnt}, 30000\ns_cbranch_scc1 L_end")
e(f"s_branch {Lh}")
e(f"{Lh2}:")
for i in range(4): e(f"s_xor_b32 s{36+i}, s{36+i}, {sHello}")
e("s_or_b64 s[36:37], s[36:37], s[38:39]\ns_or_b32 s36, s36, s37")
e(f"s_cselect_b32 {sMode}, 4096, 0")
e(f"{Lh3}:")
publish(sT2, 16)
A.wait_lg("xrr")
for fb in range(4):
    e(f"v_add_u32 v{XA+fb}, {LX1R-LXR}, v{XA+fb}")
    for d in range(2):
        e(f"v_lshlrev_b32 v{ACC+4*fb+2*d}, 16, v{100+2*fb+d}")
        e(f"v_and_b32 v{ACC+4*fb+2*d+1}, 0xffff0000, v{100+2*fb+d}")
for pp in range(8):
    e(f"s_add_u32 s{44+pp}, {sRot1}, {pp}\ns_and_b32 s{44+pp}, s{44+pp}, 7\ns_lshl_b32 s{44+pp}, s{44+pp}, 11\ns_add_u32 s{44+pp}, s{44+pp}, {sT4}")
A.wait_lg0()
e("s_barrier")
for n in range(1, 4):
    e(f"v_add_u32 {W4V[n]}, {7168*n}, {vW4d}")
for f in hook("hB"): run(f)
GB = BF + 64
poll(sT1, 8, 16, None, (lambda: pf(True)) if OPT["pfp"] & 1 else None)
stamp(1, 3)


def g_issue(p):
    e(f"buffer_load_dwordx4 {vr(GB+4*p)}, {vL16}, {SWS}, s{44+(p>>1)} offen offset:{1024*(p&1)}{fl('ld')}", tag=f"g{p}")


NG0 = OPT["ng0"]
for p in range(NG0):
    g_issue(p)
e(f"s_lshl_b32 {sT1}, {sS}, 1\ns_lshr_b32 {sT2}, {sW}, 1\ns_add_u32 {sT1}, {sT1}, {sT2}")
e(f"s_lshl_b32 {sT6}, {sT1}, 10")
e(f"s_lshl_b32 {sT2}, {sT1}, 15\ns_lshl_b32 {sT3}, {sJ}, 12\ns_add_u32 {sT2}, {sT2}, {sT3}")
e(f"s_and_b32 {sT3}, {sW}, 1\ns_lshl_b32 {sT4}, {sT3}, 8\ns_add_u32 {sT2}, {sT2}, {sT4}\ns_add_u32 {sT2}, {sT2}, {X1_OFF}")
e(f"s_lshl_b32 {sT1}, {sT1}, 11\ns_lshl_b32 {sT4}, {sJ}, 8\ns_add_u32 {sT1}, {sT1}, {sT4}")
e(f"s_lshl_b32 {sT4}, {sT3}, 7\ns_add_u32 {sT1}, {sT1}, {sT4}\ns_add_u32 {sT1}, {sT1}, {STAT_OFF}")
e(f"s_lshl_b32 {sT3}, {sT3}, 3\ns_add_u32 {sT3}, {sT3}, {sJ}\ns_lshl_b32 {sT3}, {sT3}, 2")
e(f"s_add_u32 {sT3}, {sT6}, {sT3}\ns_add_u32 {sT3}, {sT3}, {FLAG_OFF + 8192}")
e(f"v_and_b32 v54, 15, {vL}\nv_lshrrev_b32 v55, 4, {vL}\nv_lshlrev_b32 v56, 3, v54\nv_lshlrev_b32 v54, 4, v54\nv_lshl_add_u32 v54, v55, 10, v54")
e(f"v_lshrrev_b32 v40, 5, {vL}\nv_bfe_u32 v41, {vL}, 4, 1\nv_bfe_u32 v42, {vL}, 2, 2\nv_and_b32 v43, 3, {vL}")
e(f"v_mul_u32_u24 v44, {896*8}, v40")
e(f"v_lshl_add_u32 v45, v42, 6, v44\nv_lshl_add_u32 v45, v41, 5, v45\nv_lshl_add_u32 v{TRB}, v43, 3, v45")
e(f"v_add_u32 v{TRB+1}, {896*64}, v{TRB}")
e(f"v_mul_u32_u24 v45, 896, v41\nv_add_u32 v44, v44, v45\nv_lshl_add_u32 v44, v42, 5, v44")
e(f"v_and_b32 v45, 1, v43\nv_lshrrev_b32 v43, 1, v43\nv_lshl_add_u32 v43, v45, 1, v43\nv_lshl_add_u32 v44, v43, 3, v44")
e(f"v_add_u32 v{TRB+2}, 768, v44\nv_add_u32 v{TRB+3}, {768+896*64}, v44")
e(f"v_bfe_u32 v42, {vL}, 2, 1\nv_cmp_eq_u32 vcc, v42, v41")
e(f"v_cndmask_b32 v{ASEL}, 0, v{ONES}, vcc")
for i in range(1, 4): e(f"v_mov_b32 v{ASEL+i}, v{ASEL}")
CSA = 124
e(f"s_mul_i32 {sT4}, {sW}, {896*16}")
e(f"v_add_u32 v{CSA}, {sT4}, v{TRB}\nv_add_u32 v{CSA+1}, {sT4}, v{TRB+2}")
e(f"v_and_b32 v48, 31, {vL}\nv_lshlrev_b32 v48, 3, v48\nv_lshl_add_u32 v48, v40, 10, v48")
F = {i: [] for i in range(64)}
lq = [lambda p=p: g_issue(p) for p in range(NG0, 16)] + hook("hC")
for k, f in enumerate(lq):
    F[k * OPT["p2d"]].append(f)
for i in range(64):
    ks, sl = i >> 2, i & 3
    if sl == 0:
        A.wait_vm(f"g{ks}")
    e(f"v_mfma_f32_16x16x32_bf16 {vr(ACC+4*sl)}, {ar(4*i)}, {vr(GB+4*ks)}, {vr(ACC+4*sl)}")
    for f in F[i]:
        run(f)
stamp(1, 3)
for i in range(8):
    e(f"v_cvt_pk_bf16_f32 v{X1P+i}, v{ACC+2*i}, v{ACC+2*i+1}")
e(f"buffer_store_dwordx4 {vr(X1P)}, v54, {SWS}, {sT2} offen{fl('xst')}", tag="xst")
e(f"buffer_store_dwordx4 {vr(X1P+4)}, v54, {SWS}, {sT2} offen offset:512{fl('xst')}", tag="xst")
for i in range(8):
    e(f"v_dot2_f32_bf16 v40, v{X1P+i}, v{ONES}, {'0' if i == 0 else 'v40'}")
    e(f"v_dot2_f32_bf16 v42, v{X1P+i}, v{X1P+i}, {'0' if i == 0 else 'v42'}")
reduce_q(40, 42, 41)
e("s_mov_b64 exec, 0xffff")
e(f"buffer_store_dwordx2 v[40:41], v56, {SWS}, {sT1} offen{fl('xst')}", tag="xst")
e("s_mov_b64 exec, -1")
for f in hook("hD"): run(f)
for fb in range(4):
    e(f"ds_write_b64 v{XA+fb}, {vr(X1P+2*fb, 2)}", tag="x1r")
e(f"s_lshl_b32 {sT4}, {sW}, 11\ns_add_u32 {sT4}, {sT4}, {STAT_OFF}")
e(f"s_lshl_b32 {sT1}, {sW}, 10\ns_add_u32 {sT1}, {sT1}, 8192")
YT = list(range(8, 16))
e(f"s_lshl_b32 {sT5}, {sW}, 15\ns_add_u32 {sT5}, {sT5}, {X1_OFF}")
for bp in range(8):
    e(f"s_add_u32 s{YT[bp]}, {sRot3}, {bp}\ns_and_b32 s{YT[bp]}, s{YT[bp]}, 7\ns_lshl_b32 s{YT[bp]}, s{YT[bp]}, 12\ns_add_u32 s{YT[bp]}, s{YT[bp]}, {sT5}")
stamp(3)
A.wait_vm("xst")
stamp(3)
publish(sT3, 16)
for f in hook("hE"): run(f)
assert w3s[0] == 28
CS = ACC + 32


def cs_items(part):
    it = []
    for q in range(4):
        for b in range(3):
            it.append((CSA, 896 * (64 * part + q) + 256 * b, b))
        if q % 2 == 0:
            it.append((CSA + 1, 896 * (64 * part + q), 3))
    return it


sHs, sHh, sP3 = sT2, "s62", "s63"
e(f"s_mul_i32 {sHh}, {sW}, 112\ns_mul_i32 {sHs}, {sM}, 7\ns_add_u32 {sHh}, {sHh}, {sHs}\ns_lshl_b32 {sHh}, {sHh}, 10\ns_add_u32 {sHh}, {sHh}, {H3_OFF}")
e(f"s_lshl_b32 {sHs}, {sPar}, 10\ns_add_u32 {sHs}, {sHs}, {sHh}")
e(f"s_cmp_eq_u32 {sPar}, 0\ns_cselect_b32 {sT5}, 6144, 0\ns_add_u32 {sHh}, {sHh}, {sT5}")
e(f"s_lshr_b32 {sP3}, {sW}, 1\ns_lshl_b32 {sP3}, {sP3}, 2\ns_lshr_b32 {sT5}, {sM}, 2\ns_add_u32 {sP3}, {sP3}, {sT5}\ns_lshl_b32 {sP3}, {sP3}, 11")
e(f"s_and_b32 {sT5}, {sM}, 3\ns_lshl_b32 {sT5}, {sT5}, 3\ns_add_u32 {sP3}, {sP3}, {sT5}")
e(f"s_and_b32 {sT5}, {sW}, 1\ns_lshl_b32 {sT5}, {sT5}, 2\ns_add_u32 {sP3}, {sP3}, {sT5}")
e(f"s_add_u32 {sP3}, {sP3}, {FLAG_OFF + 16384}")
HA = [4, 5, 6, 7]
e(f"s_mul_i32 {sH0}, {sS}, 224\ns_mul_i32 {sT5}, {sW}, 28\ns_add_u32 {sH0}, {sH0}, {sT5}")
e(f"s_lshl_b32 {sH0}, {sH0}, 10\ns_add_u32 {sH0}, {sH0}, {H3_OFF}")
for mm in range(4):
    e(f"s_add_u32 s{HA[mm]}, {sH0}, s{KF[mm]}")
vH = ["v11", "v56"]
e(f"s_lshr_b32 {sT5}, {sW}, 1\ns_mul_i32 {sT5}, {sT5}, {112*1024}\nv_add_u32 {vH[0]}, {sT5}, {vL16}")
e(f"s_sub_u32 {sT5}, {112*1024}, {sT5}\nv_add_u32 {vH[1]}, {sT5}, {vL16}")
e(f"s_lshl_b32 {sT5}, {sW}, 10\ns_add_u32 {sT5}, {sT5}, {LMISC}")
e(f"v_add_u32 v126, {sT5}, {vL16}\nv_add_u32 v127, {LMISC}, {vL16}")
sQ3 = sT3
e(f"s_lshl_b32 {sQ3}, {sS}, 2\ns_add_u32 {sQ3}, {sQ3}, {sW}\ns_lshl_b32 {sQ3}, {sQ3}, 11\ns_add_u32 {sQ3}, {sQ3}, 16384")
A.wait_vm("w3")
A.wait_lg0()
e("s_barrier")
stamp(4)
for f in hook("hF"): run(f)
w4_issue(8 - w4s["iss"])
items = cs_items(0) + cs_items(1)
D = 6
cs_seen = set()
hS = hook("hS")
for i in range(len(items) + D):
    if i < len(items):
        bs, off, b = items[i]
        for r in range(2):
            e(f"ds_read_b64_tr_b16 {ar(AB+4*(i&7)+2*r, 2)}, v{bs} offset:{off+896*4*r}", tag=f"a{i}")
    k = i - D
    if k >= 0:
        if k % 2 == 0:
            A.wait_lg(f"a{k+1}")
        bs, off, b = items[k]
        c = vr(CS + 4 * b) if b in cs_seen else "0"
        cs_seen.add(b)
        if k % 4 == 1 and hS: run(hS.pop(0))
        e(f"v_mfma_f32_16x16x32_bf16 {vr(CS+4*b)}, {vr(ASEL if b < 3 else ONES)}, {ar(AB+4*(k&7))}, {c}")
HD = ACC + 48
AP = 12
BH = 22
BP = 120
S0 = TMP


def w3_addr(ks, b, r):
    j, q = ks >> 2, ks & 3
    hi = j >= 4
    off = 896 * (16 * (j - 4 * hi) + q + 4 * r)
    if b < 3:
        return TRB + hi, off + 256 * b
    return TRB + 2 + hi, off


items = [(ks, b) for ks in range(32) for b in range(2)]
NA = 64
for p in range(17):
    if p < 16:
        items += [(2 * p, 2), (2 * p + 1, 2)]
    if p > 0:
        items += [(2 * p - 2, 3)]
nrd = [0]


def rd3(upto):
    while nrd[0] <= upto and nrd[0] < len(items):
        i = nrd[0]
        ks, b = items[i]
        for r in range(2):
            bs, off = w3_addr(ks, b, r)
            e(f"ds_read_b64_tr_b16 {ar(AB+4*(i&7)+2*r, 2)}, v{bs} offset:{off}", tag=f"a{i}")
        nrd[0] += 1


def cs_exchange():
    for b in range(4):
        e(f"v_mov_b32 v{S0+b}, v{CS+4*b}")
    e(f"ds_write_b128 v126, {vr(S0)}", tag="csw")
    A.wait_lg0()
    e("s_barrier")
    for i in range(4):
        e(f"ds_read_b128 {vr(CS+4*i)}, v127 offset:{1024*i}", tag="cs")
    rd3(5)


cs_exchange()


def cs_finish():
    A.wait_lg("cs")
    for b in range(0, 4, 2):
        e(f"v_pk_add_f32 {vr(CS+b, 2)}, {vr(CS+b, 2)}, {vr(CS+4+b, 2)}\nv_pk_add_f32 {vr(CS+8+b, 2)}, {vr(CS+8+b, 2)}, {vr(CS+12+b, 2)}")
    for b in range(0, 4, 2):
        e(f"v_pk_add_f32 {vr(CS+b, 2)}, {vr(CS+b, 2)}, {vr(CS+8+b, 2)}")
    for b in range(4):
        e(f"v_cvt_pk_bf16_f32 v{AP+2*b}, v{CS+b}, v{CS+b}")
        e(f"v_and_b32 v{S0}, 0xffff0000, v{AP+2*b}")
        e(f"v_sub_f32 v{S0}, v{CS+b}, v{S0}")
        e(f"v_cvt_pk_bf16_f32 v{AP+2*b+1}, v{S0}, v{S0}")
    e(f"v_mov_b32 v{AP+8}, 0\nv_mov_b32 v{AP+9}, 0")
    e(f"v_mov_b32 v{BH}, 0\nv_mov_b32 v{BH+2}, 0\nv_mov_b32 v{BH+3}, 0\nv_mov_b32 v{BP+2}, 0\nv_mov_b32 v{BP+3}, 0")


poll(sT1, 16, 16, cs_finish, (lambda: pf(True)) if OPT["pfp"] & 2 else None)
stamp(1, 3, 4)


def y_issue(ks):
    e(f"buffer_load_dwordx4 {vr(BF+4*ks)}, {vL16}, {SWS}, s{YT[ks>>2]} offen offset:{1024*(ks&3)}{fl('ld')}", tag=f"y{ks}")


def st_issue(jj):
    e(f"buffer_load_dwordx2 {vr(S0+2*jj, 2)}, v48, {SWS}, {sT4} offen offset:{256*jj} sc1", tag="st")


NY0 = OPT["ny0"]
for ks in range(NY0):
    y_issue(ks)
    if ks == 3:
        for jj in range(4): st_issue(jj)
F = {i: [] for i in range(len(items))}
for k, ks in enumerate(range(NY0, 32)):
    F[2 * k].append(lambda ks=ks: y_issue(ks))
with Cap() as st:
    e(f"v_add_f32 v{S0}, v{S0}, v{S0+2}\nv_add_f32 v{S0+1}, v{S0+1}, v{S0+3}\nv_add_f32 v{S0+4}, v{S0+4}, v{S0+6}\nv_add_f32 v{S0+5}, v{S0+5}, v{S0+7}")
    e(f"v_add_f32 v{S0}, v{S0}, v{S0+4}\nv_add_f32 v{S0+1}, v{S0+1}, v{S0+5}")
    e(f"v_mov_b32 v{S0+2}, v{S0}\nv_mov_b32 v{S0+3}, v{S0+1}")
    e(f"v_permlane32_swap_b32 v{S0}, v{S0+2}\nv_permlane32_swap_b32 v{S0+1}, v{S0+3}")
    e(f"v_add_f32 v{S0}, v{S0}, v{S0+2}\nv_add_f32 v{S0+1}, v{S0+1}, v{S0+3}")
    stat_consts(S0, S0 + 1, S0 + 2)
    e(f"v_cvt_pk_bf16_f32 v{S0}, v{cM}, v{cM}\nv_and_b32 v{S0}, 0xffff0000, v{S0}\nv_sub_f32 v{S0}, v{cM}, v{S0}")
    e(f"v_cvt_pk_bf16_f32 v{S0}, v{cM}, v{S0}")
    e(f"v_cmp_gt_u32 vcc, 32, {vL}")
    e(f"v_cndmask_b32 v{BP}, 0, v{S0}, vcc")
    e(f"v_mov_b32 v{BP+1}, v{BP}\nv_mov_b32 v{BH+4}, v{BP}")
    e(f"v_permlane16_swap_b32 v{BH+4}, v{BH}")
    e(f"v_mov_b32 v{BH+5}, v{BH+4}\nv_mov_b32 v{BH+1}, v{BH}")
IS = 64 - (len(st) + 2) // 3
for k, s_ in enumerate(st):
    F[IS + k // 3].append(s_)
wq = []
for c in range(OPT["wa0"] and 2):
    wq += [lambda: w4_read(2), lambda: w4_read(2)]
for k, f in enumerate(wq):
    F[OPT["wa0"] + 2 * k + 1].append(f)
i0 = 2 * (32 - NY0)
if OPT["wa0"]:
    F[i0].append(w4_release)
    for k in range(8):
        F[i0 + k * OPT["wad"]].append(lambda: w4_issue(1))
for k, f in enumerate(hook("hP")):
    F[1 + 4 * k].append(f)
started = set()


def corr(b):
    e(f"v_mfma_f32_32x32x16_bf16 {vr(ACC+16*b, 16)}, {vr(AP+2*b)}, {vr(BP)}, {vr(ACC+16*b, 16)}")


def mf3(i):
    ks, b = items[i]
    if b < 3:
        c = vr(ACC + 16 * b, 16) if b in started else "0"
        e(f"v_mfma_f32_32x32x16_bf16 {vr(ACC+16*b, 16)}, {ar(AB+4*(i&7))}, {vr(BF+4*ks)}, {c}")
    else:
        for u in range(2):
            c = vr(HD + 4 * u) if b in started else "0"
            e(f"v_mfma_f32_16x16x32_bf16 {vr(HD+4*u)}, {ar(AB+4*(i&7))}, {vr(BF+4*ks+4*u)}, {c}")
    started.add(b)


for i in range(NA):
    ks, b = items[i]
    if b == 0:
        rd3(i + 7)
        A.wait_vm(f"y{ks}")
        A.wait_lg(f"a{i+1}")
    if i == 32:
        stamp(4)
    mf3(i)
    for f in F[i]:
        run(f)
corr(0)
corr(1)
stamp(1, 4)


def h3_store(dsts, blk):
    for c2 in range(2):
        off = 2048 * blk + 1024 * c2
        if off == 4096:
            e(f"s_add_u32 {sHs}, {sHs}, 4096")
        e(f"buffer_store_dwordx4 {vr(dsts+4*c2)}, {vL16}, {SWS}, {sHs} offen offset:{off&4095}{fl('hst')}", tag=f"h{blk}")


def epi_pk(acc, T, dsts, fill, ng=4):
    k = 0
    for g in range(ng):
        for s_ in gelu4pk(acc + 4 * g, T + 4 * (g & 1), [dsts + 2 * g, dsts + 2 * g + 1]):
            e(s_)
            k += 1
            if k % 5 == 0 and fill:
                run(fill.pop(0))


def pub3(tag):
    A.wait_vm(tag)
    publish(sP3, 8)
    e(f"s_add_u32 {sP3}, {sP3}, 512")


fill = []
for c in range(OPT["wg"]):
    fill += [f for f in w4_cycle()] + [None] * 7
epi_pk(ACC, TMP, TMP + 8, fill)
h3_store(TMP + 8, 0)
epi_pk(ACC + 16, TMP, X1P, fill)
h3_store(X1P, 1)
for f in fill:
    run(f)
stamp(4, 5)
fill = []
for c in range(OPT["wb"]):
    fill += w4_cycle() + [None] * OPT["wbg"]
zs = [0]


def z_issue(n=1):
    for _ in range(n):
        z = zs[0]
        if z >= 56:
            return
        mm, ksl = P4K[z >> 1]
        blk, c2 = KSL[ksl]
        tb = z & 1
        so, off = f"s{HA[mm]}", 2048 * blk + 1024 * c2
        if blk == 3:
            so, off = sT5, 0
            if tb == 0:
                e(f"s_add_u32 {sT5}, s{HA[mm]}, s{DH[mm&1]}")
        elif blk == 2:
            so, off = sT5, 1024 * c2
            if tb == 0 and c2 == 0:
                e(f"s_add_u32 {sT5}, s{HA[mm]}, 4096")
        e(f"buffer_load_dwordx4 {vr(BF+4*(z&31))}, {vH[tb]}, {SWS}, {so} offen offset:{off}{fl('ld')}", tag=f"z{z}")
        zs[0] += 1


def phb(lo, hi, zz):
    for i in range(lo, hi):
        ks, b = items[i]
        rd3(i + 6)
        A.wait_lg(f"a{i}")
        mf3(i)
        if b == 2 and ks % 2 == 0 and ks > 0 or i == len(items) - 2:
            k2 = ks - 2 if i != len(items) - 2 else 30
            if i == len(items) - 2:
                corr(2)
            for d in range(4):
                e(f"v_permlane16_swap_b32 v{BF+4*k2+d}, v{BF+4*k2+4+d}")
        if i == NA + 3 * OPT["pubb"]:
            pub3("h1")
        elif i > NA + 2:
            for _ in range(OPT["wbn"]):
                if fill:
                    run(fill.pop(0))
        if zz and zs[0] < OPT["zla"]:
            z_issue(1)


PA = NA + OPT["pola"]
phb(NA, PA, 0)
poll(sQ3, 8, 8, lambda: phb(PA, PA + 4, 0))
stamp(5)
e(f"s_add_u32 {sQ3}, {sQ3}, 512")
phb(PA + 4, len(items), 1)
e(f"v_mfma_f32_16x16x32_bf16 {vr(HD)}, {vr(AP+4)}, {vr(BH+2)}, {vr(HD)}")
e(f"v_mfma_f32_16x16x32_bf16 {vr(HD+4)}, {vr(AP+6)}, {vr(BH)}, {vr(HD+4)}")
for f in fill:
    run(f)
stamp(1, 4, 5)
sys.stderr.write(f"w4 state at P3 end {w4s}\n")
def tail1():
    e(f"v_and_b32 v60, 31, {vL}\nv_bfe_u32 v61, {vL}, 1, 3\nv_lshrrev_b32 v62, 5, {vL}")
    e(f"s_and_b32 {sT5}, {sW}, 1\ns_lshl_b32 {sT5}, {sT5}, 2\nv_xor_b32 v61, {sT5}, v61")
    e(f"s_lshr_b32 {sT5}, {sW}, 1\ns_lshl_b32 {sT5}, {sT5}, 12\ns_add_u32 {sT5}, {sT5}, {LX1R}")
    e(f"v_lshl_add_u32 v60, v60, 7, {sT5}\nv_lshl_add_u32 v60, v61, 4, v60\nv_lshl_add_u32 v60, v62, 3, v60")
    for g in range(1, 4):
        e(f"v_xor_b32 v{60+g}, {16*g}, v60")
    for g in range(4):
        e(f"ds_read_b64 {vr(ACC+16+2*g, 2)}, v{60+g}", tag="xr")
    epi_pk(ACC + 32, TMP, TMP + 8, [])
    h3_store(TMP + 8, 2)


z_issue(OPT["zla"] - zs[0])
tail1()
for d in range(4):
    e(f"v_permlane16_swap_b32 v{HD+d}, v{HD+4+d}")
epi_pk(HD, TMP, X1P, [], 2)
e(f"buffer_store_dwordx4 {vr(X1P)}, {vL16}, {SWS}, {sHh} offen{fl('hst')}", tag="h3")
A.wait_lg("xr")
for g in range(4):
    for d in range(2):
        e(f"v_lshlrev_b32 v{ACC+4*g+2*d}, 16, v{ACC+16+2*g+d}")
        e(f"v_and_b32 v{ACC+4*g+2*d+1}, 0xffff0000, v{ACC+16+2*g+d}")
stamp(1, 4, 5)
started = {0}
F = {i: [] for i in range(112)}
F[OPT["pub2"]].append(lambda: (pub3("h3"), stamp(5)))

fill = []
while len(fill) // 8 * 4 + w4s["con"] < 56:
    fill += w4_cycle() + [None]
for k, f in enumerate(fill):
    F[1 + k].append(f)
with Cap() as st:
    e("s_barrier")
    e(f"s_lshl_b32 {sT4}, {sW}, 14\nv_add_u32 v40, {sT4}, {vL16}")
    for i in range(1, 4):
        e(f"v_xor_b32 v{40+i}, {16384*i}, v40")
    e(f"s_lshr_b32 {sT1}, {sW}, 1\ns_lshl_b32 {sT1}, {sT1}, 15\ns_and_b32 {sT4}, {sW}, 1\ns_lshl_b32 {sT4}, {sT4}, 6\ns_add_u32 {sT1}, {sT1}, {sT4}")
    if OPT["otr"]:
        e(f"v_and_b32 v44, 31, {vL}\nv_lshrrev_b32 v45, 5, {vL}\nv_bfe_u32 v46, {vL}, 1, 2\nv_lshlrev_b32 v44, 6, v44")
        e(f"v_lshl_add_u32 v44, v45, 3, v44\nv_lshl_add_u32 v44, v46, 4, v44\ns_lshl_b32 {sT4}, {sW}, 14\nv_add_u32 v32, {sT4}, v44")
        for g in range(1, 4):
            e(f"v_xor_b32 v{32+g}, {16*g}, v32")
        e(f"v_bfe_u32 v45, {vL}, 3, 2\nv_lshlrev_b32 v45, 4, v45\nv_xor_b32 v36, v45, v40")
        e(f"v_lshrrev_b32 v44, 2, {vL}\nv_and_b32 v45, 3, {vL}\nv_lshlrev_b32 v44, 10, v44\nv_lshl_add_u32 v44, v45, 4, v44")
        e(f"s_add_u32 {sT4}, {sT1}, 16384")
    else:
        e(f"v_and_b32 v44, 31, {vL}\nv_lshrrev_b32 v45, 5, {vL}\nv_lshlrev_b32 v44, 10, v44\nv_lshl_add_u32 v44, v45, 4, v44")
for k, s_ in enumerate(st):
    F[92 + k // 2].append(s_)


def p4(lo, hi):
    for i in range(lo, hi):
        z, b = i >> 1, i & 1
        mm, ksl = P4K[z >> 1]
        if b == 0:
            A.wait_vm(f"z{z}")
            if z % 4 == 0:
                assert w4s["con"] >= z + 4, (z, w4s)
                A.wait_lg(f"w4c{z+3}")
        sl = 2 * (z & 1) + b
        c = vr(ACC + 16 * sl, 16) if sl in started else "0"
        started.add(sl)
        e(f"v_mfma_f32_32x32x16_bf16 {vr(ACC+16*sl, 16)}, {ar(8*(7*mm+ksl)+4*b)}, {vr(BF+4*(z&31))}, {c}")
        if b == 1 and zs[0] < lim[0] and zs[0] - z <= OPT["zla"]:
            z_issue(1)
        for f in F[i]:
            run(f)


lim = [32]
P2_ = OPT["pol2"]
p4(0, P2_)
stamp(5)
poll(sQ3, 8, 8, lambda: p4(P2_, P2_ + 8))
stamp(4, 5)
lim = [56]
z_issue(min(4, OPT["zla"] - (zs[0] - (P2_ + 8) // 2)))
p4(P2_ + 8, 112)
stamp(1, 5)
for i in range(1, 4):
    for g in range(4):
        e(f"ds_write_b128 v{40+i}, {vr(ACC+16*i+4*g)} offset:{RED+4096*i+1024*g}", tag="rw")
A.wait_lg0()
e("s_barrier")
for g in range(4):
    for i in range(1, 4):
        e(f"ds_read_b128 {vr(BF+16*i+4*g)}, v40 offset:{RED+4096*i+1024*g}", tag=f"rr{g}")
for g in range(4):
    A.wait_lg(f"rr{g}")
    r, a = BF + 4 * g, ACC + 4 * g
    for h in (0, 2):
        e(f"v_pk_add_f32 {vr(a+h, 2)}, {vr(a+h, 2)}, {vr(r+16+h, 2)}")
        e(f"v_pk_add_f32 {vr(r+32+h, 2)}, {vr(r+32+h, 2)}, {vr(r+48+h, 2)}")
    for h in (0, 2):
        e(f"v_pk_add_f32 {vr(a+h, 2)}, {vr(a+h, 2)}, {vr(r+32+h, 2)}")
    for d in range(2):
        e(f"v_cvt_pk_bf16_f32 v{TMP+8+2*g+d}, v{a+2*d}, v{a+2*d+1}")
    if OPT["otr"]:
        e(f"ds_write_b64 v{32+g}, {vr(TMP+8+2*g, 2)} offset:{RED}", tag="ow")
    elif g % 2 == 1:
        o = TMP + 8 + 4 * (g >> 1)
        e(f"v_permlane32_swap_b32 v{o}, v{o+2}\nv_permlane32_swap_b32 v{o+1}, v{o+3}")
        e(f"buffer_store_dwordx4 {vr(o)}, v44, {SOUT}, {sT1} offen offset:{32*(g>>1)}{fl('ost')}", tag="o")
if OPT["otr"]:
    for i2 in range(2):
        e(f"ds_read_b128 {vr(BF+4*i2)}, v36 offset:{RED+1024*i2}", tag=f"or{i2}")
    for i2 in range(2):
        A.wait_lg(f"or{i2}")
        e(f"buffer_store_dwordx4 {vr(BF+4*i2)}, v44, {SOUT}, {(sT1, sT4)[i2]} offen{fl('ost')}", tag="o")
if PROF:
    stamp(5)
    A.wait_vm0()
    stamp(1, 5)
    A.wait_lg0()
    e("s_load_dwordx2 s[36:37], s[0:1], 56")
    A.wait_lg0()
    e(f"s_mov_b32 {sT1}, {PROF_OFF}")
    srd(28, 36, add=sT1, size=1 << 20)
    e(f"s_lshl_b32 {sT1}, s2, 2\ns_add_u32 {sT1}, {sT1}, {sW}\ns_lshl_b32 {sT1}, {sT1}, 6")
    e("v_mov_b32 v2, 0")
    for i in range(nstamp[0]):
        e(f"v_mov_b32 v3, s{82+2*i}")
        e(f"buffer_store_dword v3, v2, {SWS}, {sT1} offen offset:{4*i}")
    if OPT["dbg"]:
        e(f"s_lshl_b32 {sT4}, s2, 2\ns_add_u32 {sT4}, {sT4}, {sW}\ns_cmp_lg_u32 {sT4}, {OPT['dbg']}\ns_cbranch_scc1 L_end")
        e("s_mov_b64 exec, 1")
        for i in range(nstamp[0]):
            e(f"s_sub_u32 {sT4}, s{82+2*i}, s82\nv_mov_b32 v3, {sT4}")
            e(f"buffer_store_dword v3, v2, {SDBG}, 0 offen offset:{4*i} sc1")
        e(f"v_mov_b32 v3, {sMode}\nbuffer_store_dword v3, v2, {SDBG}, 0 offen offset:40 sc1")
        e("s_mov_b64 exec, -1")
    e(f"v_mov_b32 v3, {sMode}")
    e(f"buffer_store_dword v3, v2, {SWS}, {sT1} offen offset:60")
e("L_end:")
e("s_endpgm")
A.raw("L_codeend:")
A.raw('.section .rodata,"a"\n.p2align 6\n.amdhsa_kernel standalone__mixer_s_mlp__prompt_kernel')
A.raw("""  .amdhsa_next_free_vgpr 512
  .amdhsa_next_free_sgpr 102
  .amdhsa_accum_offset 256
  .amdhsa_group_segment_fixed_size 0
  .amdhsa_kernarg_size 64
  .amdhsa_user_sgpr_count 2
  .amdhsa_user_sgpr_kernarg_segment_ptr 1
  .amdhsa_system_sgpr_workgroup_id_x 1
.end_amdhsa_kernel""")
sys.stdout.write(A.text())
sys.stderr.write(f"lines {len(A.lines)} nops {A.nnop} stamps {nstamp[0]}\n")
```

```python
import sys, math, struct
sys.path.insert(0, "tools")
from asmlib import Asm

OPT = dict(r1=16, r2=16, r3=8, fst="none", dbg=0, pfl=56, rot3=0, pfp=0, pfw=1, pfa=34, pfd=15, hG="", hS="", hP="nx9_q", pola=30, wbn=1, wbg=1, otr=1, hA="nx6_w3x14", hB="", hC="w3x14", hD="q", hE="", hF="", wa0=22, wad=1, wg=3, wb=5, pubb=5, zla=12, pub2=20, pol2=40, w4p=0, w2a=17, w2b=25, w2d=1, pf3=1, pf4="-1", pf4a=0, pf4b=0, ld="sc1", ng0=12, p2n=7, nb1=7, na1=4, fr0=24, frd=5, tlb=0, hel=7, held=15, ny0=12, na0=10, p2s=4, p2d=2, nb0=0, w4o="la", w4s=50, w4d=3, prof=0, gst="sc1", xst="sc1", hst="sc1", ost="sc1", forceslow=0)
for a in sys.argv[1:]:
    k, v = a.split("=")
    OPT[k] = int(v) if v.lstrip("-").isdigit() else v
PROF = OPT["prof"]


def fl(name):
    v = OPT[name]
    return "" if v == "none" else " " + v.replace("_", " ")


def f32(x):
    return "0x%08x" % struct.unpack("<I", struct.pack("<f", x))[0]


G_OFF = 0
X1_OFF = 128 << 10
H3_OFF = 256 << 10
STAT_OFF = 704 << 10
FLAG_OFF = 720 << 10
HEL_OFF = 12288
PROF_OFF = 16 << 20
WS_SIZE = 1 << 20
LW1 = 0
LW2 = 98304
LST = 131072
LXR = 86016
LX1R = 114688
LMISC = 122880
LCX = 94208
LDS_TOTAL = 163840
RED = 0
sW = "s3"
SX, SW1, SW2, SW3, SW4, SOUT, SWS, SDBG = ("s[4:7]", "s[8:11]", "s[12:15]", "s[16:19]", "s[20:23]", "s[24:27]",
                                           "s[28:31]", "s[32:35]")
sG, sM, sS, sJ, sT0, sMode, sHello, sRot1 = "s52", "s53", "s54", "s55", "s56", "s57", "s58", "s59"
sRot3 = "s52"
sKW = "s56"
KF = [73, 74, 78, 79]
DH = [80, 81]
sFB = "s[60:61]"
sDB = "s[62:63]"
sStg = "s64"
sT1, sT2, sT3, sT4, sT5, sT6 = "s65", "s66", "s67", "s68", "s69", "s70"
sRep, sCnt = "s71", "s72"
sH0 = "s58"
sPar = "s75"
sW3o, sW3m = "s76", "s77"
sW4o = "s76"
vL, vL16, vRep, vW4d, vOne, vMisc = "v0", "v1", "v6", "v7", "v10", "v11"
TRB = 2
W4T = 8
W3D = 12
ONES = 20
ASEL = 24
cA, cB, cI, cM = 28, 29, 30, 31
X1P = 32
TMP = 40
ACC = 64
BF = 128
AB = 224

K1 = -2.0 * math.sqrt(2.0 / math.pi) * math.log2(math.e)
K3 = 0.044715

A = Asm()
e = A.e
nlab = [0]
nstamp = [0]


def lab(p="L"):
    nlab[0] += 1
    return f"{p}_{nlab[0]}"


def stamp(*sets):
    if not sets:
        sets = (1,)
    if PROF in sets:
        i = nstamp[0]
        assert i < 10
        e(f"s_memtime s[{82+2*i}:{83+2*i}]")
        nstamp[0] += 1


def vr(b, n=4):
    return f"v[{b}:{b+n-1}]"


def ar(b, n=4):
    return f"a[{b}:{b+n-1}]"


def srd(dst, ptr_lo, add=None, size=0x7fffffff):
    if add is None:
        e(f"s_mov_b32 s{dst}, s{ptr_lo}\ns_mov_b32 s{dst+1}, s{ptr_lo+1}")
    else:
        e(f"s_add_u32 s{dst}, s{ptr_lo}, {add}\ns_addc_u32 s{dst+1}, s{ptr_lo+1}, 0")
    e(f"s_mov_b32 s{dst+2}, {size}\ns_mov_b32 s{dst+3}, 0x20000")


def poll(soff, ndw, nrep, between=None, inloop=None):
    L, Lw, Ld = lab("Lp"), lab("Lw"), lab("Ld")

    def issue(nxt):
        Lg = lab("Lg")
        e(f"s_cmp_ge_u32 {sRep}, {nrep*64}\ns_cbranch_scc1 {Lg}")
        e(f"s_add_u32 {sT6}, {soff}, {sRep}")
        e(f"s_load_dwordx{ndw} s[36:{36+ndw-1}], {sFB}, {sT6}")
        e(f"s_add_u32 {sRep}, {sRep}, 64\ns_branch {nxt}")
        e(f"{Lg}:")
        e(f"s_load_dwordx{ndw} s[36:{36+ndw-1}], {sFB}, {soff} glc")

    e(f"s_mov_b32 {sRep}, {sMode}\ns_mov_b32 {sCnt}, 0")
    if between is not None:
        Lb = lab("Lb")
        issue(Lb)
        e(f"{Lb}:")
        between()
        e(f"s_branch {Lw}")
    e(f"{L}:")
    e(f"s_add_u32 {sCnt}, {sCnt}, 1\ns_cmp_gt_u32 {sCnt}, 30000\ns_cbranch_scc1 L_end")
    if inloop:
        inloop()
    issue(Lw)
    e(f"{Lw}:")
    A.wait_lg0()
    n = ndw
    while n > 2:
        for i in range(0, n // 2, 2):
            e(f"s_and_b64 s[{36+i}:{37+i}], s[{36+i}:{37+i}], s[{36+n//2+i}:{37+n//2+i}]")
        n //= 2
    e("s_and_b32 s36, s36, s37")
    e(f"s_cbranch_scc0 {L}")


def publish(soff, nrep):
    Ls, Ld = lab("Ls"), lab("Ld")
    e(f"s_cmp_lg_u32 {sMode}, 0\ns_cbranch_scc1 {Ls}")
    e(f"s_mov_b64 exec, {(1 << nrep) - 1}")
    e(f"buffer_store_dword {vOne}, {vRep}, {SWS}, {soff} offen{fl('fst')}", tag="flag")
    e(f"s_branch {Ld}")
    e(f"{Ls}:")
    e("s_mov_b64 exec, 1")
    e(f"buffer_store_dword {vOne}, {vRep}, {SWS}, {soff} offen sc1", tag="flag")
    A.untrack()
    e(f"{Ld}:")
    e("s_mov_b64 exec, -1")


def stat_consts(vS, vQ, t):
    e(f"v_mul_f32 v{cM}, {f32(-1.0/512)}, v{vS}")
    e(f"v_mul_f32 v{t}, v{cM}, v{cM}")
    e(f"v_mov_b32 v{t+1}, {f32(1.0/512)}")
    e(f"v_fma_f32 v{t}, v{vQ}, v{t+1}, -v{t}")
    e(f"v_max_f32 v{t}, 0, v{t}")
    e(f"v_add_f32 v{t}, {f32(1e-5)}, v{t}")
    e(f"v_rsq_f32 v{t+1}, v{t}")
    e(f"v_sqrt_f32 v{cI}, v{t}")
    e(f"v_mul_f32 v{cA}, {f32(K1)}, v{t+1}")
    e(f"v_mul_f32 v{t}, v{t+1}, v{t+1}")
    e(f"v_mul_f32 v{t}, {f32(K3)}, v{t}")
    e(f"v_mul_f32 v{cB}, v{cA}, v{t}")


def gelu4(a, T, dst):
    o = []
    for i in range(4): o.append(f"v_mul_f32_e64 v{T+i}, v{a[i]}, v{a[i]}")
    for i in range(4): o.append(f"v_fma_f32 v{T+i}, v{T+i}, v{cB}, v{cA}")
    for i in range(4): o.append(f"v_mul_f32_e64 v{T+i}, v{a[i]}, v{T+i}")
    for i in range(4): o.append(f"v_exp_f32_e64 v{T+i}, v{T+i}")
    for i in range(4): o.append(f"v_fma_f32 v{T+i}, v{T+i}, v{cI}, v{cI}")
    for i in range(4): o.append(f"v_rcp_f32_e64 v{T+i}, v{T+i}")
    for i in range(4): o.append(f"v_mul_f32_e64 v{T+i}, v{a[i]}, v{T+i}")
    o.append(f"v_cvt_pk_bf16_f32 v{dst[0]}, v{T}, v{T+1}")
    o.append(f"v_cvt_pk_bf16_f32 v{dst[1]}, v{T+2}, v{T+3}")
    return o


def gelu4pk(a, T, dst):
    o = []
    for i in (0, 2): o.append(f"v_pk_mul_f32 v[{T+i}:{T+i+1}], v[{a+i}:{a+i+1}], v[{a+i}:{a+i+1}]")
    for i in (0, 2): o.append(f"v_pk_fma_f32 v[{T+i}:{T+i+1}], v[{T+i}:{T+i+1}], v[{cA}:{cB}], v[{cA}:{cB}] op_sel:[0,1,0] op_sel_hi:[1,1,0]")
    for i in (0, 2): o.append(f"v_pk_mul_f32 v[{T+i}:{T+i+1}], v[{a+i}:{a+i+1}], v[{T+i}:{T+i+1}]")
    for i in range(4): o.append(f"v_exp_f32_e64 v{T+i}, v{T+i}")
    for i in (0, 2): o.append(f"v_pk_fma_f32 v[{T+i}:{T+i+1}], v[{T+i}:{T+i+1}], v[{cI}:{cM}], v[{cI}:{cM}] op_sel:[0,0,0] op_sel_hi:[1,0,0]")
    for i in range(4): o.append(f"v_rcp_f32_e64 v{T+i}, v{T+i}")
    for i in (0, 2): o.append(f"v_pk_mul_f32 v[{T+i}:{T+i+1}], v[{a+i}:{a+i+1}], v[{T+i}:{T+i+1}]")
    o.append(f"v_cvt_pk_bf16_f32 v{dst[0]}, v{T}, v{T+1}")
    o.append(f"v_cvt_pk_bf16_f32 v{dst[1]}, v{T+2}, v{T+3}")
    return o


KSL = [(0, 0), (0, 1), (1, 0), (1, 1), (3, 0), (2, 0), (2, 1)]
W4G = []
for mm in range(4):
    W4G += [[(mm, 0), (mm, 1)], [(mm, 2), (mm, 3)]]
for mm in (0, 2):
    W4G += [[(mm, 5), (mm, 6)], [(mm + 1, 5), (mm + 1, 6)], [(mm, 4), (mm + 1, 4)]]
P4K = [k for g in W4G for k in g]
W4V = ["v7", "v57", "v58", "v59"]
w4s = dict(iss=0, con=0, free=0)


def w4_issue(n=1):
    for _ in range(n):
        i = w4s["iss"]
        if i >= 56:
            return
        g, n4 = i >> 2, i & 3
        assert 4 * (g - 1) <= w4s["free"], ("w4 ring overrun", i, w4s)
        mm, ksl = W4G[g][n4 >> 1]
        blk, c2 = KSL[ksl]
        set_m0(sStg, 4096 * (g & 1))
        if blk == 3:
            if n4 & 1 == 0:
                e(f"s_add_u32 {sW4o}, s{KF[mm]}, s{DH[mm&1]}")
                e(f"s_lshl4_add_u32 {sW4o}, {sW4o}, {(3072 - 8192*n4) & 0xffffffff}")
        elif n4 == 0:
            e(f"s_lshl4_add_u32 {sW4o}, s{KF[mm]}, {3072 + 32768*blk}")
        e(f"buffer_load_dwordx4 {W4V[n4]}, {SW4}, {sW4o} offen offset:{1024*n4} lds", tag=f"w4_{i}")
        w4s["iss"] += 1


def w4_read(n=4, wait=True):
    n = min(n, w4s["iss"] - w4s["con"])
    if n <= 0:
        return
    A.wait_vm(f"w4_{min(w4s['iss'], (w4s['con']+n+3)//4*4)-1}")
    for _ in range(n):
        i = w4s["con"]
        mm, ksl = W4G[i >> 2][(i >> 1) & 1]
        k, rd = 7 * mm + ksl, i & 1
        for b in range(2):
            e(f"ds_read_b64_tr_b16 {ar(8*k+4*b+2*rd, 2)}, v{W4T+b} offset:{1024*(i&7)}", tag=f"w4c{i}")
        w4s["con"] += 1


def w4_release():
    if w4s["free"] < w4s["con"]:
        A.wait_lg(f"w4c{w4s['con']-1}")
        w4s["free"] = w4s["con"]


def w4_cycle():
    return [lambda: w4_read(2), lambda: w4_read(2), None, lambda: (w4_release(), w4_issue(1)), lambda: w4_issue(1),
            lambda: w4_issue(1), lambda: w4_issue(1)]


m0c = [None]


def set_m0(sreg, lit):
    if m0c[0] != (sreg, lit):
        e(f"s_add_u32 m0, {sreg}, {lit}")
        m0c[0] = (sreg, lit)


W3B = [4, 5, 6, 7]
w3s = [0]


def w3_pump(cnt=1):
    for _ in range(cnt):
        i = w3s[0]
        if i >= 28:
            return
        period, n = i // 7, i % 7
        set_m0(sW3m, period * 4 * 7168 + (4096 if n >= 4 else 0))
        e(f"buffer_load_dwordx4 v{W3D+n}, {SW3}, s{W3B[period]} offen offset:{1024*(n&3)} lds", tag="w3")
        w3s[0] += 1


def tr_bases12(lbase, rot, t=TMP):
    e(f"v_lshrrev_b32 v{t}, 4, {vL}")
    e(f"v_bfe_u32 v{t+1}, {vL}, 2, 2")
    e(f"v_and_b32 v{t+2}, 3, {vL}")
    e(f"v_lshlrev_b32 v{t+3}, 9, v{t}")
    e(f"v_lshl_add_u32 v{t+3}, v{t+1}, 7, v{t+3}")
    e(f"v_lshl_add_u32 v{t+3}, v{t+2}, 3, v{t+3}")
    if lbase:
        e(f"v_add_u32 v{t+3}, {lbase}, v{t+3}")
    e(f"v_and_b32 v{t}, 1, v{t}")
    e(f"v_lshrrev_b32 v{t+1}, 1, v{t+1}")
    e(f"v_lshl_add_u32 v{t}, v{t}, 1, v{t+1}")
    if rot:
        e(f"v_xor_b32 v{t}, {sW}, v{t}")
    for i in range(4):
        e(f"v_xor_b32 v{t+1}, {i}, v{t}")
        e(f"v_lshl_add_u32 v{TRB+i}, v{t+1}, 5, v{t+3}")


def run(f):
    if f is None:
        return
    if callable(f):
        f()
    else:
        e(f)


class Cap:
    def __enter__(self):
        global e
        self.o = []
        self.old = e
        e = lambda s_, tag=None: self.o.extend([l for l in s_.split("\n") if l.strip()])
        return self.o

    def __exit__(self, *a):
        global e
        e = self.old


A.raw(f"; @launch grid=(256,1,1) block=(256,1,1) lds={LDS_TOTAL}")
A.raw('.amdgcn_target "amdgcn-amd-amdhsa--gfx950"')
A.raw(".text\n.globl standalone__mixer_s_mlp__prompt_kernel\n.p2align 8\n.type standalone__mixer_s_mlp__prompt_kernel,@function")
A.raw("standalone__mixer_s_mlp__prompt_kernel:")
e("s_cmp_ge_u32 s2, 256\ns_cbranch_scc1 L_end")
e("s_load_dwordx16 s[36:51], s[0:1], 0")
stamp(1, 2, 3, 4)
e("s_getpc_b64 s[68:69]")
A.raw("L_pc:")
VX, VW1, VW2 = 192, 196, 200
vXr = "v63"
XR = list(range(73, 81))
WK = [81, 60, 61, 64]
e(f"v_lshrrev_b32 v2, 6, v0")
e(f"v_and_b32 {vL}, 63, v0")
e(f"v_readfirstlane_b32 {sW}, v2")
e(f"s_and_b32 {sT1}, s2, 7\ns_lshr_b32 {sT2}, s2, 3")
e(f"s_lshr_b32 {sT3}, {sT2}, 4\ns_lshl_b32 {sG}, {sT1}, 1\ns_add_u32 {sG}, {sG}, {sT3}")
e(f"s_and_b32 {sM}, {sT2}, 15\ns_lshr_b32 {sS}, {sM}, 3\ns_and_b32 {sJ}, {sM}, 7")
e(f"s_lshr_b32 {sRep}, {sT2}, 3")
e(f"s_lshl_b32 {sRot1}, {sRep}, 1\ns_add_u32 {sRot1}, {sRot1}, {sJ}")
e(f"s_lshl_b32 {sT0}, {sG}, 7\ns_lshl_b32 {sT1}, {sS}, 6\ns_add_u32 {sT0}, {sT0}, {sT1}")
e(f"s_lshr_b32 {sT1}, {sJ}, 1\ns_lshr_b32 {sT2}, {sT1}, 1\ns_add_u32 {sT2}, {sT2}, 1")
e(f"s_and_b32 {sT1}, {sT1}, 1\ns_cmp_eq_u32 {sT1}, 0\ns_cselect_b32 {sT3}, -1, 1\ns_mul_i32 {sT2}, {sT2}, {sT3}")
e(f"s_lshl_b32 {sT1}, {sW}, 4\ns_add_u32 {sCnt}, {sT1}, {sT0}\ns_add_u32 {sT2}, {sT2}, {sCnt}")
e(f"v_lshrrev_b32 v40, 2, {vL}\nv_add_u32 v40, {sT2}, v40\nv_and_b32 v40, 0xfffff, v40\nv_lshlrev_b32 v40, 10, v40")
e(f"v_lshrrev_b32 v46, 5, {vL}\nv_and_b32 v41, 3, {vL}\nv_lshlrev_b32 v42, 1, v46\nv_xor_b32 v41, v41, v42\nv_lshl_add_u32 v40, v41, 4, v40")
for n in range(4):
    e(f"v_add_u32 v{VX+n}, {64*(n&1) - 1024*n + 3072}, v40")
e(f"v_bfe_u32 v47, {vL}, 3, 2\nv_bfe_u32 v48, {vL}, 1, 2\nv_and_b32 v49, 1, {vL}")
e(f"v_lshrrev_b32 v50, 1, v47\nv_add_u32 v50, v42, v50\nv_xor_b32 v50, v48, v50")
e(f"v_lshlrev_b32 v50, 5, v50\nv_lshl_add_u32 v50, v49, 4, v50\nv_lshl_add_u32 v50, v47, 10, v50")
e(f"v_lshl_add_u32 v{VW1}, v46, 13, v50\nv_lshl_add_u32 v{VW2}, v46, 12, v50")
for n in range(1, 4):
    e(f"v_add_u32 v{VW1+n}, {[0, 15, 2, 17][n]*1024}, v{VW1}")
e(f"v_lshlrev_b32 {vL16}, 4, {vL}")
e(f"s_lshl_b32 {sT1}, {sJ}, 7")
e(f"s_lshl_b32 {sMode}, {sW}, 12")
e(f"s_lshl_b32 {sT3}, {sT0}, 10\ns_add_u32 {sT3}, {sT3}, {sT1}")
e(f"s_lshl1_add_u32 {sKW}, {sRot1}, {sW}")
for pp in range(8):
    e(f"s_add_u32 s{XR[pp]}, {sRot1}, {pp}\ns_and_b32 s{XR[pp]}, s{XR[pp]}, 7\ns_lshl_b32 s{XR[pp]}, s{XR[pp]}, 7")
for c in range(4):
    e(f"s_add_u32 s{WK[c]}, {sKW}, {4*c}\ns_and_b32 s{WK[c]}, s{WK[c]}, 15\ns_lshl_b32 s{WK[c]}, s{WK[c]}, 15")
for i in range(4): e(f"v_mov_b32 v{52+i}, 0")
e(f"s_and_b32 {sT2}, {sM}, 3\ns_or_b32 {sT2}, {sT2}, {sW}")
e(f"s_lshl_b32 {sHello}, {sM}, 11\ns_add_u32 {sHello}, {sHello}, {FLAG_OFF}")
e(f"s_and_b32 {sT6}, {sJ}, 3\ns_lshl_b32 {sT6}, {sT6}, 2\ns_add_u32 {sT6}, {sT6}, {sW}\ns_lshl_b32 {sT6}, {sT6}, 11")
e(f"v_lshlrev_b32 v46, 7, {vL}\nv_add_u32 v46, {sT6}, v46\nv_min_u32 v46, L_codeend-L_pc-4, v46")
e(f"s_lshl_b32 {sT6}, {sG}, 20")
e(f"s_mov_b32 s6, {2048*1024 + 3072}\ns_mov_b32 s7, 0x20000")
A.wait_lg0()
stamp(2)
e(f"s_sub_u32 s4, s36, 3072\ns_subb_u32 s5, s37, 0")
srd(28, 50, add=sT6, size=WS_SIZE)
Lr = lab("Lr")
e(f"s_cmp_lg_u32 {sT2}, 0\ns_cbranch_scc1 {Lr}")
e(f"s_add_u32 s32, {sHello}, 4096")
for k in range(8):
    e(f"buffer_store_dwordx4 v[52:55], {vL16}, {SWS}, {sHello if k < 4 else 's32'} offen offset:{1024*(k&3)} sc1")
    A.untrack()
e(f"{Lr}:")


def x_issue(p):
    set_m0(sMode, LW2 + 16384 * (p >> 2))
    e(f"buffer_load_dwordx4 v{VX+(p&3)}, {SX}, s{XR[p>>1]} offen offset:{1024*(p&3)} lds", tag=f"x{p}")


def w12_issue(which, c, n):
    set_m0(sMode, (LW1 if which == 1 else LW2) + 16384 * c)
    e(f"buffer_load_dwordx4 v{(VW1 if which == 1 else VW2)+n}, {SW1 if which == 1 else SW2}, s{WK[c]} offen offset:{1024*n} lds",
      tag=f"w{which}c{c}")


x_issue(0)
x_issue(1)
srd(8, 38, add=sT1, size=512 * 1024 - 896)
for n in range(4): w12_issue(1, 0, n)
x_issue(2)
x_issue(3)
e("s_mov_b64 exec, 0xffff")
e("global_load_dword v255, v46, s[68:69]", tag="pf")
e("s_mov_b64 exec, -1")
stamp(2)
srd(12, 40, add=sT1, size=512 * 1024 - 896)
srd(24, 46, add=sT3, size=64 * 1024 - 896)
for n in range(1, 4):
    e(f"v_add_u32 v{VW2+n}, {7*1024*n}, v{VW2}")
e(f"v_lshlrev_b32 {vRep}, 6, {vL}")
e(f"v_mov_b32 {vOne}, 1")
e(f"s_mul_i32 {sT3}, {sM}, 224")
e(f"s_sub_u32 s16, s42, 3072\ns_subb_u32 s17, s43, 0")
e(f"s_add_u32 s16, s16, {sT3}\ns_addc_u32 s17, s17, 0")
e(f"s_mov_b32 s18, {512*3584 + 3072 - 224*15}\ns_mov_b32 s19, 0x20000")
e(f"s_mul_i32 {sT3}, {sW}, {448*1024}\ns_add_u32 {sT3}, {sT3}, {sT1}")
e(f"s_sub_u32 s20, s44, 3072\ns_subb_u32 s21, s45, 0")
e(f"s_add_u32 s20, s20, {sT3}\ns_addc_u32 s21, s21, 0")
e(f"s_mov_b32 s22, {448*1024 - 896 + 3072}\ns_mov_b32 s23, 0x20000")
if OPT["tlb"]:
    e(f"s_lshl_b32 {sT3}, {sW}, 4\nv_add_u32 v46, {sT3}, {vL}\nv_mul_u32_u24 v47, 28672, v46\nv_mul_u32_u24 v48, 28672, {vL}")
    e(f"v_lshlrev_b32 v49, 13, v46\nv_lshlrev_b32 v46, 10, v46")
    e("s_mov_b64 exec, 0xffff")
    e(f"buffer_load_dword v255, v49, {SW2}, 0 offen", tag="pf")
    e(f"buffer_load_dword v255, v47, {SW3}, 0 offen offset:3072", tag="pf")
    e(f"buffer_load_dword v255, v48, {SW4}, 0 offen offset:3072", tag="pf")
    e("s_mov_b64 exec, 1")
    e(f"buffer_load_dword v255, v46, {SOUT}, 0 offen", tag="pf")
    e("s_mov_b64 exec, -1")
e(f"s_lshl_b32 {sT3}, {sG}, 4\ns_add_u32 s62, s48, {sT3}\ns_addc_u32 s63, s49, 0")
e(f"v_lshl_add_u32 v60, {vL}, 2, {sT3}\nv_cmp_gt_u32 vcc, 4, {vL}\nv_cndmask_b32 v60, -1, v60, vcc")
e(f"v_lshlrev_b32 v62, 2, {vL}\nv_add_u32 v62, {FLAG_OFF + HEL_OFF}, v62\nv_cndmask_b32 v62, -1, v62, vcc")
e(f"s_add_u32 {sT3}, {sT3}, {sM}\nv_mov_b32 v19, {sT3}")
e(f"v_lshlrev_b32 v58, 7, {vL}\nv_add_u32 v58, {sHello}, v58")
e(f"s_add_u32 s42, s28, {FLAG_OFF + HEL_OFF}\ns_addc_u32 s43, s29, 0")
e(f"s_add_u32 {sT3}, {sM}, {FLAG_OFF + HEL_OFF}\nv_mov_b32 v57, {sT3}")
e(f"s_getreg_b32 {sHello}, hwreg(HW_REG_XCC_ID)")
e(f"s_and_b32 {sHello}, {sHello}, 15\ns_or_b32 {sHello}, {sHello}, 0x80")
if OPT["forceslow"]:
    e(f"s_cmp_eq_u32 {sM}, 5\ns_cselect_b32 {sHello}, 0x89, {sHello}")
e(f"v_mov_b32 v56, {sHello}")
e(f"s_mul_i32 {sHello}, {sHello}, 0x01010101")
e(f"s_mov_b32 s40, {sW}")
e(f"s_and_b32 {sT4}, {sG}, 1\ns_lshl_b32 {sT4}, {sT4}, 2\ns_add_u32 {sRot3}, {sT4}, {sM}")
if OPT["rot3"] == 0:
    e(f"s_mov_b32 {sRot3}, 0")
e(f"s_add_u32 {sRep}, {sRep}, {sJ}")
for i in range(4): e(f"v_mov_b32 v{ONES+i}, 0x3f803f80")
e(f"v_and_b32 v46, 15, {vL}\nv_lshrrev_b32 v47, 4, {vL}\nv_bfe_u32 v48, {vL}, 3, 1\nv_lshlrev_b32 v48, 1, v48\nv_xor_b32 v47, v47, v48")
e(f"v_lshlrev_b32 v46, 6, v46\nv_lshl_add_u32 v46, v47, 4, v46\ns_add_u32 {sT4}, {sMode}, {LW2}\nv_add_u32 {vXr}, {sT4}, v46")
e(f"v_lshrrev_b32 v46, 3, {vL}\nv_and_b32 v47, 7, {vL}\nv_lshrrev_b32 v48, 4, {vL}\nv_xor_b32 v47, v47, v48")
e(f"v_add_u32 v46, {sCnt}, v46\nv_lshlrev_b32 v46, 10, v46\nv_lshl_add_u32 {vMisc}, v47, 4, v46")
e(f"s_add_u32 {sT1}, {sT1}, 3072")
e(f"s_lshl_b32 {sT4}, {sW}, 13\ns_add_u32 {sT4}, {sT4}, {LST}")
e(f"v_lshrrev_b32 v46, 5, {vL}\nv_bfe_u32 v47, {vL}, 3, 2\nv_bfe_u32 v48, {vL}, 2, 1\nv_and_b32 v49, 3, {vL}")
e(f"v_lshrrev_b32 v50, 1, v47\nv_xor_b32 v50, v48, v50\nv_lshlrev_b32 v50, 6, v50\nv_lshl_add_u32 v50, v49, 4, v50")
e(f"v_lshl_add_u32 v47, v46, 2, v47\nv_lshl_add_u32 {vW4d}, v47, 10, v50")
e(f"v_bfe_u32 v47, {vL}, 2, 2\nv_bfe_u32 v48, {vL}, 4, 1")
e(f"v_lshlrev_b32 v50, 9, v46\nv_lshl_add_u32 v50, v47, 7, v50\nv_lshl_add_u32 v50, v48, 5, v50\nv_lshl_add_u32 v50, v49, 3, v50")
e(f"v_add_u32 v50, {sT4}, v50\nv_lshrrev_b32 v47, 1, v47")
e(f"v_lshl_add_u32 v{W4T}, v47, 6, v50\nv_xor_b32 v47, 1, v47\nv_lshl_add_u32 v{W4T+1}, v47, 6, v50")
e(f"s_and_b32 {sT4}, {sW}, 1\ns_lshl_b32 {sT4}, {sT4}, 6\nv_xor_b32 v{W4T}, {sT4}, v{W4T}\nv_xor_b32 v{W4T+1}, {sT4}, v{W4T+1}")
CX = 104
e(f"s_lshl_b32 {sT4}, {sW}, 10\ns_add_u32 {sT4}, {sT4}, {LCX}\nv_add_u32 v{CX}, {sT4}, {vL16}")
for i in range(1, 4):
    e(f"v_xor_b32 v{CX+i}, {1024*i}, v{CX}")
for g in range(448): assert (g * 1171) >> 16 == g // 56
e(f"s_and_b32 {sT6}, {sM}, 1")
e(f"s_lshl_b32 {sT4}, {sT6}, 5")
e(f"s_cmp_eq_u32 {sT6}, 0\ns_cselect_b32 {sT5}, 192, 0")
for n in range(7):
    e(f"v_add_u32 v46, {64*n}, {vL}")
    e(f"v_mul_u32_u24 v47, 1171, v46\nv_lshrrev_b32 v47, 16, v47")
    e(f"v_mul_u32_u24 v48, 56, v47\nv_sub_u32 v46, v46, v48")
    e(f"v_lshrrev_b32 v48, 4, v46\nv_and_b32 v49, 3, v46\nv_lshlrev_b32 v48, 6, v48\nv_lshl_add_u32 v48, v49, 4, v48")
    e(f"v_add_u32 v48, {sT4}, v48\nv_bfe_u32 v49, v46, 2, 2")
    e(f"v_and_b32 v50, 1, v46\nv_lshlrev_b32 v50, 4, v50\nv_add_u32 v50, {sT5}, v50\nv_bfe_u32 v51, v46, 1, 2")
    e(f"v_cmp_lt_u32 vcc, 47, v46")
    e(f"v_cndmask_b32 v48, v48, v50, vcc\nv_cndmask_b32 v49, v49, v51, vcc")
    e(f"v_lshl_add_u32 v47, v47, 2, v49\nv_mul_u32_u24 v47, 3584, v47")
    if (n & 3) != 3:
        e(f"v_add_u32 v48, {3072 - 1024*(n&3)}, v48")
    e(f"v_add_u32 v{W3D+n}, v47, v48")
NL = OPT["pfl"]
e(f"s_lshr_b32 {sT4}, s2, 3\ns_mul_i32 {sT5}, {sT4}, {128*NL}\ns_lshl_b32 {sT6}, {sJ}, 7\ns_sub_u32 {sT5}, {sT5}, {sT6}\ns_add_u32 {sT5}, {sT5}, 3072")
e(f"v_lshlrev_b32 v112, 7, {vL}\nv_add_u32 v113, {sT5}, v112")
e(f"s_lshl2_add_u32 {sT4}, {sT4}, {sW}\ns_mul_i32 {sT4}, {sT4}, {128*NL}\ns_mul_i32 {sT6}, {sM}, 224\ns_sub_u32 {sT4}, {sT4}, {sT6}\ns_add_u32 {sT4}, {sT4}, 3072")
e(f"v_add_u32 v112, {sT4}, v112")
e(f"v_cmp_gt_u32 vcc, {NL}, {vL}\nv_mov_b32 v114, 0x40000000\nv_cndmask_b32 v112, v114, v112, vcc\nv_cndmask_b32 v113, v114, v113, vcc")
pfs = [0]


def pf(dyn=False):
    k = pfs[0]
    which = 1 if (k >= 112 // NL or dyn or OPT["pf3"] == 0) else 0
    e(f"buffer_load_dword v114, v{112+which}, {SW4 if which else SW3}, 0 offen", tag="pf")
    if dyn:
        A.untrack()
        e(f"v_add_u32 v113, {4096*NL}, v113\nv_min_u32 v113, 0x40000000, v113")
    else:
        e(f"v_add_u32 v{112+which}, {4096*NL if which else 16384*NL}, v{112+which}")
        pfs[0] += 1


def hook(name):
    o = []
    for t in str(OPT[name]).split("_"):
        if t in ("", "0"):
            continue
        k, n = (t.split("x") + ["1"])[:2]
        f = {"q": pf, "w3": lambda: w3_pump(1), "w4": lambda: w4_issue(1), "n": None}[k]
        o += [f] * int(n)
    return o


srd(32, 48, size=256)
tr_bases12(LW1, True)
Lr = lab("Lr")
e(f"s_cmp_lg_u32 {sT2}, 0\ns_cbranch_scc1 {Lr}")
e(f"s_waitcnt vmcnt({len(A.vm)})")
e("s_mov_b64 exec, 1")
e(f"buffer_store_dword {vOne}, v19, {SDBG}, 0 offen sc1")
A.untrack()
e("s_mov_b64 exec, -1")
e(f"{Lr}:")
stamp(2)
for p in range(4, 8): x_issue(p)
for n in range(4): w12_issue(1, 1, n)


def reduce_q(s, q, t):
    e(f"v_permlane32_swap_b32 v{s}, v{q}")
    e(f"v_add_f32 v{s}, v{s}, v{q}")
    e(f"v_mov_b32 v{t}, v{s}")
    e(f"v_permlane16_swap_b32 v{s}, v{t}")
    e(f"v_add_f32 v{s}, v{s}, v{t}")
    e(f"v_mov_b32 v{t}, v{s}")
    e(f"v_permlane32_swap_b32 v{s}, v{t}")


def x_read(p):
    e(f"ds_read_b128 {vr(BF+4*p)}, {vXr} offset:{16384*(p>>2) + 1024*(p&3)}", tag=f"xr{p}")


gomark = [0]


def go_ld(mod):
    e(f"buffer_load_dword v59, v60, {SDBG}, 0 offen {mod}")
    A.untrack()
    gomark[0] = A.nvm


def go_load():
    L = lab("Lgo")
    e(f"s_cmp_lg_u32 s40, 0\ns_cbranch_scc1 {L}")
    go_ld("sc0")
    e(f"{L}:")


def go_check(final=False):
    L, L2, L0 = lab("Lgo"), lab("Lgp"), lab("Lgs")
    e(f"s_cmp_lg_u32 s40, 0\ns_cbranch_scc1 {L}")
    e(f"s_waitcnt vmcnt({A.nvm - gomark[0]})")
    if final:
        e(f"s_mov_b32 s41, 0")
        e(f"{L0}:")
    e("v_cmp_ne_u32 vcc, 0, v59")
    e("s_cmp_eq_u32 vcc_lo, 15")
    e(f"s_cbranch_scc1 {L2}")
    go_ld("sc1" if final else "sc0")
    if final:
        e("s_waitcnt vmcnt(0)")
        e(f"s_add_u32 s41, s41, 1\ns_cmp_gt_u32 s41, 30000\ns_cbranch_scc1 L_end")
        e(f"s_branch {L0}")
    else:
        e(f"s_branch {L}")
    e(f"{L2}:")
    e("s_mov_b64 exec, 1\ns_mov_b32 s40, 1")
    e(f"buffer_store_byte v56, v57, {SWS}, 0 offen sc1")
    A.untrack()
    e("s_mov_b64 exec, 0xffff")
    e(f"buffer_load_dword v61, v58, {SWS}, 0 offen sc1")
    A.untrack()
    e("s_mov_b64 exec, -1")
    e(f"{L}:")


def p1_pre(i):
    if i % 16 == 0:
        c = i // 16
        A.wait_vm(f"x3" if c == 0 else f"w1c{c}")
        for p in {0: range(0, 4), 1: range(4, 8), 2: range(8, 16), 3: []}[c]:
            x_read(p)
        e("s_barrier")
        stamp(2)


SUMA, GRAM = 96, 100


def stat_mfma(p, which):
    if which:
        return f"v_mfma_f32_16x16x32_bf16 {vr(GRAM)}, {vr(BF+4*p)}, {vr(BF+4*p)}, {vr(GRAM) if p else '0'}"
    return f"v_mfma_f32_16x16x32_bf16 {vr(SUMA)}, {vr(ONES)}, {vr(BF+4*p)}, {vr(SUMA) if p else '0'}"


F = {i: [] for i in range(64)}
lq = [lambda p=p: x_issue(p) for p in range(8, 16)] + [lambda c=c, n=n: w12_issue(1, c, n) for c in (2, 3) for n in range(4)]
for i in range(16):
    F[i].append(lq[i])
F[OPT["hel"]].append(go_load)
for k in range(1, 4):
    F[min(48, OPT["hel"] + OPT["held"] * k)].append(go_check)
for p in range(8):
    F[4 * p + 1].append(stat_mfma(p, 0))
    F[4 * p + 2].append(stat_mfma(p, 1))
for k in range(16):
    F[32 + k].append(stat_mfma(8 + (k >> 1), k & 1))
F[OPT["w2b"]].append(lambda: A.wait_lg("xr15"))
for k in range(8):
    F[OPT["w2a"] + OPT["w2d"] * k].append(lambda k=k: w12_issue(2, k >> 2, k & 3))
    F[OPT["w2b"] + OPT["w2d"] * k].append(lambda k=k: w12_issue(2, 2 + (k >> 2), k & 3))
with Cap() as st:
    for r in range(4):
        mk = sum(1 << (20 * g + r) for g in range(4))
        e(f"s_mov_b32 vcc_lo, {mk & 0xffffffff}\ns_mov_b32 vcc_hi, {mk >> 32}")
        e(f"v_cndmask_b32 v41, {'0' if r == 0 else 'v41'}, v{GRAM+r}, vcc")
    e("v_mov_b32 v42, v41\nv_permlane32_swap_b32 v41, v42\nv_add_f32 v41, v41, v42")
    e("v_mov_b32 v42, v41\nv_permlane16_swap_b32 v41, v42\nv_add_f32 v41, v41, v42")
    stat_consts(SUMA, 41, 44)
    e(f"s_lshl_b32 {sT4}, {sS}, 2\ns_add_u32 {sT4}, {sT4}, {sW}\ns_lshl_b32 {sT4}, {sT4}, 14")
    e(f"s_lshl_b32 {sT3}, {sJ}, 11\ns_add_u32 {sT3}, {sT3}, {sT4}")
    e(f"s_lshr_b32 {sT2}, {sW}, 1\ns_lshl_b32 {sT2}, {sT2}, 10")
    e(f"s_add_u32 {sCnt}, {sT3}, {sT2}\ns_xor_b32 {sT2}, {sT2}, 1024\ns_add_u32 {sT2}, {sT3}, {sT2}")
for k, s_ in enumerate(st):
    F[49 + k // 3].append(s_)
F[62].append(lambda: e(f"ds_write_b128 v{CX}, {vr(ACC+16)}", tag="csw"))


def xres():
    e(f"s_lshr_b32 {sT5}, {sMode}, 1\ns_add_u32 m0, {sT5}, {LXR}")
    m0c[0] = None
    e(f"buffer_load_dwordx4 {vMisc}, {SX}, {sT1} offen lds", tag="xres")
    e(f"v_xor_b32 {vMisc}, 64, {vMisc}\ns_add_u32 {sT1}, {sT1}, {8192-1024}")
    e(f"buffer_load_dwordx4 {vMisc}, {SX}, {sT1} offen offset:1024 lds", tag="xres")


F[16].append(xres)
for k in range(OPT["pfa"], 64, OPT["pfd"]):
    F[k].append(pf)
with Cap() as st:
    tr_bases12(LW2, False, 108)
for k, s_ in enumerate(st):
    F[55 + k // 2].append(s_)

D = 10


def rd1(i):
    ks, sl = i >> 2, i & 3
    p1_pre(i)
    b = 192 + 4 * (i & 15)
    for r in range(2):
        e(f"ds_read_b64_tr_b16 {ar(b+2*r, 2)}, v{TRB+sl} offset:{4096*ks+2048*r}", tag=f"a{i}")


for i in range(D):
    rd1(i)
for i in range(64):
    ks, sl = i >> 2, i & 3
    if i + D < 64:
        rd1(i + D)
    if i % 2 == 0:
        A.wait_lg(f"a{i+1}")
    c = vr(ACC + 4 * sl) if ks > 0 else "0"
    e(f"v_mfma_f32_16x16x32_bf16 {vr(ACC+4*sl)}, {ar(192+4*(i&15))}, {vr(BF+4*ks)}, {c}")
    if sl == 0:
        c = vr(ACC + 16) if ks > 0 else "0"
        e(f"v_mfma_f32_16x16x32_bf16 {vr(ACC+16)}, {ar(192+4*(i&15))}, {vr(ONES)}, {c}")
    for f in F[i]:
        run(f)
stamp(1, 2)
go_check(True)
A.wait_vm("w2c3")
stamp(3)
A.wait_lg0()
e("s_barrier")
for i in range(1, 4):
    e(f"ds_read_b128 {vr(ACC+16+4*i)}, v{CX+i}", tag=f"cs{i}")
e(f"buffer_load_dword v59, v62, {SWS}, 0 offen sc0", tag="hel")
A.wait_lg0()
for i in range(4):
    for h in (0, 2):
        e(f"v_pk_fma_f32 {vr(ACC+4*i+h, 2)}, {vr(ACC+16+4*i+h, 2)}, v[{cI}:{cM}], {vr(ACC+4*i+h, 2)} op_sel:[0,1,0] op_sel_hi:[1,1,1]")
hG = hook("hG")
for i in range(4):
    if hG: run(hG.pop(0))
    for s_ in gelu4pk(ACC + 4 * i, TMP + 4 * (i & 1), [TMP + 8 + 2 * i, TMP + 9 + 2 * i]):
        e(s_)
Lx = lab("Lx")
e(f"s_bitcmp0_b32 {sW}, 0\ns_cbranch_scc1 {Lx}")
for i2 in range(2):
    for d in range(2):
        e(f"v_swap_b32 v{TMP+8+4*i2+d}, v{TMP+10+4*i2+d}")
e(f"{Lx}:")
e(f"buffer_store_dwordx4 {vr(TMP+8)}, {vL16}, {SWS}, {sCnt} offen{fl('gst')}", tag="gst")
e(f"buffer_store_dwordx4 {vr(TMP+12)}, {vL16}, {SWS}, {sT2} offen{fl('gst')}", tag="gst")
stamp(2, 3)
e(f"s_mul_i32 {sW3m}, {sW}, 7168\ns_lshl_b32 {sStg}, {sW}, 13\ns_add_u32 {sStg}, {sStg}, {LST}")
e(f"s_and_b32 {sW3o}, {sW}, 1\ns_mul_i32 {sW3o}, {sW3o}, 114688\ns_lshr_b32 {sT5}, {sW}, 1\ns_add_u32 {sT5}, {sT5}, {sRot3}")
for per in range(4):
    e(f"s_add_u32 s{W3B[per]}, {sT5}, {2*per}\ns_and_b32 s{W3B[per]}, s{W3B[per]}, 7\ns_mul_i32 s{W3B[per]}, s{W3B[per]}, 229376\ns_add_u32 s{W3B[per]}, s{W3B[per]}, {sW3o}")
hA = hook("hA")
for i in range(64):
    ks, sl = i >> 2, i & 3
    for r in range(2):
        e(f"ds_read_b64_tr_b16 {ar(4*i+2*r, 2)}, v{TRB+sl} offset:{4096*ks+2048*r}", tag="w2f")
        k = 2 * i + r - OPT["fr0"]
        if k >= 0 and k % OPT["frd"] == 0 and hA:
            run(hA.pop(0))
for f in hA: run(f)
assert w3s[0] <= 21
e(f"s_add_u32 s60, s28, {FLAG_OFF}\ns_addc_u32 s61, s29, 0")
for mm in range(4):
    e(f"s_add_u32 {sT6}, {sRep}, {mm}\ns_and_b32 {sT6}, {sT6}, 3\ns_and_b32 {sT5}, {sT6}, 1\ns_mul_i32 {sT6}, {sT6}, 7\ns_add_u32 {sT6}, {sT6}, {sT5}\ns_lshl_b32 s{KF[mm]}, {sT6}, 10")
    if mm < 2:
        e(f"s_cmp_eq_u32 {sT5}, 0\ns_cselect_b32 s{DH[mm]}, 6, -1\ns_lshl_b32 s{DH[mm]}, s{DH[mm]}, 10")
XA = 96
e(f"v_and_b32 v44, 15, {vL}\nv_lshrrev_b32 v45, 5, {vL}\nv_bfe_u32 v46, {vL}, 1, 3\nv_xor_b32 v45, v45, v46\nv_bfe_u32 v46, {vL}, 4, 1")
e(f"v_lshlrev_b32 v44, 7, v44\nv_lshl_add_u32 v44, v46, 3, v44\nv_lshl_add_u32 v44, v45, 4, v44")
e(f"s_lshr_b32 {sT5}, {sMode}, 1\ns_add_u32 {sT5}, {sT5}, {LXR}\nv_add_u32 v{XA}, {sT5}, v44")
for fb in range(1, 4):
    e(f"v_xor_b32 v{XA+fb}, {32*fb}, v{XA}")
for fb in range(4):
    e(f"ds_read_b64 {vr(100+2*fb, 2)}, v{XA+fb}", tag="xrr")
e(f"s_and_b32 {sPar}, {sM}, 1")
e(f"s_lshl_b32 {sT1}, {sS}, 2\ns_add_u32 {sT1}, {sT1}, {sW}\ns_lshl_b32 {sT1}, {sT1}, 10")
e(f"s_lshl_b32 {sT2}, {sJ}, 2\ns_add_u32 {sT2}, {sT2}, {sT1}\ns_add_u32 {sT2}, {sT2}, {FLAG_OFF}")
stamp(3)
A.wait_vm("gst")
stamp(3)
Lh, Lh2, Lh3 = lab("Lh"), lab("Lh2"), lab("Lh3")
e(f"v_cmp_eq_u32 vcc, {sHello}, v59")
e(f"s_mov_b32 {sMode}, 0\ns_mov_b32 {sCnt}, 0")
e(f"s_cmp_eq_u32 vcc_lo, 15\ns_cbranch_scc1 {Lh3}")
e(f"{Lh}:")
A.raw(f"s_load_dwordx4 s[36:39], s[42:43], 0 glc")
e("s_waitcnt lgkmcnt(0)")
e("s_and_b64 s[40:41], s[36:37], s[38:39]\ns_and_b32 s40, s40, s41\ns_and_b32 s40, s40, 0x80808080")
e(f"s_cmp_eq_u32 s40, 0x80808080\ns_cbranch_scc1 {Lh2}")
e(f"s_add_u32 {sCnt}, {sCnt}, 1\ns_cmp_gt_u32 {sCnt}, 30000\ns_cbranch_scc1 L_end")
e(f"s_branch {Lh}")
e(f"{Lh2}:")
for i in range(4): e(f"s_xor_b32 s{36+i}, s{36+i}, {sHello}")
e("s_or_b64 s[36:37], s[36:37], s[38:39]\ns_or_b32 s36, s36, s37")
e(f"s_cselect_b32 {sMode}, 4096, 0")
e(f"{Lh3}:")
publish(sT2, OPT["r1"])
A.wait_lg("xrr")
for fb in range(4):
    e(f"v_add_u32 v{XA+fb}, {LX1R-LXR}, v{XA+fb}")
    for d in range(2):
        e(f"v_lshlrev_b32 v{ACC+4*fb+2*d}, 16, v{100+2*fb+d}")
        e(f"v_and_b32 v{ACC+4*fb+2*d+1}, 0xffff0000, v{100+2*fb+d}")
for pp in range(8):
    e(f"s_add_u32 s{44+pp}, {sRot1}, {pp}\ns_and_b32 s{44+pp}, s{44+pp}, 7\ns_lshl_b32 s{44+pp}, s{44+pp}, 11\ns_add_u32 s{44+pp}, s{44+pp}, {sT4}")
A.wait_lg0()
e("s_barrier")
for n in range(1, 4):
    e(f"v_add_u32 {W4V[n]}, {7168*n}, {vW4d}")
for f in hook("hB"): run(f)
GB = BF + 64
poll(sT1, 8, OPT["r1"], None, (lambda: pf(True)) if OPT["pfp"] & 1 else None)
stamp(1, 3)


def g_issue(p):
    e(f"buffer_load_dwordx4 {vr(GB+4*p)}, {vL16}, {SWS}, s{44+(p>>1)} offen offset:{1024*(p&1)}{fl('ld')}", tag=f"g{p}")


NG0 = OPT["ng0"]
for p in range(NG0):
    g_issue(p)
e(f"s_lshl_b32 {sT1}, {sS}, 1\ns_lshr_b32 {sT2}, {sW}, 1\ns_add_u32 {sT1}, {sT1}, {sT2}")
e(f"s_lshl_b32 {sT6}, {sT1}, 10")
e(f"s_lshl_b32 {sT2}, {sT1}, 15\ns_lshl_b32 {sT3}, {sJ}, 12\ns_add_u32 {sT2}, {sT2}, {sT3}")
e(f"s_and_b32 {sT3}, {sW}, 1\ns_lshl_b32 {sT4}, {sT3}, 8\ns_add_u32 {sT2}, {sT2}, {sT4}\ns_add_u32 {sT2}, {sT2}, {X1_OFF}")
e(f"s_lshl_b32 {sT1}, {sT1}, 11\ns_lshl_b32 {sT4}, {sJ}, 8\ns_add_u32 {sT1}, {sT1}, {sT4}")
e(f"s_lshl_b32 {sT4}, {sT3}, 7\ns_add_u32 {sT1}, {sT1}, {sT4}\ns_add_u32 {sT1}, {sT1}, {STAT_OFF}")
e(f"s_lshl_b32 {sT3}, {sT3}, 3\ns_add_u32 {sT3}, {sT3}, {sJ}\ns_lshl_b32 {sT3}, {sT3}, 2")
e(f"s_add_u32 {sT3}, {sT6}, {sT3}\ns_add_u32 {sT3}, {sT3}, {FLAG_OFF + 8192}")
e(f"v_and_b32 v54, 15, {vL}\nv_lshrrev_b32 v55, 4, {vL}\nv_lshlrev_b32 v56, 3, v54\nv_lshlrev_b32 v54, 4, v54\nv_lshl_add_u32 v54, v55, 10, v54")
e(f"v_lshrrev_b32 v40, 5, {vL}\nv_bfe_u32 v41, {vL}, 4, 1\nv_bfe_u32 v42, {vL}, 2, 2\nv_and_b32 v43, 3, {vL}")
e(f"v_mul_u32_u24 v44, {896*8}, v40")
e(f"v_lshl_add_u32 v45, v42, 6, v44\nv_lshl_add_u32 v45, v41, 5, v45\nv_lshl_add_u32 v{TRB}, v43, 3, v45")
e(f"v_add_u32 v{TRB+1}, {896*64}, v{TRB}")
e(f"v_mul_u32_u24 v45, 896, v41\nv_add_u32 v44, v44, v45\nv_lshl_add_u32 v44, v42, 5, v44")
e(f"v_and_b32 v45, 1, v43\nv_lshrrev_b32 v43, 1, v43\nv_lshl_add_u32 v43, v45, 1, v43\nv_lshl_add_u32 v44, v43, 3, v44")
e(f"v_add_u32 v{TRB+2}, 768, v44\nv_add_u32 v{TRB+3}, {768+896*64}, v44")
e(f"v_bfe_u32 v42, {vL}, 2, 1\nv_cmp_eq_u32 vcc, v42, v41")
e(f"v_cndmask_b32 v{ASEL}, 0, v{ONES}, vcc")
for i in range(1, 4): e(f"v_mov_b32 v{ASEL+i}, v{ASEL}")
CSA = 124
e(f"s_mul_i32 {sT4}, {sW}, {896*16}")
e(f"v_add_u32 v{CSA}, {sT4}, v{TRB}\nv_add_u32 v{CSA+1}, {sT4}, v{TRB+2}")
e(f"v_and_b32 v48, 31, {vL}\nv_lshlrev_b32 v48, 3, v48\nv_lshl_add_u32 v48, v40, 10, v48")
F = {i: [] for i in range(64)}
lq = [lambda p=p: g_issue(p) for p in range(NG0, 16)] + hook("hC")
for k, f in enumerate(lq):
    F[k * OPT["p2d"]].append(f)
for i in range(64):
    ks, sl = i >> 2, i & 3
    if sl == 0:
        A.wait_vm(f"g{ks}")
    e(f"v_mfma_f32_16x16x32_bf16 {vr(ACC+4*sl)}, {ar(4*i)}, {vr(GB+4*ks)}, {vr(ACC+4*sl)}")
    for f in F[i]:
        run(f)
stamp(1, 3)
for i in range(8):
    e(f"v_cvt_pk_bf16_f32 v{X1P+i}, v{ACC+2*i}, v{ACC+2*i+1}")
e(f"buffer_store_dwordx4 {vr(X1P)}, v54, {SWS}, {sT2} offen{fl('xst')}", tag="xst")
e(f"buffer_store_dwordx4 {vr(X1P+4)}, v54, {SWS}, {sT2} offen offset:512{fl('xst')}", tag="xst")
for i in range(8):
    e(f"v_dot2_f32_bf16 v40, v{X1P+i}, v{ONES}, {'0' if i == 0 else 'v40'}")
    e(f"v_dot2_f32_bf16 v42, v{X1P+i}, v{X1P+i}, {'0' if i == 0 else 'v42'}")
reduce_q(40, 42, 41)
e("s_mov_b64 exec, 0xffff")
e(f"buffer_store_dwordx2 v[40:41], v56, {SWS}, {sT1} offen{fl('xst')}", tag="xst")
e("s_mov_b64 exec, -1")
for f in hook("hD"): run(f)
for fb in range(4):
    e(f"ds_write_b64 v{XA+fb}, {vr(X1P+2*fb, 2)}", tag="x1r")
e(f"s_lshl_b32 {sT4}, {sW}, 11\ns_add_u32 {sT4}, {sT4}, {STAT_OFF}")
e(f"s_lshl_b32 {sT1}, {sW}, 10\ns_add_u32 {sT1}, {sT1}, 8192")
YT = list(range(8, 16))
e(f"s_lshl_b32 {sT5}, {sW}, 15\ns_add_u32 {sT5}, {sT5}, {X1_OFF}")
for bp in range(8):
    e(f"s_add_u32 s{YT[bp]}, {sRot3}, {bp}\ns_and_b32 s{YT[bp]}, s{YT[bp]}, 7\ns_lshl_b32 s{YT[bp]}, s{YT[bp]}, 12\ns_add_u32 s{YT[bp]}, s{YT[bp]}, {sT5}")
stamp(3)
A.wait_vm("xst")
stamp(3)
publish(sT3, OPT["r2"])
for f in hook("hE"): run(f)
assert w3s[0] == 28
CS = ACC + 32


def cs_items(part):
    it = []
    for q in range(4):
        for b in range(3):
            it.append((CSA, 896 * (64 * part + q) + 256 * b, b))
        if q % 2 == 0:
            it.append((CSA + 1, 896 * (64 * part + q), 3))
    return it


sHs, sHh, sP3 = sT2, "s62", "s63"
e(f"s_mul_i32 {sHh}, {sW}, 112\ns_mul_i32 {sHs}, {sM}, 7\ns_add_u32 {sHh}, {sHh}, {sHs}\ns_lshl_b32 {sHh}, {sHh}, 10\ns_add_u32 {sHh}, {sHh}, {H3_OFF}")
e(f"s_lshl_b32 {sHs}, {sPar}, 10\ns_add_u32 {sHs}, {sHs}, {sHh}")
e(f"s_cmp_eq_u32 {sPar}, 0\ns_cselect_b32 {sT5}, 6144, 0\ns_add_u32 {sHh}, {sHh}, {sT5}")
e(f"s_lshr_b32 {sP3}, {sW}, 1\ns_lshl_b32 {sP3}, {sP3}, 2\ns_lshr_b32 {sT5}, {sM}, 2\ns_add_u32 {sP3}, {sP3}, {sT5}\ns_lshl_b32 {sP3}, {sP3}, 11")
e(f"s_and_b32 {sT5}, {sM}, 3\ns_lshl_b32 {sT5}, {sT5}, 3\ns_add_u32 {sP3}, {sP3}, {sT5}")
e(f"s_and_b32 {sT5}, {sW}, 1\ns_lshl_b32 {sT5}, {sT5}, 2\ns_add_u32 {sP3}, {sP3}, {sT5}")
e(f"s_add_u32 {sP3}, {sP3}, {FLAG_OFF + 16384}")
HA = [4, 5, 6, 7]
e(f"s_mul_i32 {sH0}, {sS}, 224\ns_mul_i32 {sT5}, {sW}, 28\ns_add_u32 {sH0}, {sH0}, {sT5}")
e(f"s_lshl_b32 {sH0}, {sH0}, 10\ns_add_u32 {sH0}, {sH0}, {H3_OFF}")
for mm in range(4):
    e(f"s_add_u32 s{HA[mm]}, {sH0}, s{KF[mm]}")
vH = ["v11", "v56"]
e(f"s_lshr_b32 {sT5}, {sW}, 1\ns_mul_i32 {sT5}, {sT5}, {112*1024}\nv_add_u32 {vH[0]}, {sT5}, {vL16}")
e(f"s_sub_u32 {sT5}, {112*1024}, {sT5}\nv_add_u32 {vH[1]}, {sT5}, {vL16}")
e(f"s_lshl_b32 {sT5}, {sW}, 10\ns_add_u32 {sT5}, {sT5}, {LMISC}")
e(f"v_add_u32 v126, {sT5}, {vL16}\nv_add_u32 v127, {LMISC}, {vL16}")
sQ3 = sT3
e(f"s_lshl_b32 {sQ3}, {sS}, 2\ns_add_u32 {sQ3}, {sQ3}, {sW}\ns_lshl_b32 {sQ3}, {sQ3}, 11\ns_add_u32 {sQ3}, {sQ3}, 16384")
A.wait_vm("w3")
A.wait_lg0()
e("s_barrier")
stamp(4)
for f in hook("hF"): run(f)
w4_issue(8 - w4s["iss"])
items = cs_items(0) + cs_items(1)
D = 6
cs_seen = set()
hS = hook("hS")
for i in range(len(items) + D):
    if i < len(items):
        bs, off, b = items[i]
        for r in range(2):
            e(f"ds_read_b64_tr_b16 {ar(AB+4*(i&7)+2*r, 2)}, v{bs} offset:{off+896*4*r}", tag=f"a{i}")
    k = i - D
    if k >= 0:
        if k % 2 == 0:
            A.wait_lg(f"a{k+1}")
        bs, off, b = items[k]
        c = vr(CS + 4 * b) if b in cs_seen else "0"
        cs_seen.add(b)
        if k % 4 == 1 and hS: run(hS.pop(0))
        e(f"v_mfma_f32_16x16x32_bf16 {vr(CS+4*b)}, {vr(ASEL if b < 3 else ONES)}, {ar(AB+4*(k&7))}, {c}")
HD = ACC + 48
AP = 12
BH = 22
BP = 120
S0 = TMP


def w3_addr(ks, b, r):
    j, q = ks >> 2, ks & 3
    hi = j >= 4
    off = 896 * (16 * (j - 4 * hi) + q + 4 * r)
    if b < 3:
        return TRB + hi, off + 256 * b
    return TRB + 2 + hi, off


items = [(ks, b) for ks in range(32) for b in range(2)]
NA = 64
for p in range(17):
    if p < 16:
        items += [(2 * p, 2), (2 * p + 1, 2)]
    if p > 0:
        items += [(2 * p - 2, 3)]
nrd = [0]


def rd3(upto):
    while nrd[0] <= upto and nrd[0] < len(items):
        i = nrd[0]
        ks, b = items[i]
        for r in range(2):
            bs, off = w3_addr(ks, b, r)
            e(f"ds_read_b64_tr_b16 {ar(AB+4*(i&7)+2*r, 2)}, v{bs} offset:{off}", tag=f"a{i}")
        nrd[0] += 1


def cs_exchange():
    for b in range(4):
        e(f"v_mov_b32 v{S0+b}, v{CS+4*b}")
    e(f"ds_write_b128 v126, {vr(S0)}", tag="csw")
    A.wait_lg0()
    e("s_barrier")
    for i in range(4):
        e(f"ds_read_b128 {vr(CS+4*i)}, v127 offset:{1024*i}", tag="cs")
    rd3(5)


cs_exchange()


def cs_finish():
    A.wait_lg("cs")
    for b in range(0, 4, 2):
        e(f"v_pk_add_f32 {vr(CS+b, 2)}, {vr(CS+b, 2)}, {vr(CS+4+b, 2)}\nv_pk_add_f32 {vr(CS+8+b, 2)}, {vr(CS+8+b, 2)}, {vr(CS+12+b, 2)}")
    for b in range(0, 4, 2):
        e(f"v_pk_add_f32 {vr(CS+b, 2)}, {vr(CS+b, 2)}, {vr(CS+8+b, 2)}")
    for b in range(4):
        e(f"v_cvt_pk_bf16_f32 v{AP+2*b}, v{CS+b}, v{CS+b}")
        e(f"v_and_b32 v{S0}, 0xffff0000, v{AP+2*b}")
        e(f"v_sub_f32 v{S0}, v{CS+b}, v{S0}")
        e(f"v_cvt_pk_bf16_f32 v{AP+2*b+1}, v{S0}, v{S0}")
    e(f"v_mov_b32 v{AP+8}, 0\nv_mov_b32 v{AP+9}, 0")
    e(f"v_mov_b32 v{BH}, 0\nv_mov_b32 v{BH+2}, 0\nv_mov_b32 v{BH+3}, 0\nv_mov_b32 v{BP+2}, 0\nv_mov_b32 v{BP+3}, 0")


poll(sT1, 16, OPT["r2"], cs_finish, (lambda: pf(True)) if OPT["pfp"] & 2 else None)
stamp(1, 3, 4)


def y_issue(ks):
    e(f"buffer_load_dwordx4 {vr(BF+4*ks)}, {vL16}, {SWS}, s{YT[ks>>2]} offen offset:{1024*(ks&3)}{fl('ld')}", tag=f"y{ks}")


def st_issue(jj):
    e(f"buffer_load_dwordx2 {vr(S0+2*jj, 2)}, v48, {SWS}, {sT4} offen offset:{256*jj} sc1", tag="st")


NY0 = OPT["ny0"]
for ks in range(NY0):
    y_issue(ks)
    if ks == 3:
        for jj in range(4): st_issue(jj)
F = {i: [] for i in range(len(items))}
for k, ks in enumerate(range(NY0, 32)):
    F[2 * k].append(lambda ks=ks: y_issue(ks))
with Cap() as st:
    e(f"v_add_f32 v{S0}, v{S0}, v{S0+2}\nv_add_f32 v{S0+1}, v{S0+1}, v{S0+3}\nv_add_f32 v{S0+4}, v{S0+4}, v{S0+6}\nv_add_f32 v{S0+5}, v{S0+5}, v{S0+7}")
    e(f"v_add_f32 v{S0}, v{S0}, v{S0+4}\nv_add_f32 v{S0+1}, v{S0+1}, v{S0+5}")
    e(f"v_mov_b32 v{S0+2}, v{S0}\nv_mov_b32 v{S0+3}, v{S0+1}")
    e(f"v_permlane32_swap_b32 v{S0}, v{S0+2}\nv_permlane32_swap_b32 v{S0+1}, v{S0+3}")
    e(f"v_add_f32 v{S0}, v{S0}, v{S0+2}\nv_add_f32 v{S0+1}, v{S0+1}, v{S0+3}")
    stat_consts(S0, S0 + 1, S0 + 2)
    e(f"v_cvt_pk_bf16_f32 v{S0}, v{cM}, v{cM}\nv_and_b32 v{S0}, 0xffff0000, v{S0}\nv_sub_f32 v{S0}, v{cM}, v{S0}")
    e(f"v_cvt_pk_bf16_f32 v{S0}, v{cM}, v{S0}")
    e(f"v_cmp_gt_u32 vcc, 32, {vL}")
    e(f"v_cndmask_b32 v{BP}, 0, v{S0}, vcc")
    e(f"v_mov_b32 v{BP+1}, v{BP}\nv_mov_b32 v{BH+4}, v{BP}")
    e(f"v_permlane16_swap_b32 v{BH+4}, v{BH}")
    e(f"v_mov_b32 v{BH+5}, v{BH+4}\nv_mov_b32 v{BH+1}, v{BH}")
IS = 64 - (len(st) + 2) // 3
for k, s_ in enumerate(st):
    F[IS + k // 3].append(s_)
wq = []
for c in range(OPT["wa0"] and 2):
    wq += [lambda: w4_read(2), lambda: w4_read(2)]
for k, f in enumerate(wq):
    F[OPT["wa0"] + 2 * k + 1].append(f)
i0 = 2 * (32 - NY0)
if OPT["wa0"]:
    F[i0].append(w4_release)
    for k in range(8):
        F[i0 + k * OPT["wad"]].append(lambda: w4_issue(1))
for k, f in enumerate(hook("hP")):
    F[1 + 4 * k].append(f)
started = set()


def corr(b):
    e(f"v_mfma_f32_32x32x16_bf16 {vr(ACC+16*b, 16)}, {vr(AP+2*b)}, {vr(BP)}, {vr(ACC+16*b, 16)}")


def mf3(i):
    ks, b = items[i]
    if b < 3:
        c = vr(ACC + 16 * b, 16) if b in started else "0"
        e(f"v_mfma_f32_32x32x16_bf16 {vr(ACC+16*b, 16)}, {ar(AB+4*(i&7))}, {vr(BF+4*ks)}, {c}")
    else:
        for u in range(2):
            c = vr(HD + 4 * u) if b in started else "0"
            e(f"v_mfma_f32_16x16x32_bf16 {vr(HD+4*u)}, {ar(AB+4*(i&7))}, {vr(BF+4*ks+4*u)}, {c}")
    started.add(b)


for i in range(NA):
    ks, b = items[i]
    if b == 0:
        rd3(i + 7)
        A.wait_vm(f"y{ks}")
        A.wait_lg(f"a{i+1}")
    if i == 32:
        stamp(4)
    mf3(i)
    for f in F[i]:
        run(f)
corr(0)
corr(1)
stamp(1, 4)


def h3_store(dsts, blk):
    for c2 in range(2):
        off = 2048 * blk + 1024 * c2
        if off == 4096:
            e(f"s_add_u32 {sHs}, {sHs}, 4096")
        e(f"buffer_store_dwordx4 {vr(dsts+4*c2)}, {vL16}, {SWS}, {sHs} offen offset:{off&4095}{fl('hst')}", tag=f"h{blk}")


def epi_pk(acc, T, dsts, fill, ng=4):
    k = 0
    for g in range(ng):
        for s_ in gelu4pk(acc + 4 * g, T + 4 * (g & 1), [dsts + 2 * g, dsts + 2 * g + 1]):
            e(s_)
            k += 1
            if k % 5 == 0 and fill:
                run(fill.pop(0))


def pub3(tag):
    A.wait_vm(tag)
    publish(sP3, OPT["r3"])
    e(f"s_add_u32 {sP3}, {sP3}, 512")


fill = []
for c in range(OPT["wg"]):
    fill += [f for f in w4_cycle()] + [None] * 7
epi_pk(ACC, TMP, TMP + 8, fill)
h3_store(TMP + 8, 0)
epi_pk(ACC + 16, TMP, X1P, fill)
h3_store(X1P, 1)
for f in fill:
    run(f)
stamp(4, 5)
fill = []
for c in range(OPT["wb"]):
    fill += w4_cycle() + [None] * OPT["wbg"]
zs = [0]


def z_issue(n=1):
    for _ in range(n):
        z = zs[0]
        if z >= 56:
            return
        mm, ksl = P4K[z >> 1]
        blk, c2 = KSL[ksl]
        tb = z & 1
        so, off = f"s{HA[mm]}", 2048 * blk + 1024 * c2
        if blk == 3:
            so, off = sT5, 0
            if tb == 0:
                e(f"s_add_u32 {sT5}, s{HA[mm]}, s{DH[mm&1]}")
        elif blk == 2:
            so, off = sT5, 1024 * c2
            if tb == 0 and c2 == 0:
                e(f"s_add_u32 {sT5}, s{HA[mm]}, 4096")
        e(f"buffer_load_dwordx4 {vr(BF+4*(z&31))}, {vH[tb]}, {SWS}, {so} offen offset:{off}{fl('ld')}", tag=f"z{z}")
        zs[0] += 1


def phb(lo, hi, zz):
    for i in range(lo, hi):
        ks, b = items[i]
        rd3(i + 6)
        A.wait_lg(f"a{i}")
        mf3(i)
        if b == 2 and ks % 2 == 0 and ks > 0 or i == len(items) - 2:
            k2 = ks - 2 if i != len(items) - 2 else 30
            if i == len(items) - 2:
                corr(2)
            for d in range(4):
                e(f"v_permlane16_swap_b32 v{BF+4*k2+d}, v{BF+4*k2+4+d}")
        if i == NA + 3 * OPT["pubb"]:
            pub3("h1")
        elif i > NA + 2:
            for _ in range(OPT["wbn"]):
                if fill:
                    run(fill.pop(0))
        if zz and zs[0] < OPT["zla"]:
            z_issue(1)


PA = NA + OPT["pola"]
phb(NA, PA, 0)
poll(sQ3, 8, OPT["r3"], lambda: phb(PA, PA + 4, 0))
stamp(5)
e(f"s_add_u32 {sQ3}, {sQ3}, 512")
phb(PA + 4, len(items), 1)
e(f"v_mfma_f32_16x16x32_bf16 {vr(HD)}, {vr(AP+4)}, {vr(BH+2)}, {vr(HD)}")
e(f"v_mfma_f32_16x16x32_bf16 {vr(HD+4)}, {vr(AP+6)}, {vr(BH)}, {vr(HD+4)}")
for f in fill:
    run(f)
stamp(1, 4, 5)
sys.stderr.write(f"w4 state at P3 end {w4s}\n")
def tail1():
    e(f"v_and_b32 v60, 31, {vL}\nv_bfe_u32 v61, {vL}, 1, 3\nv_lshrrev_b32 v62, 5, {vL}")
    e(f"s_and_b32 {sT5}, {sW}, 1\ns_lshl_b32 {sT5}, {sT5}, 2\nv_xor_b32 v61, {sT5}, v61")
    e(f"s_lshr_b32 {sT5}, {sW}, 1\ns_lshl_b32 {sT5}, {sT5}, 12\ns_add_u32 {sT5}, {sT5}, {LX1R}")
    e(f"v_lshl_add_u32 v60, v60, 7, {sT5}\nv_lshl_add_u32 v60, v61, 4, v60\nv_lshl_add_u32 v60, v62, 3, v60")
    for g in range(1, 4):
        e(f"v_xor_b32 v{60+g}, {16*g}, v60")
    for g in range(4):
        e(f"ds_read_b64 {vr(ACC+16+2*g, 2)}, v{60+g}", tag="xr")
    epi_pk(ACC + 32, TMP, TMP + 8, [])
    h3_store(TMP + 8, 2)


z_issue(OPT["zla"] - zs[0])
tail1()
for d in range(4):
    e(f"v_permlane16_swap_b32 v{HD+d}, v{HD+4+d}")
epi_pk(HD, TMP, X1P, [], 2)
e(f"buffer_store_dwordx4 {vr(X1P)}, {vL16}, {SWS}, {sHh} offen{fl('hst')}", tag="h3")
A.wait_lg("xr")
for g in range(4):
    for d in range(2):
        e(f"v_lshlrev_b32 v{ACC+4*g+2*d}, 16, v{ACC+16+2*g+d}")
        e(f"v_and_b32 v{ACC+4*g+2*d+1}, 0xffff0000, v{ACC+16+2*g+d}")
stamp(1, 4, 5)
started = {0}
F = {i: [] for i in range(112)}
F[OPT["pub2"]].append(lambda: (pub3("h3"), stamp(5)))

fill = []
while len(fill) // 8 * 4 + w4s["con"] < 56:
    fill += w4_cycle() + [None]
for k, f in enumerate(fill):
    F[1 + k].append(f)
with Cap() as st:
    e("s_barrier")
    e(f"s_lshl_b32 {sT4}, {sW}, 14\nv_add_u32 v40, {sT4}, {vL16}")
    for i in range(1, 4):
        e(f"v_xor_b32 v{40+i}, {16384*i}, v40")
    e(f"s_lshr_b32 {sT1}, {sW}, 1\ns_lshl_b32 {sT1}, {sT1}, 15\ns_and_b32 {sT4}, {sW}, 1\ns_lshl_b32 {sT4}, {sT4}, 6\ns_add_u32 {sT1}, {sT1}, {sT4}")
    if OPT["otr"]:
        e(f"v_and_b32 v44, 31, {vL}\nv_lshrrev_b32 v45, 5, {vL}\nv_bfe_u32 v46, {vL}, 1, 2\nv_lshlrev_b32 v44, 6, v44")
        e(f"v_lshl_add_u32 v44, v45, 3, v44\nv_lshl_add_u32 v44, v46, 4, v44\ns_lshl_b32 {sT4}, {sW}, 14\nv_add_u32 v32, {sT4}, v44")
        for g in range(1, 4):
            e(f"v_xor_b32 v{32+g}, {16*g}, v32")
        e(f"v_bfe_u32 v45, {vL}, 3, 2\nv_lshlrev_b32 v45, 4, v45\nv_xor_b32 v36, v45, v40")
        e(f"v_lshrrev_b32 v44, 2, {vL}\nv_and_b32 v45, 3, {vL}\nv_lshlrev_b32 v44, 10, v44\nv_lshl_add_u32 v44, v45, 4, v44")
        e(f"s_add_u32 {sT4}, {sT1}, 16384")
    else:
        e(f"v_and_b32 v44, 31, {vL}\nv_lshrrev_b32 v45, 5, {vL}\nv_lshlrev_b32 v44, 10, v44\nv_lshl_add_u32 v44, v45, 4, v44")
for k, s_ in enumerate(st):
    F[92 + k // 2].append(s_)


def p4(lo, hi):
    for i in range(lo, hi):
        z, b = i >> 1, i & 1
        mm, ksl = P4K[z >> 1]
        if b == 0:
            A.wait_vm(f"z{z}")
            if z % 4 == 0:
                assert w4s["con"] >= z + 4, (z, w4s)
                A.wait_lg(f"w4c{z+3}")
        sl = 2 * (z & 1) + b
        c = vr(ACC + 16 * sl, 16) if sl in started else "0"
        started.add(sl)
        e(f"v_mfma_f32_32x32x16_bf16 {vr(ACC+16*sl, 16)}, {ar(8*(7*mm+ksl)+4*b)}, {vr(BF+4*(z&31))}, {c}")
        if b == 1 and zs[0] < lim[0] and zs[0] - z <= OPT["zla"]:
            z_issue(1)
        for f in F[i]:
            run(f)


lim = [32]
P2_ = OPT["pol2"]
p4(0, P2_)
stamp(5)
poll(sQ3, 8, OPT["r3"], lambda: p4(P2_, P2_ + 8))
stamp(4, 5)
lim = [56]
z_issue(min(4, OPT["zla"] - (zs[0] - (P2_ + 8) // 2)))
p4(P2_ + 8, 112)
stamp(1, 5)
for i in range(1, 4):
    for g in range(4):
        e(f"ds_write_b128 v{40+i}, {vr(ACC+16*i+4*g)} offset:{RED+4096*i+1024*g}", tag="rw")
A.wait_lg0()
e("s_barrier")
for g in range(4):
    for i in range(1, 4):
        e(f"ds_read_b128 {vr(BF+16*i+4*g)}, v40 offset:{RED+4096*i+1024*g}", tag=f"rr{g}")
for g in range(4):
    A.wait_lg(f"rr{g}")
    r, a = BF + 4 * g, ACC + 4 * g
    for h in (0, 2):
        e(f"v_pk_add_f32 {vr(a+h, 2)}, {vr(a+h, 2)}, {vr(r+16+h, 2)}")
        e(f"v_pk_add_f32 {vr(r+32+h, 2)}, {vr(r+32+h, 2)}, {vr(r+48+h, 2)}")
    for h in (0, 2):
        e(f"v_pk_add_f32 {vr(a+h, 2)}, {vr(a+h, 2)}, {vr(r+32+h, 2)}")
    for d in range(2):
        e(f"v_cvt_pk_bf16_f32 v{TMP+8+2*g+d}, v{a+2*d}, v{a+2*d+1}")
    if OPT["otr"]:
        e(f"ds_write_b64 v{32+g}, {vr(TMP+8+2*g, 2)} offset:{RED}", tag="ow")
    elif g % 2 == 1:
        o = TMP + 8 + 4 * (g >> 1)
        e(f"v_permlane32_swap_b32 v{o}, v{o+2}\nv_permlane32_swap_b32 v{o+1}, v{o+3}")
        e(f"buffer_store_dwordx4 {vr(o)}, v44, {SOUT}, {sT1} offen offset:{32*(g>>1)}{fl('ost')}", tag="o")
if OPT["otr"]:
    for i2 in range(2):
        e(f"ds_read_b128 {vr(BF+4*i2)}, v36 offset:{RED+1024*i2}", tag=f"or{i2}")
    for i2 in range(2):
        A.wait_lg(f"or{i2}")
        e(f"buffer_store_dwordx4 {vr(BF+4*i2)}, v44, {SOUT}, {(sT1, sT4)[i2]} offen{fl('ost')}", tag="o")
if PROF:
    stamp(5)
    A.wait_vm0()
    stamp(1, 5)
    A.wait_lg0()
    e("s_load_dwordx2 s[36:37], s[0:1], 56")
    A.wait_lg0()
    e(f"s_mov_b32 {sT1}, {PROF_OFF}")
    srd(28, 36, add=sT1, size=1 << 20)
    e(f"s_lshl_b32 {sT1}, s2, 2\ns_add_u32 {sT1}, {sT1}, {sW}\ns_lshl_b32 {sT1}, {sT1}, 6")
    e("v_mov_b32 v2, 0")
    for i in range(nstamp[0]):
        e(f"v_mov_b32 v3, s{82+2*i}")
        e(f"buffer_store_dword v3, v2, {SWS}, {sT1} offen offset:{4*i}")
    if OPT["dbg"]:
        e(f"s_lshl_b32 {sT4}, s2, 2\ns_add_u32 {sT4}, {sT4}, {sW}\ns_cmp_lg_u32 {sT4}, {OPT['dbg']}\ns_cbranch_scc1 L_end")
        e("s_mov_b64 exec, 1")
        for i in range(nstamp[0]):
            e(f"s_sub_u32 {sT4}, s{82+2*i}, s82\nv_mov_b32 v3, {sT4}")
            e(f"buffer_store_dword v3, v2, {SDBG}, 0 offen offset:{4*i} sc1")
        e(f"v_mov_b32 v3, {sMode}\nbuffer_store_dword v3, v2, {SDBG}, 0 offen offset:40 sc1")
        e("s_mov_b64 exec, -1")
    e(f"v_mov_b32 v3, {sMode}")
    e(f"buffer_store_dword v3, v2, {SWS}, {sT1} offen offset:60")
e("L_end:")
e("s_endpgm")
A.raw("L_codeend:")
A.raw('.section .rodata,"a"\n.p2align 6\n.amdhsa_kernel standalone__mixer_s_mlp__prompt_kernel')
A.raw("""  .amdhsa_next_free_vgpr 512
  .amdhsa_next_free_sgpr 102
  .amdhsa_accum_offset 256
  .amdhsa_group_segment_fixed_size 0
  .amdhsa_kernarg_size 64
  .amdhsa_user_sgpr_count 2
  .amdhsa_user_sgpr_kernarg_segment_ptr 1
  .amdhsa_system_sgpr_workgroup_id_x 1
.end_amdhsa_kernel""")
sys.stdout.write(A.text())
sys.stderr.write(f"lines {len(A.lines)} nops {A.nnop} stamps {nstamp[0]}\n")
```

```python
import sys, math, struct
sys.path.insert(0, "tools")
from asmlib import Asm

OPT = dict(pft=1, e4=0, dfr=1, dsl="33_33_34_34_35_35_36_36_37_32", r1=16, r2=16, r3=8, fst="none", dbg=0, pfl=56, rot3=0, pfp=0, pfw=1, pfa=34, pfd=15, hG="", hS="", hP="nx9_q", pola=30, wbn=1, wbg=1, otr=1, hA="nx6_w3x14", hB="", hC="w3x14", hD="q", hE="", hF="", wa0=22, wad=1, wg=3, wb=5, pubb=5, zla=12, pub2=20, pol2=40, w4p=0, w2a=17, w2b=25, w2d=1, pf3=1, pf4="-1", pf4a=0, pf4b=0, ld="sc1", ng0=12, p2n=7, nb1=7, na1=4, fr0=24, frd=5, tlb=0, hel=7, held=15, ny0=12, na0=10, p2s=4, p2d=2, nb0=0, w4o="la", w4s=50, w4d=3, prof=0, gst="sc1", xst="sc1", hst="sc1", ost="sc1", forceslow=0)
for a in sys.argv[1:]:
    k, v = a.split("=")
    OPT[k] = int(v) if v.lstrip("-").isdigit() else v
PROF = OPT["prof"]


def fl(name):
    v = OPT[name]
    return "" if v == "none" else " " + v.replace("_", " ")


def f32(x):
    return "0x%08x" % struct.unpack("<I", struct.pack("<f", x))[0]


G_OFF = 0
X1_OFF = 128 << 10
H3_OFF = 256 << 10
STAT_OFF = 704 << 10
FLAG_OFF = 720 << 10
HEL_OFF = 12288
PROF_OFF = 16 << 20
WS_SIZE = 1 << 20
LW1 = 0
LW2 = 98304
LST = 131072
LXR = 86016
LX1R = 114688
LMISC = 122880
LCX = 94208
LDS_TOTAL = 163840
RED = 0
sW = "s3"
SX, SW1, SW2, SW3, SW4, SOUT, SWS, SDBG = ("s[4:7]", "s[8:11]", "s[12:15]", "s[16:19]", "s[20:23]", "s[24:27]",
                                           "s[28:31]", "s[32:35]")
sG, sM, sS, sJ, sT0, sMode, sHello, sRot1 = "s52", "s53", "s54", "s55", "s56", "s57", "s58", "s59"
sRot3 = "s52"
sKW = "s56"
KF = [73, 74, 78, 79]
DH = [80, 81]
sFB = "s[60:61]"
sDB = "s[62:63]"
sStg = "s64"
sT1, sT2, sT3, sT4, sT5, sT6 = "s65", "s66", "s67", "s68", "s69", "s70"
sRep, sCnt = "s71", "s72"
sH0 = "s58"
sPar = "s75"
sW3o, sW3m = "s76", "s77"
sW4o = "s76"
vL, vL16, vRep, vW4d, vOne, vMisc = "v0", "v1", "v6", "v7", "v10", "v11"
TRB = 2
W4T = 8
W3D = 12
ONES = 20
ASEL = 24
cA, cB, cI, cM = 28, 29, 30, 31
X1P = 32
TMP = 40
ACC = 64
BF = 128
AB = 224

K1 = -2.0 * math.sqrt(2.0 / math.pi) * math.log2(math.e)
K3 = 0.044715

A = Asm()
e = A.e
nlab = [0]
nstamp = [0]


def lab(p="L"):
    nlab[0] += 1
    return f"{p}_{nlab[0]}"


def stamp(*sets):
    if not sets:
        sets = (1,)
    if PROF in sets:
        i = nstamp[0]
        assert i < 10
        e(f"s_memtime s[{82+2*i}:{83+2*i}]")
        nstamp[0] += 1


def vr(b, n=4):
    return f"v[{b}:{b+n-1}]"


def ar(b, n=4):
    return f"a[{b}:{b+n-1}]"


def srd(dst, ptr_lo, add=None, size=0x7fffffff):
    if add is None:
        e(f"s_mov_b32 s{dst}, s{ptr_lo}\ns_mov_b32 s{dst+1}, s{ptr_lo+1}")
    else:
        e(f"s_add_u32 s{dst}, s{ptr_lo}, {add}\ns_addc_u32 s{dst+1}, s{ptr_lo+1}, 0")
    e(f"s_mov_b32 s{dst+2}, {size}\ns_mov_b32 s{dst+3}, 0x20000")


def poll(soff, ndw, nrep, between=None, inloop=None):
    L, Lw, Ld = lab("Lp"), lab("Lw"), lab("Ld")

    def issue(nxt):
        Lg = lab("Lg")
        e(f"s_cmp_ge_u32 {sRep}, {nrep*64}\ns_cbranch_scc1 {Lg}")
        e(f"s_add_u32 {sT6}, {soff}, {sRep}")
        e(f"s_load_dwordx{ndw} s[36:{36+ndw-1}], {sFB}, {sT6}")
        e(f"s_add_u32 {sRep}, {sRep}, 64\ns_branch {nxt}")
        e(f"{Lg}:")
        e(f"s_load_dwordx{ndw} s[36:{36+ndw-1}], {sFB}, {soff} glc")

    e(f"s_mov_b32 {sRep}, {sMode}\ns_mov_b32 {sCnt}, 0")
    if between is not None:
        Lb = lab("Lb")
        issue(Lb)
        e(f"{Lb}:")
        between()
        e(f"s_branch {Lw}")
    e(f"{L}:")
    e(f"s_add_u32 {sCnt}, {sCnt}, 1\ns_cmp_gt_u32 {sCnt}, 30000\ns_cbranch_scc1 L_end")
    if inloop:
        inloop()
    issue(Lw)
    e(f"{Lw}:")
    A.wait_lg0()
    n = ndw
    while n > 2:
        for i in range(0, n // 2, 2):
            e(f"s_and_b64 s[{36+i}:{37+i}], s[{36+i}:{37+i}], s[{36+n//2+i}:{37+n//2+i}]")
        n //= 2
    e("s_and_b32 s36, s36, s37")
    e(f"s_cbranch_scc0 {L}")


def publish(soff, nrep):
    Ls, Ld = lab("Ls"), lab("Ld")
    e(f"s_cmp_lg_u32 {sMode}, 0\ns_cbranch_scc1 {Ls}")
    e(f"s_mov_b64 exec, {(1 << nrep) - 1}")
    e(f"buffer_store_dword {vOne}, {vRep}, {SWS}, {soff} offen{fl('fst')}", tag="flag")
    e(f"s_branch {Ld}")
    e(f"{Ls}:")
    e("s_mov_b64 exec, 1")
    e(f"buffer_store_dword {vOne}, {vRep}, {SWS}, {soff} offen sc1", tag="flag")
    A.untrack()
    e(f"{Ld}:")
    e("s_mov_b64 exec, -1")


def stat_consts(vS, vQ, t):
    e(f"v_mul_f32 v{cM}, {f32(-1.0/512)}, v{vS}")
    e(f"v_mul_f32 v{t}, v{cM}, v{cM}")
    e(f"v_mov_b32 v{t+1}, {f32(1.0/512)}")
    e(f"v_fma_f32 v{t}, v{vQ}, v{t+1}, -v{t}")
    e(f"v_max_f32 v{t}, 0, v{t}")
    e(f"v_add_f32 v{t}, {f32(1e-5)}, v{t}")
    e(f"v_rsq_f32 v{t+1}, v{t}")
    e(f"v_sqrt_f32 v{cI}, v{t}")
    e(f"v_mul_f32 v{cA}, {f32(K1)}, v{t+1}")
    e(f"v_mul_f32 v{t}, v{t+1}, v{t+1}")
    e(f"v_mul_f32 v{t}, {f32(K3)}, v{t}")
    e(f"v_mul_f32 v{cB}, v{cA}, v{t}")


def gelu4(a, T, dst):
    o = []
    for i in range(4): o.append(f"v_mul_f32_e64 v{T+i}, v{a[i]}, v{a[i]}")
    for i in range(4): o.append(f"v_fma_f32 v{T+i}, v{T+i}, v{cB}, v{cA}")
    for i in range(4): o.append(f"v_mul_f32_e64 v{T+i}, v{a[i]}, v{T+i}")
    for i in range(4): o.append(f"v_exp_f32_e64 v{T+i}, v{T+i}")
    for i in range(4): o.append(f"v_fma_f32 v{T+i}, v{T+i}, v{cI}, v{cI}")
    for i in range(4): o.append(f"v_rcp_f32_e64 v{T+i}, v{T+i}")
    for i in range(4): o.append(f"v_mul_f32_e64 v{T+i}, v{a[i]}, v{T+i}")
    o.append(f"v_cvt_pk_bf16_f32 v{dst[0]}, v{T}, v{T+1}")
    o.append(f"v_cvt_pk_bf16_f32 v{dst[1]}, v{T+2}, v{T+3}")
    return o


def gelu4pk(a, T, dst):
    o = []
    for i in (0, 2): o.append(f"v_pk_mul_f32 v[{T+i}:{T+i+1}], v[{a+i}:{a+i+1}], v[{a+i}:{a+i+1}]")
    for i in (0, 2): o.append(f"v_pk_fma_f32 v[{T+i}:{T+i+1}], v[{T+i}:{T+i+1}], v[{cA}:{cB}], v[{cA}:{cB}] op_sel:[0,1,0] op_sel_hi:[1,1,0]")
    for i in (0, 2): o.append(f"v_pk_mul_f32 v[{T+i}:{T+i+1}], v[{a+i}:{a+i+1}], v[{T+i}:{T+i+1}]")
    for i in range(4): o.append(f"v_exp_f32_e64 v{T+i}, v{T+i}")
    for i in (0, 2): o.append(f"v_pk_fma_f32 v[{T+i}:{T+i+1}], v[{T+i}:{T+i+1}], v[{cI}:{cM}], v[{cI}:{cM}] op_sel:[0,0,0] op_sel_hi:[1,0,0]")
    for i in range(4): o.append(f"v_rcp_f32_e64 v{T+i}, v{T+i}")
    for i in (0, 2): o.append(f"v_pk_mul_f32 v[{T+i}:{T+i+1}], v[{a+i}:{a+i+1}], v[{T+i}:{T+i+1}]")
    o.append(f"v_cvt_pk_bf16_f32 v{dst[0]}, v{T}, v{T+1}")
    o.append(f"v_cvt_pk_bf16_f32 v{dst[1]}, v{T+2}, v{T+3}")
    return o


KSL = [(0, 0), (0, 1), (1, 0), (1, 1), (3, 0), (2, 0), (2, 1)]
W4G = []
for mm in range(4):
    W4G += [[(mm, 0), (mm, 1)], [(mm, 2), (mm, 3)]]
for mm in (0, 2):
    W4G += [[(mm, 5), (mm, 6)], [(mm + 1, 5), (mm + 1, 6)], [(mm, 4), (mm + 1, 4)]]
P4K = [k for g in W4G for k in g]
W4V = ["v7", "v57", "v58", "v59"]
w4s = dict(iss=0, con=0, free=0)


def w4_issue(n=1):
    for _ in range(n):
        i = w4s["iss"]
        if i >= 56:
            return
        g, n4 = i >> 2, i & 3
        assert 4 * (g - 1) <= w4s["free"], ("w4 ring overrun", i, w4s)
        mm, ksl = W4G[g][n4 >> 1]
        blk, c2 = KSL[ksl]
        set_m0(sStg, 4096 * (g & 1))
        if blk == 3:
            if n4 & 1 == 0:
                e(f"s_add_u32 {sW4o}, s{KF[mm]}, s{DH[mm&1]}")
                e(f"s_lshl4_add_u32 {sW4o}, {sW4o}, {(3072 - 8192*n4) & 0xffffffff}")
        elif n4 == 0:
            e(f"s_lshl4_add_u32 {sW4o}, s{KF[mm]}, {3072 + 32768*blk}")
        e(f"buffer_load_dwordx4 {W4V[n4]}, {SW4}, {sW4o} offen offset:{1024*n4} lds", tag=f"w4_{i}")
        w4s["iss"] += 1


def w4_read(n=4, wait=True):
    n = min(n, w4s["iss"] - w4s["con"])
    if n <= 0:
        return
    A.wait_vm(f"w4_{min(w4s['iss'], (w4s['con']+n+3)//4*4)-1}")
    for _ in range(n):
        i = w4s["con"]
        mm, ksl = W4G[i >> 2][(i >> 1) & 1]
        k, rd = 7 * mm + ksl, i & 1
        for b in range(2):
            e(f"ds_read_b64_tr_b16 {ar(8*k+4*b+2*rd, 2)}, v{W4T+b} offset:{1024*(i&7)}", tag=f"w4c{i}")
        w4s["con"] += 1


def w4_release():
    if w4s["free"] < w4s["con"]:
        A.wait_lg(f"w4c{w4s['con']-1}")
        w4s["free"] = w4s["con"]


def w4_cycle():
    return [lambda: w4_read(2), lambda: w4_read(2), None, lambda: (w4_release(), w4_issue(1)), lambda: w4_issue(1),
            lambda: w4_issue(1), lambda: w4_issue(1)]


m0c = [None]


def set_m0(sreg, lit):
    if m0c[0] != (sreg, lit):
        e(f"s_add_u32 m0, {sreg}, {lit}")
        m0c[0] = (sreg, lit)


W3B = [4, 5, 6, 7]
w3s = [0]


def w3_pump(cnt=1):
    for _ in range(cnt):
        i = w3s[0]
        if i >= 28:
            return
        period, n = i // 7, i % 7
        set_m0(sW3m, period * 4 * 7168 + (4096 if n >= 4 else 0))
        e(f"buffer_load_dwordx4 v{W3D+n}, {SW3}, s{W3B[period]} offen offset:{1024*(n&3)} lds", tag="w3")
        w3s[0] += 1


def tr_bases12(lbase, rot, t=TMP):
    e(f"v_lshrrev_b32 v{t}, 4, {vL}")
    e(f"v_bfe_u32 v{t+1}, {vL}, 2, 2")
    e(f"v_and_b32 v{t+2}, 3, {vL}")
    e(f"v_lshlrev_b32 v{t+3}, 9, v{t}")
    e(f"v_lshl_add_u32 v{t+3}, v{t+1}, 7, v{t+3}")
    e(f"v_lshl_add_u32 v{t+3}, v{t+2}, 3, v{t+3}")
    if lbase:
        e(f"v_add_u32 v{t+3}, {lbase}, v{t+3}")
    e(f"v_and_b32 v{t}, 1, v{t}")
    e(f"v_lshrrev_b32 v{t+1}, 1, v{t+1}")
    e(f"v_lshl_add_u32 v{t}, v{t}, 1, v{t+1}")
    if rot:
        e(f"v_xor_b32 v{t}, {sW}, v{t}")
    for i in range(4):
        e(f"v_xor_b32 v{t+1}, {i}, v{t}")
        e(f"v_lshl_add_u32 v{TRB+i}, v{t+1}, 5, v{t+3}")


def run(f):
    if f is None:
        return
    if callable(f):
        f()
    else:
        e(f)


class Cap:
    def __enter__(self):
        global e
        self.o = []
        self.old = e
        e = lambda s_, tag=None: self.o.extend([l for l in s_.split("\n") if l.strip()])
        return self.o

    def __exit__(self, *a):
        global e
        e = self.old


A.raw(f"; @launch grid=(256,1,1) block=(256,1,1) lds={LDS_TOTAL}")
A.raw('.amdgcn_target "amdgcn-amd-amdhsa--gfx950"')
A.raw(".text\n.globl standalone__mixer_s_mlp__prompt_kernel\n.p2align 8\n.type standalone__mixer_s_mlp__prompt_kernel,@function")
A.raw("standalone__mixer_s_mlp__prompt_kernel:")
e("s_cmp_ge_u32 s2, 256\ns_cbranch_scc1 L_end")
e("s_load_dwordx16 s[36:51], s[0:1], 0")
stamp(1, 2, 3, 4)
e("s_getpc_b64 s[68:69]")
A.raw("L_pc:")
if OPT["pft"]:
    e(f"v_lshrrev_b32 v2, 6, v0\nv_and_b32 {vL}, 63, v0\ns_bfe_u32 {sT6}, s2, 0x20003\ns_lshl_b32 {sT6}, {sT6}, 13")
    e(f"v_lshlrev_b32 v46, 7, {vL}\nv_lshl_add_u32 v46, v2, 11, v46\nv_add_u32 v46, {sT6}, v46\nv_min_u32 v46, L_codeend-L_pc-4, v46")
    e("s_mov_b64 exec, 0xffff")
    e("global_load_dword v255, v46, s[68:69]", tag="pf")
    A.untrack()
    e("s_mov_b64 exec, -1")
VX, VW1, VW2 = 192, 196, 200
vXr = "v63"
XR = list(range(73, 81))
WK = [81, 60, 61, 64]
if not OPT["pft"]:
    e(f"v_lshrrev_b32 v2, 6, v0")
    e(f"v_and_b32 {vL}, 63, v0")
e(f"v_readfirstlane_b32 {sW}, v2")
e(f"s_and_b32 {sT1}, s2, 7\ns_lshr_b32 {sT2}, s2, 3")
e(f"s_lshr_b32 {sT3}, {sT2}, 4\ns_lshl_b32 {sG}, {sT1}, 1\ns_add_u32 {sG}, {sG}, {sT3}")
e(f"s_and_b32 {sM}, {sT2}, 15\ns_lshr_b32 {sS}, {sM}, 3\ns_and_b32 {sJ}, {sM}, 7")
e(f"s_lshr_b32 {sRep}, {sT2}, 3")
e(f"s_lshl_b32 {sRot1}, {sRep}, 1\ns_add_u32 {sRot1}, {sRot1}, {sJ}")
e(f"s_lshl_b32 {sT0}, {sG}, 7\ns_lshl_b32 {sT1}, {sS}, 6\ns_add_u32 {sT0}, {sT0}, {sT1}")
e(f"s_lshr_b32 {sT1}, {sJ}, 1\ns_lshr_b32 {sT2}, {sT1}, 1\ns_add_u32 {sT2}, {sT2}, 1")
e(f"s_and_b32 {sT1}, {sT1}, 1\ns_cmp_eq_u32 {sT1}, 0\ns_cselect_b32 {sT3}, -1, 1\ns_mul_i32 {sT2}, {sT2}, {sT3}")
e(f"s_lshl_b32 {sT1}, {sW}, 4\ns_add_u32 {sCnt}, {sT1}, {sT0}\ns_add_u32 {sT2}, {sT2}, {sCnt}")
e(f"v_lshrrev_b32 v40, 2, {vL}\nv_add_u32 v40, {sT2}, v40\nv_and_b32 v40, 0xfffff, v40\nv_lshlrev_b32 v40, 10, v40")
e(f"v_lshrrev_b32 v46, 5, {vL}\nv_and_b32 v41, 3, {vL}\nv_lshlrev_b32 v42, 1, v46\nv_xor_b32 v41, v41, v42\nv_lshl_add_u32 v40, v41, 4, v40")
for n in range(4):
    e(f"v_add_u32 v{VX+n}, {64*(n&1) - 1024*n + 3072}, v40")
e(f"v_bfe_u32 v47, {vL}, 3, 2\nv_bfe_u32 v48, {vL}, 1, 2\nv_and_b32 v49, 1, {vL}")
e(f"v_lshrrev_b32 v50, 1, v47\nv_add_u32 v50, v42, v50\nv_xor_b32 v50, v48, v50")
e(f"v_lshlrev_b32 v50, 5, v50\nv_lshl_add_u32 v50, v49, 4, v50\nv_lshl_add_u32 v50, v47, 10, v50")
e(f"v_lshl_add_u32 v{VW1}, v46, 13, v50\nv_lshl_add_u32 v{VW2}, v46, 12, v50")
for n in range(1, 4):
    e(f"v_add_u32 v{VW1+n}, {[0, 15, 2, 17][n]*1024}, v{VW1}")
e(f"v_lshlrev_b32 {vL16}, 4, {vL}")
e(f"s_lshl_b32 {sT1}, {sJ}, 7")
e(f"s_lshl_b32 {sMode}, {sW}, 12")
e(f"s_lshl_b32 {sT3}, {sT0}, 10\ns_add_u32 {sT3}, {sT3}, {sT1}")
e(f"s_lshl1_add_u32 {sKW}, {sRot1}, {sW}")
for pp in range(8):
    e(f"s_add_u32 s{XR[pp]}, {sRot1}, {pp}\ns_and_b32 s{XR[pp]}, s{XR[pp]}, 7\ns_lshl_b32 s{XR[pp]}, s{XR[pp]}, 7")
for c in range(4):
    e(f"s_add_u32 s{WK[c]}, {sKW}, {4*c}\ns_and_b32 s{WK[c]}, s{WK[c]}, 15\ns_lshl_b32 s{WK[c]}, s{WK[c]}, 15")
for i in range(4): e(f"v_mov_b32 v{52+i}, 0")
e(f"s_and_b32 {sT2}, {sM}, 3\ns_or_b32 {sT2}, {sT2}, {sW}")
e(f"s_lshl_b32 {sHello}, {sM}, 11\ns_add_u32 {sHello}, {sHello}, {FLAG_OFF}")
if not OPT["pft"]:
    e(f"s_and_b32 {sT6}, {sJ}, 3\ns_lshl_b32 {sT6}, {sT6}, 2\ns_add_u32 {sT6}, {sT6}, {sW}\ns_lshl_b32 {sT6}, {sT6}, 11")
    e(f"v_lshlrev_b32 v46, 7, {vL}\nv_add_u32 v46, {sT6}, v46\nv_min_u32 v46, L_codeend-L_pc-4, v46")
e(f"s_lshl_b32 {sT6}, {sG}, 20")
e(f"s_mov_b32 s6, {2048*1024 + 3072}\ns_mov_b32 s7, 0x20000")
A.wait_lg0()
stamp(2)
e(f"s_sub_u32 s4, s36, 3072\ns_subb_u32 s5, s37, 0")
srd(28, 50, add=sT6, size=WS_SIZE)
Lr = lab("Lr")
e(f"s_cmp_lg_u32 {sT2}, 0\ns_cbranch_scc1 {Lr}")
e(f"s_add_u32 s32, {sHello}, 4096")
for k in range(8):
    e(f"buffer_store_dwordx4 v[52:55], {vL16}, {SWS}, {sHello if k < 4 else 's32'} offen offset:{1024*(k&3)} sc1")
    A.untrack()
e(f"{Lr}:")


def x_issue(p):
    set_m0(sMode, LW2 + 16384 * (p >> 2))
    e(f"buffer_load_dwordx4 v{VX+(p&3)}, {SX}, s{XR[p>>1]} offen offset:{1024*(p&3)} lds", tag=f"x{p}")


def w12_issue(which, c, n):
    set_m0(sMode, (LW1 if which == 1 else LW2) + 16384 * c)
    e(f"buffer_load_dwordx4 v{(VW1 if which == 1 else VW2)+n}, {SW1 if which == 1 else SW2}, s{WK[c]} offen offset:{1024*n} lds",
      tag=f"w{which}c{c}")


x_issue(0)
x_issue(1)
srd(8, 38, add=sT1, size=512 * 1024 - 896)
for n in range(4): w12_issue(1, 0, n)
x_issue(2)
x_issue(3)
if not OPT["pft"]:
    e("s_mov_b64 exec, 0xffff")
    e("global_load_dword v255, v46, s[68:69]", tag="pf")
    e("s_mov_b64 exec, -1")
q2 = [lambda p=p: x_issue(p) for p in range(4, 8)] + [lambda n=n: w12_issue(1, 1, n) for n in range(4)]
for f in q2[:OPT["e4"]]: f()
stamp(2)
DU = []


def defer(lines):
    if OPT["dfr"]:
        DU.append("\n".join(lines))
    else:
        e("\n".join(lines))
srd(12, 40, add=sT1, size=512 * 1024 - 896)
srd(24, 46, add=sT3, size=64 * 1024 - 896)
for n in range(1, 4):
    e(f"v_add_u32 v{VW2+n}, {7*1024*n}, v{VW2}")
e(f"v_lshlrev_b32 {vRep}, 6, {vL}")
e(f"v_mov_b32 {vOne}, 1")
e(f"s_mul_i32 {sT3}, {sM}, 224")
e(f"s_sub_u32 s16, s42, 3072\ns_subb_u32 s17, s43, 0")
e(f"s_add_u32 s16, s16, {sT3}\ns_addc_u32 s17, s17, 0")
e(f"s_mov_b32 s18, {512*3584 + 3072 - 224*15}\ns_mov_b32 s19, 0x20000")
e(f"s_mul_i32 {sT3}, {sW}, {448*1024}\ns_add_u32 {sT3}, {sT3}, {sT1}")
e(f"s_sub_u32 s20, s44, 3072\ns_subb_u32 s21, s45, 0")
e(f"s_add_u32 s20, s20, {sT3}\ns_addc_u32 s21, s21, 0")
e(f"s_mov_b32 s22, {448*1024 - 896 + 3072}\ns_mov_b32 s23, 0x20000")
if OPT["tlb"]:
    e(f"s_lshl_b32 {sT3}, {sW}, 4\nv_add_u32 v46, {sT3}, {vL}\nv_mul_u32_u24 v47, 28672, v46\nv_mul_u32_u24 v48, 28672, {vL}")
    e(f"v_lshlrev_b32 v49, 13, v46\nv_lshlrev_b32 v46, 10, v46")
    e("s_mov_b64 exec, 0xffff")
    e(f"buffer_load_dword v255, v49, {SW2}, 0 offen", tag="pf")
    e(f"buffer_load_dword v255, v47, {SW3}, 0 offen offset:3072", tag="pf")
    e(f"buffer_load_dword v255, v48, {SW4}, 0 offen offset:3072", tag="pf")
    e("s_mov_b64 exec, 1")
    e(f"buffer_load_dword v255, v46, {SOUT}, 0 offen", tag="pf")
    e("s_mov_b64 exec, -1")
e(f"s_lshl_b32 {sT3}, {sG}, 4\ns_add_u32 s62, s48, {sT3}\ns_addc_u32 s63, s49, 0")
e(f"v_lshl_add_u32 v60, {vL}, 2, {sT3}\nv_cmp_gt_u32 vcc, 4, {vL}\nv_cndmask_b32 v60, -1, v60, vcc")
e(f"v_lshlrev_b32 v62, 2, {vL}\nv_add_u32 v62, {FLAG_OFF + HEL_OFF}, v62\nv_cndmask_b32 v62, -1, v62, vcc")
e(f"s_add_u32 {sT3}, {sT3}, {sM}\nv_mov_b32 v19, {sT3}")
e(f"v_lshlrev_b32 v58, 7, {vL}\nv_add_u32 v58, {sHello}, v58")
e(f"s_add_u32 s42, s28, {FLAG_OFF + HEL_OFF}\ns_addc_u32 s43, s29, 0")
e(f"s_add_u32 {sT3}, {sM}, {FLAG_OFF + HEL_OFF}\nv_mov_b32 v57, {sT3}")
e(f"s_getreg_b32 {sHello}, hwreg(HW_REG_XCC_ID)")
e(f"s_and_b32 {sHello}, {sHello}, 15\ns_or_b32 {sHello}, {sHello}, 0x80")
if OPT["forceslow"]:
    e(f"s_cmp_eq_u32 {sM}, 5\ns_cselect_b32 {sHello}, 0x89, {sHello}")
e(f"v_mov_b32 v56, {sHello}")
e(f"s_mul_i32 {sHello}, {sHello}, 0x01010101")
e(f"s_mov_b32 s40, {sW}")
e(f"s_and_b32 {sT4}, {sG}, 1\ns_lshl_b32 {sT4}, {sT4}, 2\ns_add_u32 {sRot3}, {sT4}, {sM}")
if OPT["rot3"] == 0:
    e(f"s_mov_b32 {sRot3}, 0")
e(f"s_add_u32 {sRep}, {sRep}, {sJ}")
for i in range(4): e(f"v_mov_b32 v{ONES+i}, 0x3f803f80")
e(f"v_and_b32 v46, 15, {vL}\nv_lshrrev_b32 v47, 4, {vL}\nv_bfe_u32 v48, {vL}, 3, 1\nv_lshlrev_b32 v48, 1, v48\nv_xor_b32 v47, v47, v48")
e(f"v_lshlrev_b32 v46, 6, v46\nv_lshl_add_u32 v46, v47, 4, v46\ns_add_u32 {sT4}, {sMode}, {LW2}\nv_add_u32 {vXr}, {sT4}, v46")
e(f"v_lshrrev_b32 v46, 3, {vL}\nv_and_b32 v47, 7, {vL}\nv_lshrrev_b32 v48, 4, {vL}\nv_xor_b32 v47, v47, v48")
e(f"v_add_u32 v46, {sCnt}, v46\nv_lshlrev_b32 v46, 10, v46\nv_lshl_add_u32 {vMisc}, v47, 4, v46")
e(f"s_add_u32 {sT1}, {sT1}, 3072")
with Cap() as du:
    e(f"s_lshl_b32 {sT4}, {sW}, 13\ns_add_u32 {sT4}, {sT4}, {LST}")
    e(f"v_lshrrev_b32 v46, 5, {vL}\nv_bfe_u32 v47, {vL}, 3, 2\nv_bfe_u32 v48, {vL}, 2, 1\nv_and_b32 v49, 3, {vL}")
    e(f"v_lshrrev_b32 v50, 1, v47\nv_xor_b32 v50, v48, v50\nv_lshlrev_b32 v50, 6, v50\nv_lshl_add_u32 v50, v49, 4, v50")
    e(f"v_lshl_add_u32 v47, v46, 2, v47\nv_lshl_add_u32 {vW4d}, v47, 10, v50")
    e(f"v_bfe_u32 v47, {vL}, 2, 2\nv_bfe_u32 v48, {vL}, 4, 1")
    e(f"v_lshlrev_b32 v50, 9, v46\nv_lshl_add_u32 v50, v47, 7, v50\nv_lshl_add_u32 v50, v48, 5, v50\nv_lshl_add_u32 v50, v49, 3, v50")
    e(f"v_add_u32 v50, {sT4}, v50\nv_lshrrev_b32 v47, 1, v47")
    e(f"v_lshl_add_u32 v{W4T}, v47, 6, v50\nv_xor_b32 v47, 1, v47\nv_lshl_add_u32 v{W4T+1}, v47, 6, v50")
    e(f"s_and_b32 {sT4}, {sW}, 1\ns_lshl_b32 {sT4}, {sT4}, 6\nv_xor_b32 v{W4T}, {sT4}, v{W4T}\nv_xor_b32 v{W4T+1}, {sT4}, v{W4T+1}")
defer(du)
CX = 104
with Cap() as du:
    e(f"s_lshl_b32 {sT4}, {sW}, 10\ns_add_u32 {sT4}, {sT4}, {LCX}\nv_add_u32 v{CX}, {sT4}, {vL16}")
    for i in range(1, 4):
        e(f"v_xor_b32 v{CX+i}, {1024*i}, v{CX}")
defer(du)
for g in range(448): assert (g * 1171) >> 16 == g // 56
for n in range(7):
    with Cap() as du:
        e(f"s_and_b32 {sT6}, {sM}, 1")
        e(f"s_lshl_b32 {sT4}, {sT6}, 5")
        e(f"s_cmp_eq_u32 {sT6}, 0\ns_cselect_b32 {sT5}, 192, 0")
        e(f"v_add_u32 v46, {64*n}, {vL}")
        e(f"v_mul_u32_u24 v47, 1171, v46\nv_lshrrev_b32 v47, 16, v47")
        e(f"v_mul_u32_u24 v48, 56, v47\nv_sub_u32 v46, v46, v48")
        e(f"v_lshrrev_b32 v48, 4, v46\nv_and_b32 v49, 3, v46\nv_lshlrev_b32 v48, 6, v48\nv_lshl_add_u32 v48, v49, 4, v48")
        e(f"v_add_u32 v48, {sT4}, v48\nv_bfe_u32 v49, v46, 2, 2")
        e(f"v_and_b32 v50, 1, v46\nv_lshlrev_b32 v50, 4, v50\nv_add_u32 v50, {sT5}, v50\nv_bfe_u32 v51, v46, 1, 2")
        e(f"v_cmp_lt_u32 vcc, 47, v46")
        e(f"v_cndmask_b32 v48, v48, v50, vcc\nv_cndmask_b32 v49, v49, v51, vcc")
        e(f"v_lshl_add_u32 v47, v47, 2, v49\nv_mul_u32_u24 v47, 3584, v47")
        if (n & 3) != 3:
            e(f"v_add_u32 v48, {3072 - 1024*(n&3)}, v48")
        e(f"v_add_u32 v{W3D+n}, v47, v48")
    defer(du)
NL = OPT["pfl"]
with Cap() as du:
    e(f"s_lshr_b32 {sT4}, s2, 3\ns_mul_i32 {sT5}, {sT4}, {128*NL}\ns_lshl_b32 {sT6}, {sJ}, 7\ns_sub_u32 {sT5}, {sT5}, {sT6}\ns_add_u32 {sT5}, {sT5}, 3072")
    e(f"v_lshlrev_b32 v112, 7, {vL}\nv_add_u32 v113, {sT5}, v112")
    e(f"s_lshl2_add_u32 {sT4}, {sT4}, {sW}\ns_mul_i32 {sT4}, {sT4}, {128*NL}\ns_mul_i32 {sT6}, {sM}, 224\ns_sub_u32 {sT4}, {sT4}, {sT6}\ns_add_u32 {sT4}, {sT4}, 3072")
    e(f"v_add_u32 v112, {sT4}, v112")
    e(f"v_cmp_gt_u32 vcc, {NL}, {vL}\nv_mov_b32 v114, 0x40000000\nv_cndmask_b32 v112, v114, v112, vcc\nv_cndmask_b32 v113, v114, v113, vcc")
defer(du)
pfs = [0]


def pf(dyn=False):
    k = pfs[0]
    which = 1 if (k >= 112 // NL or dyn or OPT["pf3"] == 0) else 0
    e(f"buffer_load_dword v114, v{112+which}, {SW4 if which else SW3}, 0 offen", tag="pf")
    if dyn:
        A.untrack()
        e(f"v_add_u32 v113, {4096*NL}, v113\nv_min_u32 v113, 0x40000000, v113")
    else:
        e(f"v_add_u32 v{112+which}, {4096*NL if which else 16384*NL}, v{112+which}")
        pfs[0] += 1


def hook(name):
    o = []
    for t in str(OPT[name]).split("_"):
        if t in ("", "0"):
            continue
        k, n = (t.split("x") + ["1"])[:2]
        f = {"q": pf, "w3": lambda: w3_pump(1), "w4": lambda: w4_issue(1), "n": None}[k]
        o += [f] * int(n)
    return o


srd(32, 48, size=256)
tr_bases12(LW1, True)
Lr = lab("Lr")
e(f"s_cmp_lg_u32 {sT2}, 0\ns_cbranch_scc1 {Lr}")
e(f"s_waitcnt vmcnt({len(A.vm)})")
e("s_mov_b64 exec, 1")
e(f"buffer_store_dword {vOne}, v19, {SDBG}, 0 offen sc1")
A.untrack()
e("s_mov_b64 exec, -1")
e(f"{Lr}:")
stamp(2)
for f in q2[OPT["e4"]:]: f()


def reduce_q(s, q, t):
    e(f"v_permlane32_swap_b32 v{s}, v{q}")
    e(f"v_add_f32 v{s}, v{s}, v{q}")
    e(f"v_mov_b32 v{t}, v{s}")
    e(f"v_permlane16_swap_b32 v{s}, v{t}")
    e(f"v_add_f32 v{s}, v{s}, v{t}")
    e(f"v_mov_b32 v{t}, v{s}")
    e(f"v_permlane32_swap_b32 v{s}, v{t}")


def x_read(p):
    e(f"ds_read_b128 {vr(BF+4*p)}, {vXr} offset:{16384*(p>>2) + 1024*(p&3)}", tag=f"xr{p}")


gomark = [0]


def go_ld(mod):
    e(f"buffer_load_dword v59, v60, {SDBG}, 0 offen {mod}")
    A.untrack()
    gomark[0] = A.nvm


def go_load():
    L = lab("Lgo")
    e(f"s_cmp_lg_u32 s40, 0\ns_cbranch_scc1 {L}")
    go_ld("sc0")
    e(f"{L}:")


def go_check(final=False):
    L, L2, L0 = lab("Lgo"), lab("Lgp"), lab("Lgs")
    e(f"s_cmp_lg_u32 s40, 0\ns_cbranch_scc1 {L}")
    e(f"s_waitcnt vmcnt({A.nvm - gomark[0]})")
    if final:
        e(f"s_mov_b32 s41, 0")
        e(f"{L0}:")
    e("v_cmp_ne_u32 vcc, 0, v59")
    e("s_cmp_eq_u32 vcc_lo, 15")
    e(f"s_cbranch_scc1 {L2}")
    go_ld("sc1" if final else "sc0")
    if final:
        e("s_waitcnt vmcnt(0)")
        e(f"s_add_u32 s41, s41, 1\ns_cmp_gt_u32 s41, 30000\ns_cbranch_scc1 L_end")
        e(f"s_branch {L0}")
    else:
        e(f"s_branch {L}")
    e(f"{L2}:")
    e("s_mov_b64 exec, 1\ns_mov_b32 s40, 1")
    e(f"buffer_store_byte v56, v57, {SWS}, 0 offen sc1")
    A.untrack()
    e("s_mov_b64 exec, 0xffff")
    e(f"buffer_load_dword v61, v58, {SWS}, 0 offen sc1")
    A.untrack()
    e("s_mov_b64 exec, -1")
    e(f"{L}:")


def p1_pre(i):
    if i % 16 == 0:
        c = i // 16
        A.wait_vm(f"x3" if c == 0 else f"w1c{c}")
        for p in {0: range(0, 4), 1: range(4, 8), 2: range(8, 16), 3: []}[c]:
            x_read(p)
        e("s_barrier")
        stamp(2)


SUMA, GRAM = 96, 100


def stat_mfma(p, which):
    if which:
        return f"v_mfma_f32_16x16x32_bf16 {vr(GRAM)}, {vr(BF+4*p)}, {vr(BF+4*p)}, {vr(GRAM) if p else '0'}"
    return f"v_mfma_f32_16x16x32_bf16 {vr(SUMA)}, {vr(ONES)}, {vr(BF+4*p)}, {vr(SUMA) if p else '0'}"


F = {i: [] for i in range(64)}
lq = [lambda p=p: x_issue(p) for p in range(8, 16)] + [lambda c=c, n=n: w12_issue(1, c, n) for c in (2, 3) for n in range(4)]
for i in range(16):
    F[i].append(lq[i])
F[OPT["hel"]].append(go_load)
for k in range(1, 4):
    F[min(48, OPT["hel"] + OPT["held"] * k)].append(go_check)
for p in range(8):
    F[4 * p + 1].append(stat_mfma(p, 0))
    F[4 * p + 2].append(stat_mfma(p, 1))
for k in range(16):
    F[32 + k].append(stat_mfma(8 + (k >> 1), k & 1))
F[OPT["w2b"]].append(lambda: A.wait_lg("xr15"))
for k in range(8):
    F[OPT["w2a"] + OPT["w2d"] * k].append(lambda k=k: w12_issue(2, k >> 2, k & 3))
    F[OPT["w2b"] + OPT["w2d"] * k].append(lambda k=k: w12_issue(2, 2 + (k >> 2), k & 3))
with Cap() as st:
    for r in range(4):
        mk = sum(1 << (20 * g + r) for g in range(4))
        e(f"s_mov_b32 vcc_lo, {mk & 0xffffffff}\ns_mov_b32 vcc_hi, {mk >> 32}")
        e(f"v_cndmask_b32 v41, {'0' if r == 0 else 'v41'}, v{GRAM+r}, vcc")
    e("v_mov_b32 v42, v41\nv_permlane32_swap_b32 v41, v42\nv_add_f32 v41, v41, v42")
    e("v_mov_b32 v42, v41\nv_permlane16_swap_b32 v41, v42\nv_add_f32 v41, v41, v42")
    stat_consts(SUMA, 41, 44)
    e(f"s_lshl_b32 {sT4}, {sS}, 2\ns_add_u32 {sT4}, {sT4}, {sW}\ns_lshl_b32 {sT4}, {sT4}, 14")
    e(f"s_lshl_b32 {sT3}, {sJ}, 11\ns_add_u32 {sT3}, {sT3}, {sT4}")
    e(f"s_lshr_b32 {sT2}, {sW}, 1\ns_lshl_b32 {sT2}, {sT2}, 10")
    e(f"s_add_u32 {sCnt}, {sT3}, {sT2}\ns_xor_b32 {sT2}, {sT2}, 1024\ns_add_u32 {sT2}, {sT3}, {sT2}")
for k, s_ in enumerate(st):
    F[49 + k // 3].append(s_)
F[62].append(lambda: e(f"ds_write_b128 v{CX}, {vr(ACC+16)}", tag="csw"))


def xres():
    e(f"s_lshr_b32 {sT5}, {sMode}, 1\ns_add_u32 m0, {sT5}, {LXR}")
    m0c[0] = None
    e(f"buffer_load_dwordx4 {vMisc}, {SX}, {sT1} offen lds", tag="xres")
    e(f"v_xor_b32 {vMisc}, 64, {vMisc}\ns_add_u32 {sT1}, {sT1}, {8192-1024}")
    e(f"buffer_load_dwordx4 {vMisc}, {SX}, {sT1} offen offset:1024 lds", tag="xres")


F[16].append(xres)
if DU:
    slots = [int(t) for t in str(OPT["dsl"]).split("_")]
    assert len(slots) == len(DU) and slots[-1] < OPT["pfa"] and max(slots) < 49
    for sl_, u in zip(slots, DU):
        F[sl_].append(u)
for k in range(OPT["pfa"], 64, OPT["pfd"]):
    F[k].append(pf)
with Cap() as st:
    tr_bases12(LW2, False, 108)
for k, s_ in enumerate(st):
    F[55 + k // 2].append(s_)

D = 10


def rd1(i):
    ks, sl = i >> 2, i & 3
    p1_pre(i)
    b = 192 + 4 * (i & 15)
    for r in range(2):
        e(f"ds_read_b64_tr_b16 {ar(b+2*r, 2)}, v{TRB+sl} offset:{4096*ks+2048*r}", tag=f"a{i}")


for i in range(D):
    rd1(i)
for i in range(64):
    ks, sl = i >> 2, i & 3
    if i + D < 64:
        rd1(i + D)
    if i % 2 == 0:
        A.wait_lg(f"a{i+1}")
    c = vr(ACC + 4 * sl) if ks > 0 else "0"
    e(f"v_mfma_f32_16x16x32_bf16 {vr(ACC+4*sl)}, {ar(192+4*(i&15))}, {vr(BF+4*ks)}, {c}")
    if sl == 0:
        c = vr(ACC + 16) if ks > 0 else "0"
        e(f"v_mfma_f32_16x16x32_bf16 {vr(ACC+16)}, {ar(192+4*(i&15))}, {vr(ONES)}, {c}")
    for f in F[i]:
        run(f)
stamp(1, 2)
go_check(True)
A.wait_vm("w2c3")
stamp(3)
A.wait_lg0()
e("s_barrier")
for i in range(1, 4):
    e(f"ds_read_b128 {vr(ACC+16+4*i)}, v{CX+i}", tag=f"cs{i}")
e(f"buffer_load_dword v59, v62, {SWS}, 0 offen sc0", tag="hel")
A.wait_lg0()
for i in range(4):
    for h in (0, 2):
        e(f"v_pk_fma_f32 {vr(ACC+4*i+h, 2)}, {vr(ACC+16+4*i+h, 2)}, v[{cI}:{cM}], {vr(ACC+4*i+h, 2)} op_sel:[0,1,0] op_sel_hi:[1,1,1]")
hG = hook("hG")
for i in range(4):
    if hG: run(hG.pop(0))
    for s_ in gelu4pk(ACC + 4 * i, TMP + 4 * (i & 1), [TMP + 8 + 2 * i, TMP + 9 + 2 * i]):
        e(s_)
Lx = lab("Lx")
e(f"s_bitcmp0_b32 {sW}, 0\ns_cbranch_scc1 {Lx}")
for i2 in range(2):
    for d in range(2):
        e(f"v_swap_b32 v{TMP+8+4*i2+d}, v{TMP+10+4*i2+d}")
e(f"{Lx}:")
e(f"buffer_store_dwordx4 {vr(TMP+8)}, {vL16}, {SWS}, {sCnt} offen{fl('gst')}", tag="gst")
e(f"buffer_store_dwordx4 {vr(TMP+12)}, {vL16}, {SWS}, {sT2} offen{fl('gst')}", tag="gst")
stamp(2, 3)
e(f"s_mul_i32 {sW3m}, {sW}, 7168\ns_lshl_b32 {sStg}, {sW}, 13\ns_add_u32 {sStg}, {sStg}, {LST}")
e(f"s_and_b32 {sW3o}, {sW}, 1\ns_mul_i32 {sW3o}, {sW3o}, 114688\ns_lshr_b32 {sT5}, {sW}, 1\ns_add_u32 {sT5}, {sT5}, {sRot3}")
for per in range(4):
    e(f"s_add_u32 s{W3B[per]}, {sT5}, {2*per}\ns_and_b32 s{W3B[per]}, s{W3B[per]}, 7\ns_mul_i32 s{W3B[per]}, s{W3B[per]}, 229376\ns_add_u32 s{W3B[per]}, s{W3B[per]}, {sW3o}")
hA = hook("hA")
for i in range(64):
    ks, sl = i >> 2, i & 3
    for r in range(2):
        e(f"ds_read_b64_tr_b16 {ar(4*i+2*r, 2)}, v{TRB+sl} offset:{4096*ks+2048*r}", tag="w2f")
        k = 2 * i + r - OPT["fr0"]
        if k >= 0 and k % OPT["frd"] == 0 and hA:
            run(hA.pop(0))
for f in hA: run(f)
assert w3s[0] <= 21
e(f"s_add_u32 s60, s28, {FLAG_OFF}\ns_addc_u32 s61, s29, 0")
for mm in range(4):
    e(f"s_add_u32 {sT6}, {sRep}, {mm}\ns_and_b32 {sT6}, {sT6}, 3\ns_and_b32 {sT5}, {sT6}, 1\ns_mul_i32 {sT6}, {sT6}, 7\ns_add_u32 {sT6}, {sT6}, {sT5}\ns_lshl_b32 s{KF[mm]}, {sT6}, 10")
    if mm < 2:
        e(f"s_cmp_eq_u32 {sT5}, 0\ns_cselect_b32 s{DH[mm]}, 6, -1\ns_lshl_b32 s{DH[mm]}, s{DH[mm]}, 10")
XA = 96
e(f"v_and_b32 v44, 15, {vL}\nv_lshrrev_b32 v45, 5, {vL}\nv_bfe_u32 v46, {vL}, 1, 3\nv_xor_b32 v45, v45, v46\nv_bfe_u32 v46, {vL}, 4, 1")
e(f"v_lshlrev_b32 v44, 7, v44\nv_lshl_add_u32 v44, v46, 3, v44\nv_lshl_add_u32 v44, v45, 4, v44")
e(f"s_lshr_b32 {sT5}, {sMode}, 1\ns_add_u32 {sT5}, {sT5}, {LXR}\nv_add_u32 v{XA}, {sT5}, v44")
for fb in range(1, 4):
    e(f"v_xor_b32 v{XA+fb}, {32*fb}, v{XA}")
for fb in range(4):
    e(f"ds_read_b64 {vr(100+2*fb, 2)}, v{XA+fb}", tag="xrr")
e(f"s_and_b32 {sPar}, {sM}, 1")
e(f"s_lshl_b32 {sT1}, {sS}, 2\ns_add_u32 {sT1}, {sT1}, {sW}\ns_lshl_b32 {sT1}, {sT1}, 10")
e(f"s_lshl_b32 {sT2}, {sJ}, 2\ns_add_u32 {sT2}, {sT2}, {sT1}\ns_add_u32 {sT2}, {sT2}, {FLAG_OFF}")
stamp(3)
A.wait_vm("gst")
stamp(3)
Lh, Lh2, Lh3 = lab("Lh"), lab("Lh2"), lab("Lh3")
e(f"v_cmp_eq_u32 vcc, {sHello}, v59")
e(f"s_mov_b32 {sMode}, 0\ns_mov_b32 {sCnt}, 0")
e(f"s_cmp_eq_u32 vcc_lo, 15\ns_cbranch_scc1 {Lh3}")
e(f"{Lh}:")
A.raw(f"s_load_dwordx4 s[36:39], s[42:43], 0 glc")
e("s_waitcnt lgkmcnt(0)")
e("s_and_b64 s[40:41], s[36:37], s[38:39]\ns_and_b32 s40, s40, s41\ns_and_b32 s40, s40, 0x80808080")
e(f"s_cmp_eq_u32 s40, 0x80808080\ns_cbranch_scc1 {Lh2}")
e(f"s_add_u32 {sCnt}, {sCnt}, 1\ns_cmp_gt_u32 {sCnt}, 30000\ns_cbranch_scc1 L_end")
e(f"s_branch {Lh}")
e(f"{Lh2}:")
for i in range(4): e(f"s_xor_b32 s{36+i}, s{36+i}, {sHello}")
e("s_or_b64 s[36:37], s[36:37], s[38:39]\ns_or_b32 s36, s36, s37")
e(f"s_cselect_b32 {sMode}, 4096, 0")
e(f"{Lh3}:")
publish(sT2, OPT["r1"])
A.wait_lg("xrr")
for fb in range(4):
    e(f"v_add_u32 v{XA+fb}, {LX1R-LXR}, v{XA+fb}")
    for d in range(2):
        e(f"v_lshlrev_b32 v{ACC+4*fb+2*d}, 16, v{100+2*fb+d}")
        e(f"v_and_b32 v{ACC+4*fb+2*d+1}, 0xffff0000, v{100+2*fb+d}")
for pp in range(8):
    e(f"s_add_u32 s{44+pp}, {sRot1}, {pp}\ns_and_b32 s{44+pp}, s{44+pp}, 7\ns_lshl_b32 s{44+pp}, s{44+pp}, 11\ns_add_u32 s{44+pp}, s{44+pp}, {sT4}")
A.wait_lg0()
e("s_barrier")
for n in range(1, 4):
    e(f"v_add_u32 {W4V[n]}, {7168*n}, {vW4d}")
for f in hook("hB"): run(f)
GB = BF + 64
poll(sT1, 8, OPT["r1"], None, (lambda: pf(True)) if OPT["pfp"] & 1 else None)
stamp(1, 3)


def g_issue(p):
    e(f"buffer_load_dwordx4 {vr(GB+4*p)}, {vL16}, {SWS}, s{44+(p>>1)} offen offset:{1024*(p&1)}{fl('ld')}", tag=f"g{p}")


NG0 = OPT["ng0"]
for p in range(NG0):
    g_issue(p)
e(f"s_lshl_b32 {sT1}, {sS}, 1\ns_lshr_b32 {sT2}, {sW}, 1\ns_add_u32 {sT1}, {sT1}, {sT2}")
e(f"s_lshl_b32 {sT6}, {sT1}, 10")
e(f"s_lshl_b32 {sT2}, {sT1}, 15\ns_lshl_b32 {sT3}, {sJ}, 12\ns_add_u32 {sT2}, {sT2}, {sT3}")
e(f"s_and_b32 {sT3}, {sW}, 1\ns_lshl_b32 {sT4}, {sT3}, 8\ns_add_u32 {sT2}, {sT2}, {sT4}\ns_add_u32 {sT2}, {sT2}, {X1_OFF}")
e(f"s_lshl_b32 {sT1}, {sT1}, 11\ns_lshl_b32 {sT4}, {sJ}, 8\ns_add_u32 {sT1}, {sT1}, {sT4}")
e(f"s_lshl_b32 {sT4}, {sT3}, 7\ns_add_u32 {sT1}, {sT1}, {sT4}\ns_add_u32 {sT1}, {sT1}, {STAT_OFF}")
e(f"s_lshl_b32 {sT3}, {sT3}, 3\ns_add_u32 {sT3}, {sT3}, {sJ}\ns_lshl_b32 {sT3}, {sT3}, 2")
e(f"s_add_u32 {sT3}, {sT6}, {sT3}\ns_add_u32 {sT3}, {sT3}, {FLAG_OFF + 8192}")
e(f"v_and_b32 v54, 15, {vL}\nv_lshrrev_b32 v55, 4, {vL}\nv_lshlrev_b32 v56, 3, v54\nv_lshlrev_b32 v54, 4, v54\nv_lshl_add_u32 v54, v55, 10, v54")
e(f"v_lshrrev_b32 v40, 5, {vL}\nv_bfe_u32 v41, {vL}, 4, 1\nv_bfe_u32 v42, {vL}, 2, 2\nv_and_b32 v43, 3, {vL}")
e(f"v_mul_u32_u24 v44, {896*8}, v40")
e(f"v_lshl_add_u32 v45, v42, 6, v44\nv_lshl_add_u32 v45, v41, 5, v45\nv_lshl_add_u32 v{TRB}, v43, 3, v45")
e(f"v_add_u32 v{TRB+1}, {896*64}, v{TRB}")
e(f"v_mul_u32_u24 v45, 896, v41\nv_add_u32 v44, v44, v45\nv_lshl_add_u32 v44, v42, 5, v44")
e(f"v_and_b32 v45, 1, v43\nv_lshrrev_b32 v43, 1, v43\nv_lshl_add_u32 v43, v45, 1, v43\nv_lshl_add_u32 v44, v43, 3, v44")
e(f"v_add_u32 v{TRB+2}, 768, v44\nv_add_u32 v{TRB+3}, {768+896*64}, v44")
e(f"v_bfe_u32 v42, {vL}, 2, 1\nv_cmp_eq_u32 vcc, v42, v41")
e(f"v_cndmask_b32 v{ASEL}, 0, v{ONES}, vcc")
for i in range(1, 4): e(f"v_mov_b32 v{ASEL+i}, v{ASEL}")
CSA = 124
e(f"s_mul_i32 {sT4}, {sW}, {896*16}")
e(f"v_add_u32 v{CSA}, {sT4}, v{TRB}\nv_add_u32 v{CSA+1}, {sT4}, v{TRB+2}")
e(f"v_and_b32 v48, 31, {vL}\nv_lshlrev_b32 v48, 3, v48\nv_lshl_add_u32 v48, v40, 10, v48")
F = {i: [] for i in range(64)}
lq = [lambda p=p: g_issue(p) for p in range(NG0, 16)] + hook("hC")
for k, f in enumerate(lq):
    F[k * OPT["p2d"]].append(f)
for i in range(64):
    ks, sl = i >> 2, i & 3
    if sl == 0:
        A.wait_vm(f"g{ks}")
    e(f"v_mfma_f32_16x16x32_bf16 {vr(ACC+4*sl)}, {ar(4*i)}, {vr(GB+4*ks)}, {vr(ACC+4*sl)}")
    for f in F[i]:
        run(f)
stamp(1, 3)
for i in range(8):
    e(f"v_cvt_pk_bf16_f32 v{X1P+i}, v{ACC+2*i}, v{ACC+2*i+1}")
e(f"buffer_store_dwordx4 {vr(X1P)}, v54, {SWS}, {sT2} offen{fl('xst')}", tag="xst")
e(f"buffer_store_dwordx4 {vr(X1P+4)}, v54, {SWS}, {sT2} offen offset:512{fl('xst')}", tag="xst")
for i in range(8):
    e(f"v_dot2_f32_bf16 v40, v{X1P+i}, v{ONES}, {'0' if i == 0 else 'v40'}")
    e(f"v_dot2_f32_bf16 v42, v{X1P+i}, v{X1P+i}, {'0' if i == 0 else 'v42'}")
reduce_q(40, 42, 41)
e("s_mov_b64 exec, 0xffff")
e(f"buffer_store_dwordx2 v[40:41], v56, {SWS}, {sT1} offen{fl('xst')}", tag="xst")
e("s_mov_b64 exec, -1")
for f in hook("hD"): run(f)
for fb in range(4):
    e(f"ds_write_b64 v{XA+fb}, {vr(X1P+2*fb, 2)}", tag="x1r")
e(f"s_lshl_b32 {sT4}, {sW}, 11\ns_add_u32 {sT4}, {sT4}, {STAT_OFF}")
e(f"s_lshl_b32 {sT1}, {sW}, 10\ns_add_u32 {sT1}, {sT1}, 8192")
YT = list(range(8, 16))
e(f"s_lshl_b32 {sT5}, {sW}, 15\ns_add_u32 {sT5}, {sT5}, {X1_OFF}")
for bp in range(8):
    e(f"s_add_u32 s{YT[bp]}, {sRot3}, {bp}\ns_and_b32 s{YT[bp]}, s{YT[bp]}, 7\ns_lshl_b32 s{YT[bp]}, s{YT[bp]}, 12\ns_add_u32 s{YT[bp]}, s{YT[bp]}, {sT5}")
stamp(3)
A.wait_vm("xst")
stamp(3)
publish(sT3, OPT["r2"])
for f in hook("hE"): run(f)
assert w3s[0] == 28
CS = ACC + 32


def cs_items(part):
    it = []
    for q in range(4):
        for b in range(3):
            it.append((CSA, 896 * (64 * part + q) + 256 * b, b))
        if q % 2 == 0:
            it.append((CSA + 1, 896 * (64 * part + q), 3))
    return it


sHs, sHh, sP3 = sT2, "s62", "s63"
e(f"s_mul_i32 {sHh}, {sW}, 112\ns_mul_i32 {sHs}, {sM}, 7\ns_add_u32 {sHh}, {sHh}, {sHs}\ns_lshl_b32 {sHh}, {sHh}, 10\ns_add_u32 {sHh}, {sHh}, {H3_OFF}")
e(f"s_lshl_b32 {sHs}, {sPar}, 10\ns_add_u32 {sHs}, {sHs}, {sHh}")
e(f"s_cmp_eq_u32 {sPar}, 0\ns_cselect_b32 {sT5}, 6144, 0\ns_add_u32 {sHh}, {sHh}, {sT5}")
e(f"s_lshr_b32 {sP3}, {sW}, 1\ns_lshl_b32 {sP3}, {sP3}, 2\ns_lshr_b32 {sT5}, {sM}, 2\ns_add_u32 {sP3}, {sP3}, {sT5}\ns_lshl_b32 {sP3}, {sP3}, 11")
e(f"s_and_b32 {sT5}, {sM}, 3\ns_lshl_b32 {sT5}, {sT5}, 3\ns_add_u32 {sP3}, {sP3}, {sT5}")
e(f"s_and_b32 {sT5}, {sW}, 1\ns_lshl_b32 {sT5}, {sT5}, 2\ns_add_u32 {sP3}, {sP3}, {sT5}")
e(f"s_add_u32 {sP3}, {sP3}, {FLAG_OFF + 16384}")
HA = [4, 5, 6, 7]
e(f"s_mul_i32 {sH0}, {sS}, 224\ns_mul_i32 {sT5}, {sW}, 28\ns_add_u32 {sH0}, {sH0}, {sT5}")
e(f"s_lshl_b32 {sH0}, {sH0}, 10\ns_add_u32 {sH0}, {sH0}, {H3_OFF}")
for mm in range(4):
    e(f"s_add_u32 s{HA[mm]}, {sH0}, s{KF[mm]}")
vH = ["v11", "v56"]
e(f"s_lshr_b32 {sT5}, {sW}, 1\ns_mul_i32 {sT5}, {sT5}, {112*1024}\nv_add_u32 {vH[0]}, {sT5}, {vL16}")
e(f"s_sub_u32 {sT5}, {112*1024}, {sT5}\nv_add_u32 {vH[1]}, {sT5}, {vL16}")
e(f"s_lshl_b32 {sT5}, {sW}, 10\ns_add_u32 {sT5}, {sT5}, {LMISC}")
e(f"v_add_u32 v126, {sT5}, {vL16}\nv_add_u32 v127, {LMISC}, {vL16}")
sQ3 = sT3
e(f"s_lshl_b32 {sQ3}, {sS}, 2\ns_add_u32 {sQ3}, {sQ3}, {sW}\ns_lshl_b32 {sQ3}, {sQ3}, 11\ns_add_u32 {sQ3}, {sQ3}, 16384")
A.wait_vm("w3")
A.wait_lg0()
e("s_barrier")
stamp(4)
for f in hook("hF"): run(f)
w4_issue(8 - w4s["iss"])
items = cs_items(0) + cs_items(1)
D = 6
cs_seen = set()
hS = hook("hS")
for i in range(len(items) + D):
    if i < len(items):
        bs, off, b = items[i]
        for r in range(2):
            e(f"ds_read_b64_tr_b16 {ar(AB+4*(i&7)+2*r, 2)}, v{bs} offset:{off+896*4*r}", tag=f"a{i}")
    k = i - D
    if k >= 0:
        if k % 2 == 0:
            A.wait_lg(f"a{k+1}")
        bs, off, b = items[k]
        c = vr(CS + 4 * b) if b in cs_seen else "0"
        cs_seen.add(b)
        if k % 4 == 1 and hS: run(hS.pop(0))
        e(f"v_mfma_f32_16x16x32_bf16 {vr(CS+4*b)}, {vr(ASEL if b < 3 else ONES)}, {ar(AB+4*(k&7))}, {c}")
HD = ACC + 48
AP = 12
BH = 22
BP = 120
S0 = TMP


def w3_addr(ks, b, r):
    j, q = ks >> 2, ks & 3
    hi = j >= 4
    off = 896 * (16 * (j - 4 * hi) + q + 4 * r)
    if b < 3:
        return TRB + hi, off + 256 * b
    return TRB + 2 + hi, off


items = [(ks, b) for ks in range(32) for b in range(2)]
NA = 64
for p in range(17):
    if p < 16:
        items += [(2 * p, 2), (2 * p + 1, 2)]
    if p > 0:
        items += [(2 * p - 2, 3)]
nrd = [0]


def rd3(upto):
    while nrd[0] <= upto and nrd[0] < len(items):
        i = nrd[0]
        ks, b = items[i]
        for r in range(2):
            bs, off = w3_addr(ks, b, r)
            e(f"ds_read_b64_tr_b16 {ar(AB+4*(i&7)+2*r, 2)}, v{bs} offset:{off}", tag=f"a{i}")
        nrd[0] += 1


def cs_exchange():
    for b in range(4):
        e(f"v_mov_b32 v{S0+b}, v{CS+4*b}")
    e(f"ds_write_b128 v126, {vr(S0)}", tag="csw")
    A.wait_lg0()
    e("s_barrier")
    for i in range(4):
        e(f"ds_read_b128 {vr(CS+4*i)}, v127 offset:{1024*i}", tag="cs")
    rd3(5)


cs_exchange()


def cs_finish():
    A.wait_lg("cs")
    for b in range(0, 4, 2):
        e(f"v_pk_add_f32 {vr(CS+b, 2)}, {vr(CS+b, 2)}, {vr(CS+4+b, 2)}\nv_pk_add_f32 {vr(CS+8+b, 2)}, {vr(CS+8+b, 2)}, {vr(CS+12+b, 2)}")
    for b in range(0, 4, 2):
        e(f"v_pk_add_f32 {vr(CS+b, 2)}, {vr(CS+b, 2)}, {vr(CS+8+b, 2)}")
    for b in range(4):
        e(f"v_cvt_pk_bf16_f32 v{AP+2*b}, v{CS+b}, v{CS+b}")
        e(f"v_and_b32 v{S0}, 0xffff0000, v{AP+2*b}")
        e(f"v_sub_f32 v{S0}, v{CS+b}, v{S0}")
        e(f"v_cvt_pk_bf16_f32 v{AP+2*b+1}, v{S0}, v{S0}")
    e(f"v_mov_b32 v{AP+8}, 0\nv_mov_b32 v{AP+9}, 0")
    e(f"v_mov_b32 v{BH}, 0\nv_mov_b32 v{BH+2}, 0\nv_mov_b32 v{BH+3}, 0\nv_mov_b32 v{BP+2}, 0\nv_mov_b32 v{BP+3}, 0")


poll(sT1, 16, OPT["r2"], cs_finish, (lambda: pf(True)) if OPT["pfp"] & 2 else None)
stamp(1, 3, 4)


def y_issue(ks):
    e(f"buffer_load_dwordx4 {vr(BF+4*ks)}, {vL16}, {SWS}, s{YT[ks>>2]} offen offset:{1024*(ks&3)}{fl('ld')}", tag=f"y{ks}")


def st_issue(jj):
    e(f"buffer_load_dwordx2 {vr(S0+2*jj, 2)}, v48, {SWS}, {sT4} offen offset:{256*jj} sc1", tag="st")


NY0 = OPT["ny0"]
for ks in range(NY0):
    y_issue(ks)
    if ks == 3:
        for jj in range(4): st_issue(jj)
F = {i: [] for i in range(len(items))}
for k, ks in enumerate(range(NY0, 32)):
    F[2 * k].append(lambda ks=ks: y_issue(ks))
with Cap() as st:
    e(f"v_add_f32 v{S0}, v{S0}, v{S0+2}\nv_add_f32 v{S0+1}, v{S0+1}, v{S0+3}\nv_add_f32 v{S0+4}, v{S0+4}, v{S0+6}\nv_add_f32 v{S0+5}, v{S0+5}, v{S0+7}")
    e(f"v_add_f32 v{S0}, v{S0}, v{S0+4}\nv_add_f32 v{S0+1}, v{S0+1}, v{S0+5}")
    e(f"v_mov_b32 v{S0+2}, v{S0}\nv_mov_b32 v{S0+3}, v{S0+1}")
    e(f"v_permlane32_swap_b32 v{S0}, v{S0+2}\nv_permlane32_swap_b32 v{S0+1}, v{S0+3}")
    e(f"v_add_f32 v{S0}, v{S0}, v{S0+2}\nv_add_f32 v{S0+1}, v{S0+1}, v{S0+3}")
    stat_consts(S0, S0 + 1, S0 + 2)
    e(f"v_cvt_pk_bf16_f32 v{S0}, v{cM}, v{cM}\nv_and_b32 v{S0}, 0xffff0000, v{S0}\nv_sub_f32 v{S0}, v{cM}, v{S0}")
    e(f"v_cvt_pk_bf16_f32 v{S0}, v{cM}, v{S0}")
    e(f"v_cmp_gt_u32 vcc, 32, {vL}")
    e(f"v_cndmask_b32 v{BP}, 0, v{S0}, vcc")
    e(f"v_mov_b32 v{BP+1}, v{BP}\nv_mov_b32 v{BH+4}, v{BP}")
    e(f"v_permlane16_swap_b32 v{BH+4}, v{BH}")
    e(f"v_mov_b32 v{BH+5}, v{BH+4}\nv_mov_b32 v{BH+1}, v{BH}")
IS = 64 - (len(st) + 2) // 3
for k, s_ in enumerate(st):
    F[IS + k // 3].append(s_)
wq = []
for c in range(OPT["wa0"] and 2):
    wq += [lambda: w4_read(2), lambda: w4_read(2)]
for k, f in enumerate(wq):
    F[OPT["wa0"] + 2 * k + 1].append(f)
i0 = 2 * (32 - NY0)
if OPT["wa0"]:
    F[i0].append(w4_release)
    for k in range(8):
        F[i0 + k * OPT["wad"]].append(lambda: w4_issue(1))
for k, f in enumerate(hook("hP")):
    F[1 + 4 * k].append(f)
started = set()


def corr(b):
    e(f"v_mfma_f32_32x32x16_bf16 {vr(ACC+16*b, 16)}, {vr(AP+2*b)}, {vr(BP)}, {vr(ACC+16*b, 16)}")


def mf3(i):
    ks, b = items[i]
    if b < 3:
        c = vr(ACC + 16 * b, 16) if b in started else "0"
        e(f"v_mfma_f32_32x32x16_bf16 {vr(ACC+16*b, 16)}, {ar(AB+4*(i&7))}, {vr(BF+4*ks)}, {c}")
    else:
        for u in range(2):
            c = vr(HD + 4 * u) if b in started else "0"
            e(f"v_mfma_f32_16x16x32_bf16 {vr(HD+4*u)}, {ar(AB+4*(i&7))}, {vr(BF+4*ks+4*u)}, {c}")
    started.add(b)


for i in range(NA):
    ks, b = items[i]
    if b == 0:
        rd3(i + 7)
        A.wait_vm(f"y{ks}")
        A.wait_lg(f"a{i+1}")
    if i == 32:
        stamp(4)
    mf3(i)
    for f in F[i]:
        run(f)
corr(0)
corr(1)
stamp(1, 4)


def h3_store(dsts, blk):
    for c2 in range(2):
        off = 2048 * blk + 1024 * c2
        if off == 4096:
            e(f"s_add_u32 {sHs}, {sHs}, 4096")
        e(f"buffer_store_dwordx4 {vr(dsts+4*c2)}, {vL16}, {SWS}, {sHs} offen offset:{off&4095}{fl('hst')}", tag=f"h{blk}")


def epi_pk(acc, T, dsts, fill, ng=4):
    k = 0
    for g in range(ng):
        for s_ in gelu4pk(acc + 4 * g, T + 4 * (g & 1), [dsts + 2 * g, dsts + 2 * g + 1]):
            e(s_)
            k += 1
            if k % 5 == 0 and fill:
                run(fill.pop(0))


def pub3(tag):
    A.wait_vm(tag)
    publish(sP3, OPT["r3"])
    e(f"s_add_u32 {sP3}, {sP3}, 512")


fill = []
for c in range(OPT["wg"]):
    fill += [f for f in w4_cycle()] + [None] * 7
epi_pk(ACC, TMP, TMP + 8, fill)
h3_store(TMP + 8, 0)
epi_pk(ACC + 16, TMP, X1P, fill)
h3_store(X1P, 1)
for f in fill:
    run(f)
stamp(4, 5)
fill = []
for c in range(OPT["wb"]):
    fill += w4_cycle() + [None] * OPT["wbg"]
zs = [0]


def z_issue(n=1):
    for _ in range(n):
        z = zs[0]
        if z >= 56:
            return
        mm, ksl = P4K[z >> 1]
        blk, c2 = KSL[ksl]
        tb = z & 1
        so, off = f"s{HA[mm]}", 2048 * blk + 1024 * c2
        if blk == 3:
            so, off = sT5, 0
            if tb == 0:
                e(f"s_add_u32 {sT5}, s{HA[mm]}, s{DH[mm&1]}")
        elif blk == 2:
            so, off = sT5, 1024 * c2
            if tb == 0 and c2 == 0:
                e(f"s_add_u32 {sT5}, s{HA[mm]}, 4096")
        e(f"buffer_load_dwordx4 {vr(BF+4*(z&31))}, {vH[tb]}, {SWS}, {so} offen offset:{off}{fl('ld')}", tag=f"z{z}")
        zs[0] += 1


def phb(lo, hi, zz):
    for i in range(lo, hi):
        ks, b = items[i]
        rd3(i + 6)
        A.wait_lg(f"a{i}")
        mf3(i)
        if b == 2 and ks % 2 == 0 and ks > 0 or i == len(items) - 2:
            k2 = ks - 2 if i != len(items) - 2 else 30
            if i == len(items) - 2:
                corr(2)
            for d in range(4):
                e(f"v_permlane16_swap_b32 v{BF+4*k2+d}, v{BF+4*k2+4+d}")
        if i == NA + 3 * OPT["pubb"]:
            pub3("h1")
        elif i > NA + 2:
            for _ in range(OPT["wbn"]):
                if fill:
                    run(fill.pop(0))
        if zz and zs[0] < OPT["zla"]:
            z_issue(1)


PA = NA + OPT["pola"]
phb(NA, PA, 0)
poll(sQ3, 8, OPT["r3"], lambda: phb(PA, PA + 4, 0))
stamp(5)
e(f"s_add_u32 {sQ3}, {sQ3}, 512")
phb(PA + 4, len(items), 1)
e(f"v_mfma_f32_16x16x32_bf16 {vr(HD)}, {vr(AP+4)}, {vr(BH+2)}, {vr(HD)}")
e(f"v_mfma_f32_16x16x32_bf16 {vr(HD+4)}, {vr(AP+6)}, {vr(BH)}, {vr(HD+4)}")
for f in fill:
    run(f)
stamp(1, 4, 5)
sys.stderr.write(f"w4 state at P3 end {w4s}\n")
def tail1():
    e(f"v_and_b32 v60, 31, {vL}\nv_bfe_u32 v61, {vL}, 1, 3\nv_lshrrev_b32 v62, 5, {vL}")
    e(f"s_and_b32 {sT5}, {sW}, 1\ns_lshl_b32 {sT5}, {sT5}, 2\nv_xor_b32 v61, {sT5}, v61")
    e(f"s_lshr_b32 {sT5}, {sW}, 1\ns_lshl_b32 {sT5}, {sT5}, 12\ns_add_u32 {sT5}, {sT5}, {LX1R}")
    e(f"v_lshl_add_u32 v60, v60, 7, {sT5}\nv_lshl_add_u32 v60, v61, 4, v60\nv_lshl_add_u32 v60, v62, 3, v60")
    for g in range(1, 4):
        e(f"v_xor_b32 v{60+g}, {16*g}, v60")
    for g in range(4):
        e(f"ds_read_b64 {vr(ACC+16+2*g, 2)}, v{60+g}", tag="xr")
    epi_pk(ACC + 32, TMP, TMP + 8, [])
    h3_store(TMP + 8, 2)


z_issue(OPT["zla"] - zs[0])
tail1()
for d in range(4):
    e(f"v_permlane16_swap_b32 v{HD+d}, v{HD+4+d}")
epi_pk(HD, TMP, X1P, [], 2)
e(f"buffer_store_dwordx4 {vr(X1P)}, {vL16}, {SWS}, {sHh} offen{fl('hst')}", tag="h3")
A.wait_lg("xr")
for g in range(4):
    for d in range(2):
        e(f"v_lshlrev_b32 v{ACC+4*g+2*d}, 16, v{ACC+16+2*g+d}")
        e(f"v_and_b32 v{ACC+4*g+2*d+1}, 0xffff0000, v{ACC+16+2*g+d}")
stamp(1, 4, 5)
started = {0}
F = {i: [] for i in range(112)}
F[OPT["pub2"]].append(lambda: (pub3("h3"), stamp(5)))

fill = []
while len(fill) // 8 * 4 + w4s["con"] < 56:
    fill += w4_cycle() + [None]
for k, f in enumerate(fill):
    F[1 + k].append(f)
with Cap() as st:
    e("s_barrier")
    e(f"s_lshl_b32 {sT4}, {sW}, 14\nv_add_u32 v40, {sT4}, {vL16}")
    for i in range(1, 4):
        e(f"v_xor_b32 v{40+i}, {16384*i}, v40")
    e(f"s_lshr_b32 {sT1}, {sW}, 1\ns_lshl_b32 {sT1}, {sT1}, 15\ns_and_b32 {sT4}, {sW}, 1\ns_lshl_b32 {sT4}, {sT4}, 6\ns_add_u32 {sT1}, {sT1}, {sT4}")
    if OPT["otr"]:
        e(f"v_and_b32 v44, 31, {vL}\nv_lshrrev_b32 v45, 5, {vL}\nv_bfe_u32 v46, {vL}, 1, 2\nv_lshlrev_b32 v44, 6, v44")
        e(f"v_lshl_add_u32 v44, v45, 3, v44\nv_lshl_add_u32 v44, v46, 4, v44\ns_lshl_b32 {sT4}, {sW}, 14\nv_add_u32 v32, {sT4}, v44")
        for g in range(1, 4):
            e(f"v_xor_b32 v{32+g}, {16*g}, v32")
        e(f"v_bfe_u32 v45, {vL}, 3, 2\nv_lshlrev_b32 v45, 4, v45\nv_xor_b32 v36, v45, v40")
        e(f"v_lshrrev_b32 v44, 2, {vL}\nv_and_b32 v45, 3, {vL}\nv_lshlrev_b32 v44, 10, v44\nv_lshl_add_u32 v44, v45, 4, v44")
        e(f"s_add_u32 {sT4}, {sT1}, 16384")
    else:
        e(f"v_and_b32 v44, 31, {vL}\nv_lshrrev_b32 v45, 5, {vL}\nv_lshlrev_b32 v44, 10, v44\nv_lshl_add_u32 v44, v45, 4, v44")
for k, s_ in enumerate(st):
    F[92 + k // 2].append(s_)


def p4(lo, hi):
    for i in range(lo, hi):
        z, b = i >> 1, i & 1
        mm, ksl = P4K[z >> 1]
        if b == 0:
            A.wait_vm(f"z{z}")
            if z % 4 == 0:
                assert w4s["con"] >= z + 4, (z, w4s)
                A.wait_lg(f"w4c{z+3}")
        sl = 2 * (z & 1) + b
        c = vr(ACC + 16 * sl, 16) if sl in started else "0"
        started.add(sl)
        e(f"v_mfma_f32_32x32x16_bf16 {vr(ACC+16*sl, 16)}, {ar(8*(7*mm+ksl)+4*b)}, {vr(BF+4*(z&31))}, {c}")
        if b == 1 and zs[0] < lim[0] and zs[0] - z <= OPT["zla"]:
            z_issue(1)
        for f in F[i]:
            run(f)


lim = [32]
P2_ = OPT["pol2"]
p4(0, P2_)
stamp(5)
poll(sQ3, 8, OPT["r3"], lambda: p4(P2_, P2_ + 8))
stamp(4, 5)
lim = [56]
z_issue(min(4, OPT["zla"] - (zs[0] - (P2_ + 8) // 2)))
p4(P2_ + 8, 112)
stamp(1, 5)
for i in range(1, 4):
    for g in range(4):
        e(f"ds_write_b128 v{40+i}, {vr(ACC+16*i+4*g)} offset:{RED+4096*i+1024*g}", tag="rw")
A.wait_lg0()
e("s_barrier")
for g in range(4):
    for i in range(1, 4):
        e(f"ds_read_b128 {vr(BF+16*i+4*g)}, v40 offset:{RED+4096*i+1024*g}", tag=f"rr{g}")
for g in range(4):
    A.wait_lg(f"rr{g}")
    r, a = BF + 4 * g, ACC + 4 * g
    for h in (0, 2):
        e(f"v_pk_add_f32 {vr(a+h, 2)}, {vr(a+h, 2)}, {vr(r+16+h, 2)}")
        e(f"v_pk_add_f32 {vr(r+32+h, 2)}, {vr(r+32+h, 2)}, {vr(r+48+h, 2)}")
    for h in (0, 2):
        e(f"v_pk_add_f32 {vr(a+h, 2)}, {vr(a+h, 2)}, {vr(r+32+h, 2)}")
    for d in range(2):
        e(f"v_cvt_pk_bf16_f32 v{TMP+8+2*g+d}, v{a+2*d}, v{a+2*d+1}")
    if OPT["otr"]:
        e(f"ds_write_b64 v{32+g}, {vr(TMP+8+2*g, 2)} offset:{RED}", tag="ow")
    elif g % 2 == 1:
        o = TMP + 8 + 4 * (g >> 1)
        e(f"v_permlane32_swap_b32 v{o}, v{o+2}\nv_permlane32_swap_b32 v{o+1}, v{o+3}")
        e(f"buffer_store_dwordx4 {vr(o)}, v44, {SOUT}, {sT1} offen offset:{32*(g>>1)}{fl('ost')}", tag="o")
if OPT["otr"]:
    for i2 in range(2):
        e(f"ds_read_b128 {vr(BF+4*i2)}, v36 offset:{RED+1024*i2}", tag=f"or{i2}")
    for i2 in range(2):
        A.wait_lg(f"or{i2}")
        e(f"buffer_store_dwordx4 {vr(BF+4*i2)}, v44, {SOUT}, {(sT1, sT4)[i2]} offen{fl('ost')}", tag="o")
if PROF:
    stamp(5)
    A.wait_vm0()
    stamp(1, 5)
    A.wait_lg0()
    e("s_load_dwordx2 s[36:37], s[0:1], 56")
    A.wait_lg0()
    e(f"s_mov_b32 {sT1}, {PROF_OFF}")
    srd(28, 36, add=sT1, size=1 << 20)
    e(f"s_lshl_b32 {sT1}, s2, 2\ns_add_u32 {sT1}, {sT1}, {sW}\ns_lshl_b32 {sT1}, {sT1}, 6")
    e("v_mov_b32 v2, 0")
    for i in range(nstamp[0]):
        e(f"v_mov_b32 v3, s{82+2*i}")
        e(f"buffer_store_dword v3, v2, {SWS}, {sT1} offen offset:{4*i}")
    if OPT["dbg"]:
        e(f"s_lshl_b32 {sT4}, s2, 2\ns_add_u32 {sT4}, {sT4}, {sW}\ns_cmp_lg_u32 {sT4}, {OPT['dbg']}\ns_cbranch_scc1 L_end")
        e("s_mov_b64 exec, 1")
        for i in range(nstamp[0]):
            e(f"s_sub_u32 {sT4}, s{82+2*i}, s82\nv_mov_b32 v3, {sT4}")
            e(f"buffer_store_dword v3, v2, {SDBG}, 0 offen offset:{4*i} sc1")
        e(f"v_mov_b32 v3, {sMode}\nbuffer_store_dword v3, v2, {SDBG}, 0 offen offset:40 sc1")
        e("s_mov_b64 exec, -1")
    e(f"v_mov_b32 v3, {sMode}")
    e(f"buffer_store_dword v3, v2, {SWS}, {sT1} offen offset:60")
e("L_end:")
e("s_endpgm")
A.raw("L_codeend:")
A.raw('.section .rodata,"a"\n.p2align 6\n.amdhsa_kernel standalone__mixer_s_mlp__prompt_kernel')
A.raw("""  .amdhsa_next_free_vgpr 512
  .amdhsa_next_free_sgpr 102
  .amdhsa_accum_offset 256
  .amdhsa_group_segment_fixed_size 0
  .amdhsa_kernarg_size 64
  .amdhsa_user_sgpr_count 2
  .amdhsa_user_sgpr_kernarg_segment_ptr 1
  .amdhsa_system_sgpr_workgroup_id_x 1
.end_amdhsa_kernel""")
sys.stdout.write(A.text())
sys.stderr.write(f"lines {len(A.lines)} nops {A.nnop} stamps {nstamp[0]}\n")
```

```python
import sys, math, struct
sys.path.insert(0, "tools")
from asmlib import Asm

OPT = dict(gol=0, pft=1, e4=0, dfr=1, dsl="33_33_34_34_35_35_36_36_37_32", r1=16, r2=16, r3=8, fst="none", dbg=0, pfl=56, rot3=0, pfp=0, pfw=1, pfa=34, pfd=15, hG="", hS="", hP="nx9_q", pola=30, wbn=1, wbg=1, otr=1, hA="nx6_w3x14", hB="", hC="w3x14", hD="q", hE="", hF="", wa0=22, wad=1, wg=3, wb=5, pubb=5, zla=12, pub2=20, pol2=40, w4p=0, w2a=17, w2b=25, w2d=1, pf3=1, pf4="-1", pf4a=0, pf4b=0, ld="sc1", ng0=12, p2n=7, nb1=7, na1=4, fr0=24, frd=5, tlb=0, hel=7, held=15, ny0=12, na0=10, p2s=4, p2d=2, nb0=0, w4o="la", w4s=50, w4d=3, prof=0, gst="sc1", xst="sc1", hst="sc1", ost="sc1", forceslow=0)
for a in sys.argv[1:]:
    k, v = a.split("=")
    OPT[k] = int(v) if v.lstrip("-").isdigit() else v
PROF = OPT["prof"]


def fl(name):
    v = OPT[name]
    return "" if v == "none" else " " + v.replace("_", " ")


def f32(x):
    return "0x%08x" % struct.unpack("<I", struct.pack("<f", x))[0]


G_OFF = 0
X1_OFF = 128 << 10
H3_OFF = 256 << 10
STAT_OFF = 704 << 10
FLAG_OFF = 720 << 10
HEL_OFF = 12288
PROF_OFF = 16 << 20
WS_SIZE = 1 << 20
LW1 = 0
LW2 = 98304
LST = 131072
LXR = 86016
LX1R = 114688
LMISC = 122880
LCX = 94208
LDS_TOTAL = 163840
RED = 0
sW = "s3"
SX, SW1, SW2, SW3, SW4, SOUT, SWS, SDBG = ("s[4:7]", "s[8:11]", "s[12:15]", "s[16:19]", "s[20:23]", "s[24:27]",
                                           "s[28:31]", "s[32:35]")
sG, sM, sS, sJ, sT0, sMode, sHello, sRot1 = "s52", "s53", "s54", "s55", "s56", "s57", "s58", "s59"
sRot3 = "s52"
sKW = "s56"
KF = [73, 74, 78, 79]
DH = [80, 81]
sFB = "s[60:61]"
sDB = "s[62:63]"
sStg = "s64"
sT1, sT2, sT3, sT4, sT5, sT6 = "s65", "s66", "s67", "s68", "s69", "s70"
sRep, sCnt = "s71", "s72"
sH0 = "s58"
sPar = "s75"
sW3o, sW3m = "s76", "s77"
sW4o = "s76"
vL, vL16, vRep, vW4d, vOne, vMisc = "v0", "v1", "v6", "v7", "v10", "v11"
TRB = 2
W4T = 8
W3D = 12
ONES = 20
ASEL = 24
cA, cB, cI, cM = 28, 29, 30, 31
X1P = 32
TMP = 40
ACC = 64
BF = 128
AB = 224

K1 = -2.0 * math.sqrt(2.0 / math.pi) * math.log2(math.e)
K3 = 0.044715

A = Asm()
e = A.e
nlab = [0]
nstamp = [0]


def lab(p="L"):
    nlab[0] += 1
    return f"{p}_{nlab[0]}"


def stamp(*sets):
    if not sets:
        sets = (1,)
    if PROF in sets:
        i = nstamp[0]
        assert i < 10
        e(f"s_memtime s[{82+2*i}:{83+2*i}]")
        nstamp[0] += 1


def vr(b, n=4):
    return f"v[{b}:{b+n-1}]"


def ar(b, n=4):
    return f"a[{b}:{b+n-1}]"


def srd(dst, ptr_lo, add=None, size=0x7fffffff):
    if add is None:
        e(f"s_mov_b32 s{dst}, s{ptr_lo}\ns_mov_b32 s{dst+1}, s{ptr_lo+1}")
    else:
        e(f"s_add_u32 s{dst}, s{ptr_lo}, {add}\ns_addc_u32 s{dst+1}, s{ptr_lo+1}, 0")
    e(f"s_mov_b32 s{dst+2}, {size}\ns_mov_b32 s{dst+3}, 0x20000")


def poll(soff, ndw, nrep, between=None, inloop=None):
    L, Lw, Ld = lab("Lp"), lab("Lw"), lab("Ld")

    def issue(nxt):
        Lg = lab("Lg")
        e(f"s_cmp_ge_u32 {sRep}, {nrep*64}\ns_cbranch_scc1 {Lg}")
        e(f"s_add_u32 {sT6}, {soff}, {sRep}")
        e(f"s_load_dwordx{ndw} s[36:{36+ndw-1}], {sFB}, {sT6}")
        e(f"s_add_u32 {sRep}, {sRep}, 64\ns_branch {nxt}")
        e(f"{Lg}:")
        e(f"s_load_dwordx{ndw} s[36:{36+ndw-1}], {sFB}, {soff} glc")

    e(f"s_mov_b32 {sRep}, {sMode}\ns_mov_b32 {sCnt}, 0")
    if between is not None:
        Lb = lab("Lb")
        issue(Lb)
        e(f"{Lb}:")
        between()
        e(f"s_branch {Lw}")
    e(f"{L}:")
    e(f"s_add_u32 {sCnt}, {sCnt}, 1\ns_cmp_gt_u32 {sCnt}, 30000\ns_cbranch_scc1 L_end")
    if inloop:
        inloop()
    issue(Lw)
    e(f"{Lw}:")
    A.wait_lg0()
    n = ndw
    while n > 2:
        for i in range(0, n // 2, 2):
            e(f"s_and_b64 s[{36+i}:{37+i}], s[{36+i}:{37+i}], s[{36+n//2+i}:{37+n//2+i}]")
        n //= 2
    e("s_and_b32 s36, s36, s37")
    e(f"s_cbranch_scc0 {L}")


def publish(soff, nrep):
    Ls, Ld = lab("Ls"), lab("Ld")
    e(f"s_cmp_lg_u32 {sMode}, 0\ns_cbranch_scc1 {Ls}")
    e(f"s_mov_b64 exec, {(1 << nrep) - 1}")
    e(f"buffer_store_dword {vOne}, {vRep}, {SWS}, {soff} offen{fl('fst')}", tag="flag")
    e(f"s_branch {Ld}")
    e(f"{Ls}:")
    e("s_mov_b64 exec, 1")
    e(f"buffer_store_dword {vOne}, {vRep}, {SWS}, {soff} offen sc1", tag="flag")
    A.untrack()
    e(f"{Ld}:")
    e("s_mov_b64 exec, -1")


def stat_consts(vS, vQ, t):
    e(f"v_mul_f32 v{cM}, {f32(-1.0/512)}, v{vS}")
    e(f"v_mul_f32 v{t}, v{cM}, v{cM}")
    e(f"v_mov_b32 v{t+1}, {f32(1.0/512)}")
    e(f"v_fma_f32 v{t}, v{vQ}, v{t+1}, -v{t}")
    e(f"v_max_f32 v{t}, 0, v{t}")
    e(f"v_add_f32 v{t}, {f32(1e-5)}, v{t}")
    e(f"v_rsq_f32 v{t+1}, v{t}")
    e(f"v_sqrt_f32 v{cI}, v{t}")
    e(f"v_mul_f32 v{cA}, {f32(K1)}, v{t+1}")
    e(f"v_mul_f32 v{t}, v{t+1}, v{t+1}")
    e(f"v_mul_f32 v{t}, {f32(K3)}, v{t}")
    e(f"v_mul_f32 v{cB}, v{cA}, v{t}")


def gelu4(a, T, dst):
    o = []
    for i in range(4): o.append(f"v_mul_f32_e64 v{T+i}, v{a[i]}, v{a[i]}")
    for i in range(4): o.append(f"v_fma_f32 v{T+i}, v{T+i}, v{cB}, v{cA}")
    for i in range(4): o.append(f"v_mul_f32_e64 v{T+i}, v{a[i]}, v{T+i}")
    for i in range(4): o.append(f"v_exp_f32_e64 v{T+i}, v{T+i}")
    for i in range(4): o.append(f"v_fma_f32 v{T+i}, v{T+i}, v{cI}, v{cI}")
    for i in range(4): o.append(f"v_rcp_f32_e64 v{T+i}, v{T+i}")
    for i in range(4): o.append(f"v_mul_f32_e64 v{T+i}, v{a[i]}, v{T+i}")
    o.append(f"v_cvt_pk_bf16_f32 v{dst[0]}, v{T}, v{T+1}")
    o.append(f"v_cvt_pk_bf16_f32 v{dst[1]}, v{T+2}, v{T+3}")
    return o


def gelu4pk(a, T, dst):
    o = []
    for i in (0, 2): o.append(f"v_pk_mul_f32 v[{T+i}:{T+i+1}], v[{a+i}:{a+i+1}], v[{a+i}:{a+i+1}]")
    for i in (0, 2): o.append(f"v_pk_fma_f32 v[{T+i}:{T+i+1}], v[{T+i}:{T+i+1}], v[{cA}:{cB}], v[{cA}:{cB}] op_sel:[0,1,0] op_sel_hi:[1,1,0]")
    for i in (0, 2): o.append(f"v_pk_mul_f32 v[{T+i}:{T+i+1}], v[{a+i}:{a+i+1}], v[{T+i}:{T+i+1}]")
    for i in range(4): o.append(f"v_exp_f32_e64 v{T+i}, v{T+i}")
    for i in (0, 2): o.append(f"v_pk_fma_f32 v[{T+i}:{T+i+1}], v[{T+i}:{T+i+1}], v[{cI}:{cM}], v[{cI}:{cM}] op_sel:[0,0,0] op_sel_hi:[1,0,0]")
    for i in range(4): o.append(f"v_rcp_f32_e64 v{T+i}, v{T+i}")
    for i in (0, 2): o.append(f"v_pk_mul_f32 v[{T+i}:{T+i+1}], v[{a+i}:{a+i+1}], v[{T+i}:{T+i+1}]")
    o.append(f"v_cvt_pk_bf16_f32 v{dst[0]}, v{T}, v{T+1}")
    o.append(f"v_cvt_pk_bf16_f32 v{dst[1]}, v{T+2}, v{T+3}")
    return o


KSL = [(0, 0), (0, 1), (1, 0), (1, 1), (3, 0), (2, 0), (2, 1)]
W4G = []
for mm in range(4):
    W4G += [[(mm, 0), (mm, 1)], [(mm, 2), (mm, 3)]]
for mm in (0, 2):
    W4G += [[(mm, 5), (mm, 6)], [(mm + 1, 5), (mm + 1, 6)], [(mm, 4), (mm + 1, 4)]]
P4K = [k for g in W4G for k in g]
W4V = ["v7", "v57", "v58", "v59"]
w4s = dict(iss=0, con=0, free=0)


def w4_issue(n=1):
    for _ in range(n):
        i = w4s["iss"]
        if i >= 56:
            return
        g, n4 = i >> 2, i & 3
        assert 4 * (g - 1) <= w4s["free"], ("w4 ring overrun", i, w4s)
        mm, ksl = W4G[g][n4 >> 1]
        blk, c2 = KSL[ksl]
        set_m0(sStg, 4096 * (g & 1))
        if blk == 3:
            if n4 & 1 == 0:
                e(f"s_add_u32 {sW4o}, s{KF[mm]}, s{DH[mm&1]}")
                e(f"s_lshl4_add_u32 {sW4o}, {sW4o}, {(3072 - 8192*n4) & 0xffffffff}")
        elif n4 == 0:
            e(f"s_lshl4_add_u32 {sW4o}, s{KF[mm]}, {3072 + 32768*blk}")
        e(f"buffer_load_dwordx4 {W4V[n4]}, {SW4}, {sW4o} offen offset:{1024*n4} lds", tag=f"w4_{i}")
        w4s["iss"] += 1


def w4_read(n=4, wait=True):
    n = min(n, w4s["iss"] - w4s["con"])
    if n <= 0:
        return
    A.wait_vm(f"w4_{min(w4s['iss'], (w4s['con']+n+3)//4*4)-1}")
    for _ in range(n):
        i = w4s["con"]
        mm, ksl = W4G[i >> 2][(i >> 1) & 1]
        k, rd = 7 * mm + ksl, i & 1
        for b in range(2):
            e(f"ds_read_b64_tr_b16 {ar(8*k+4*b+2*rd, 2)}, v{W4T+b} offset:{1024*(i&7)}", tag=f"w4c{i}")
        w4s["con"] += 1


def w4_release():
    if w4s["free"] < w4s["con"]:
        A.wait_lg(f"w4c{w4s['con']-1}")
        w4s["free"] = w4s["con"]


def w4_cycle():
    return [lambda: w4_read(2), lambda: w4_read(2), None, lambda: (w4_release(), w4_issue(1)), lambda: w4_issue(1),
            lambda: w4_issue(1), lambda: w4_issue(1)]


m0c = [None]


def set_m0(sreg, lit):
    if m0c[0] != (sreg, lit):
        e(f"s_add_u32 m0, {sreg}, {lit}")
        m0c[0] = (sreg, lit)


W3B = [4, 5, 6, 7]
w3s = [0]


def w3_pump(cnt=1):
    for _ in range(cnt):
        i = w3s[0]
        if i >= 28:
            return
        period, n = i // 7, i % 7
        set_m0(sW3m, period * 4 * 7168 + (4096 if n >= 4 else 0))
        e(f"buffer_load_dwordx4 v{W3D+n}, {SW3}, s{W3B[period]} offen offset:{1024*(n&3)} lds", tag="w3")
        w3s[0] += 1


def tr_bases12(lbase, rot, t=TMP):
    e(f"v_lshrrev_b32 v{t}, 4, {vL}")
    e(f"v_bfe_u32 v{t+1}, {vL}, 2, 2")
    e(f"v_and_b32 v{t+2}, 3, {vL}")
    e(f"v_lshlrev_b32 v{t+3}, 9, v{t}")
    e(f"v_lshl_add_u32 v{t+3}, v{t+1}, 7, v{t+3}")
    e(f"v_lshl_add_u32 v{t+3}, v{t+2}, 3, v{t+3}")
    if lbase:
        e(f"v_add_u32 v{t+3}, {lbase}, v{t+3}")
    e(f"v_and_b32 v{t}, 1, v{t}")
    e(f"v_lshrrev_b32 v{t+1}, 1, v{t+1}")
    e(f"v_lshl_add_u32 v{t}, v{t}, 1, v{t+1}")
    if rot:
        e(f"v_xor_b32 v{t}, {sW}, v{t}")
    for i in range(4):
        e(f"v_xor_b32 v{t+1}, {i}, v{t}")
        e(f"v_lshl_add_u32 v{TRB+i}, v{t+1}, 5, v{t+3}")


def run(f):
    if f is None:
        return
    if callable(f):
        f()
    else:
        e(f)


class Cap:
    def __enter__(self):
        global e
        self.o = []
        self.old = e
        e = lambda s_, tag=None: self.o.extend([l for l in s_.split("\n") if l.strip()])
        return self.o

    def __exit__(self, *a):
        global e
        e = self.old


A.raw(f"; @launch grid=(256,1,1) block=(256,1,1) lds={LDS_TOTAL}")
A.raw('.amdgcn_target "amdgcn-amd-amdhsa--gfx950"')
A.raw(".text\n.globl standalone__mixer_s_mlp__prompt_kernel\n.p2align 8\n.type standalone__mixer_s_mlp__prompt_kernel,@function")
A.raw("standalone__mixer_s_mlp__prompt_kernel:")
e("s_cmp_ge_u32 s2, 256\ns_cbranch_scc1 L_end")
e("s_load_dwordx16 s[36:51], s[0:1], 0")
stamp(1, 2, 3, 4)
e("s_getpc_b64 s[68:69]")
A.raw("L_pc:")
if OPT["pft"]:
    e(f"v_lshrrev_b32 v2, 6, v0\nv_and_b32 {vL}, 63, v0\ns_bfe_u32 {sT6}, s2, 0x20003\ns_lshl_b32 {sT6}, {sT6}, 13")
    e(f"v_lshlrev_b32 v46, 7, {vL}\nv_lshl_add_u32 v46, v2, 11, v46\nv_add_u32 v46, {sT6}, v46\nv_min_u32 v46, L_codeend-L_pc-4, v46")
    e("s_mov_b64 exec, 0xffff")
    e("global_load_dword v255, v46, s[68:69]", tag="pf")
    A.untrack()
    e("s_mov_b64 exec, -1")
VX, VW1, VW2 = 192, 196, 200
vXr = "v63"
XR = list(range(73, 81))
WK = [81, 60, 61, 64]
if not OPT["pft"]:
    e(f"v_lshrrev_b32 v2, 6, v0")
    e(f"v_and_b32 {vL}, 63, v0")
e(f"v_readfirstlane_b32 {sW}, v2")
e(f"s_and_b32 {sT1}, s2, 7\ns_lshr_b32 {sT2}, s2, 3")
e(f"s_lshr_b32 {sT3}, {sT2}, 4\ns_lshl_b32 {sG}, {sT1}, 1\ns_add_u32 {sG}, {sG}, {sT3}")
e(f"s_and_b32 {sM}, {sT2}, 15\ns_lshr_b32 {sS}, {sM}, 3\ns_and_b32 {sJ}, {sM}, 7")
e(f"s_lshr_b32 {sRep}, {sT2}, 3")
e(f"s_lshl_b32 {sRot1}, {sRep}, 1\ns_add_u32 {sRot1}, {sRot1}, {sJ}")
e(f"s_lshl_b32 {sT0}, {sG}, 7\ns_lshl_b32 {sT1}, {sS}, 6\ns_add_u32 {sT0}, {sT0}, {sT1}")
e(f"s_lshr_b32 {sT1}, {sJ}, 1\ns_lshr_b32 {sT2}, {sT1}, 1\ns_add_u32 {sT2}, {sT2}, 1")
e(f"s_and_b32 {sT1}, {sT1}, 1\ns_cmp_eq_u32 {sT1}, 0\ns_cselect_b32 {sT3}, -1, 1\ns_mul_i32 {sT2}, {sT2}, {sT3}")
e(f"s_lshl_b32 {sT1}, {sW}, 4\ns_add_u32 {sCnt}, {sT1}, {sT0}\ns_add_u32 {sT2}, {sT2}, {sCnt}")
e(f"v_lshrrev_b32 v40, 2, {vL}\nv_add_u32 v40, {sT2}, v40\nv_and_b32 v40, 0xfffff, v40\nv_lshlrev_b32 v40, 10, v40")
e(f"v_lshrrev_b32 v46, 5, {vL}\nv_and_b32 v41, 3, {vL}\nv_lshlrev_b32 v42, 1, v46\nv_xor_b32 v41, v41, v42\nv_lshl_add_u32 v40, v41, 4, v40")
for n in range(4):
    e(f"v_add_u32 v{VX+n}, {64*(n&1) - 1024*n + 3072}, v40")
e(f"v_bfe_u32 v47, {vL}, 3, 2\nv_bfe_u32 v48, {vL}, 1, 2\nv_and_b32 v49, 1, {vL}")
e(f"v_lshrrev_b32 v50, 1, v47\nv_add_u32 v50, v42, v50\nv_xor_b32 v50, v48, v50")
e(f"v_lshlrev_b32 v50, 5, v50\nv_lshl_add_u32 v50, v49, 4, v50\nv_lshl_add_u32 v50, v47, 10, v50")
e(f"v_lshl_add_u32 v{VW1}, v46, 13, v50\nv_lshl_add_u32 v{VW2}, v46, 12, v50")
for n in range(1, 4):
    e(f"v_add_u32 v{VW1+n}, {[0, 15, 2, 17][n]*1024}, v{VW1}")
e(f"v_lshlrev_b32 {vL16}, 4, {vL}")
e(f"s_lshl_b32 {sT1}, {sJ}, 7")
e(f"s_lshl_b32 {sMode}, {sW}, 12")
e(f"s_lshl_b32 {sT3}, {sT0}, 10\ns_add_u32 {sT3}, {sT3}, {sT1}")
e(f"s_lshl1_add_u32 {sKW}, {sRot1}, {sW}")
for pp in range(8):
    e(f"s_add_u32 s{XR[pp]}, {sRot1}, {pp}\ns_and_b32 s{XR[pp]}, s{XR[pp]}, 7\ns_lshl_b32 s{XR[pp]}, s{XR[pp]}, 7")
for c in range(4):
    e(f"s_add_u32 s{WK[c]}, {sKW}, {4*c}\ns_and_b32 s{WK[c]}, s{WK[c]}, 15\ns_lshl_b32 s{WK[c]}, s{WK[c]}, 15")
for i in range(4): e(f"v_mov_b32 v{52+i}, 0")
e(f"s_and_b32 {sT2}, {sM}, 3\ns_or_b32 {sT2}, {sT2}, {sW}")
e(f"s_lshl_b32 {sHello}, {sM}, 11\ns_add_u32 {sHello}, {sHello}, {FLAG_OFF}")
if not OPT["pft"]:
    e(f"s_and_b32 {sT6}, {sJ}, 3\ns_lshl_b32 {sT6}, {sT6}, 2\ns_add_u32 {sT6}, {sT6}, {sW}\ns_lshl_b32 {sT6}, {sT6}, 11")
    e(f"v_lshlrev_b32 v46, 7, {vL}\nv_add_u32 v46, {sT6}, v46\nv_min_u32 v46, L_codeend-L_pc-4, v46")
e(f"s_lshl_b32 {sT6}, {sG}, 20")
e(f"s_mov_b32 s6, {2048*1024 + 3072}\ns_mov_b32 s7, 0x20000")
A.wait_lg0()
stamp(2)
e(f"s_sub_u32 s4, s36, 3072\ns_subb_u32 s5, s37, 0")
srd(28, 50, add=sT6, size=WS_SIZE)
Lr = lab("Lr")
e(f"s_cmp_lg_u32 {sT2}, 0\ns_cbranch_scc1 {Lr}")
e(f"s_add_u32 s32, {sHello}, 4096")
for k in range(8):
    e(f"buffer_store_dwordx4 v[52:55], {vL16}, {SWS}, {sHello if k < 4 else 's32'} offen offset:{1024*(k&3)} sc1")
    A.untrack()
e(f"{Lr}:")


def x_issue(p):
    set_m0(sMode, LW2 + 16384 * (p >> 2))
    e(f"buffer_load_dwordx4 v{VX+(p&3)}, {SX}, s{XR[p>>1]} offen offset:{1024*(p&3)} lds", tag=f"x{p}")


def w12_issue(which, c, n):
    set_m0(sMode, (LW1 if which == 1 else LW2) + 16384 * c)
    e(f"buffer_load_dwordx4 v{(VW1 if which == 1 else VW2)+n}, {SW1 if which == 1 else SW2}, s{WK[c]} offen offset:{1024*n} lds",
      tag=f"w{which}c{c}")


x_issue(0)
x_issue(1)
srd(8, 38, add=sT1, size=512 * 1024 - 896)
for n in range(4): w12_issue(1, 0, n)
x_issue(2)
x_issue(3)
if not OPT["pft"]:
    e("s_mov_b64 exec, 0xffff")
    e("global_load_dword v255, v46, s[68:69]", tag="pf")
    e("s_mov_b64 exec, -1")
q2 = [lambda p=p: x_issue(p) for p in range(4, 8)] + [lambda n=n: w12_issue(1, 1, n) for n in range(4)]
for f in q2[:OPT["e4"]]: f()
stamp(2)
DU = []


def defer(lines):
    if OPT["dfr"]:
        DU.append("\n".join(lines))
    else:
        e("\n".join(lines))
srd(12, 40, add=sT1, size=512 * 1024 - 896)
srd(24, 46, add=sT3, size=64 * 1024 - 896)
for n in range(1, 4):
    e(f"v_add_u32 v{VW2+n}, {7*1024*n}, v{VW2}")
e(f"v_lshlrev_b32 {vRep}, 6, {vL}")
e(f"v_mov_b32 {vOne}, 1")
e(f"s_mul_i32 {sT3}, {sM}, 224")
e(f"s_sub_u32 s16, s42, 3072\ns_subb_u32 s17, s43, 0")
e(f"s_add_u32 s16, s16, {sT3}\ns_addc_u32 s17, s17, 0")
e(f"s_mov_b32 s18, {512*3584 + 3072 - 224*15}\ns_mov_b32 s19, 0x20000")
e(f"s_mul_i32 {sT3}, {sW}, {448*1024}\ns_add_u32 {sT3}, {sT3}, {sT1}")
e(f"s_sub_u32 s20, s44, 3072\ns_subb_u32 s21, s45, 0")
e(f"s_add_u32 s20, s20, {sT3}\ns_addc_u32 s21, s21, 0")
e(f"s_mov_b32 s22, {448*1024 - 896 + 3072}\ns_mov_b32 s23, 0x20000")
if OPT["tlb"]:
    e(f"s_lshl_b32 {sT3}, {sW}, 4\nv_add_u32 v46, {sT3}, {vL}\nv_mul_u32_u24 v47, 28672, v46\nv_mul_u32_u24 v48, 28672, {vL}")
    e(f"v_lshlrev_b32 v49, 13, v46\nv_lshlrev_b32 v46, 10, v46")
    e("s_mov_b64 exec, 0xffff")
    e(f"buffer_load_dword v255, v49, {SW2}, 0 offen", tag="pf")
    e(f"buffer_load_dword v255, v47, {SW3}, 0 offen offset:3072", tag="pf")
    e(f"buffer_load_dword v255, v48, {SW4}, 0 offen offset:3072", tag="pf")
    e("s_mov_b64 exec, 1")
    e(f"buffer_load_dword v255, v46, {SOUT}, 0 offen", tag="pf")
    e("s_mov_b64 exec, -1")
e(f"s_lshl_b32 {sT3}, {sG}, 4\ns_add_u32 s62, s48, {sT3}\ns_addc_u32 s63, s49, 0")
e(f"v_lshl_add_u32 v60, {vL}, 2, {sT3}\nv_cmp_gt_u32 vcc, 4, {vL}\nv_cndmask_b32 v60, -1, v60, vcc")
e(f"v_lshlrev_b32 v62, 2, {vL}\nv_add_u32 v62, {FLAG_OFF + HEL_OFF}, v62\nv_cndmask_b32 v62, -1, v62, vcc")
e(f"s_add_u32 {sT3}, {sT3}, {sM}\nv_mov_b32 v19, {sT3}")
e(f"v_lshlrev_b32 v58, 7, {vL}\nv_add_u32 v58, {sHello}, v58")
e(f"s_add_u32 s42, s28, {FLAG_OFF + HEL_OFF}\ns_addc_u32 s43, s29, 0")
e(f"s_add_u32 {sT3}, {sM}, {FLAG_OFF + HEL_OFF}\nv_mov_b32 v57, {sT3}")
e(f"s_getreg_b32 {sHello}, hwreg(HW_REG_XCC_ID)")
e(f"s_and_b32 {sHello}, {sHello}, 15\ns_or_b32 {sHello}, {sHello}, 0x80")
if OPT["forceslow"]:
    e(f"s_cmp_eq_u32 {sM}, 5\ns_cselect_b32 {sHello}, 0x89, {sHello}")
e(f"v_mov_b32 v56, {sHello}")
e(f"s_mul_i32 {sHello}, {sHello}, 0x01010101")
e(f"s_mov_b32 s40, {sW}")
e(f"s_and_b32 {sT4}, {sG}, 1\ns_lshl_b32 {sT4}, {sT4}, 2\ns_add_u32 {sRot3}, {sT4}, {sM}")
if OPT["rot3"] == 0:
    e(f"s_mov_b32 {sRot3}, 0")
e(f"s_add_u32 {sRep}, {sRep}, {sJ}")
for i in range(4): e(f"v_mov_b32 v{ONES+i}, 0x3f803f80")
e(f"v_and_b32 v46, 15, {vL}\nv_lshrrev_b32 v47, 4, {vL}\nv_bfe_u32 v48, {vL}, 3, 1\nv_lshlrev_b32 v48, 1, v48\nv_xor_b32 v47, v47, v48")
e(f"v_lshlrev_b32 v46, 6, v46\nv_lshl_add_u32 v46, v47, 4, v46\ns_add_u32 {sT4}, {sMode}, {LW2}\nv_add_u32 {vXr}, {sT4}, v46")
e(f"v_lshrrev_b32 v46, 3, {vL}\nv_and_b32 v47, 7, {vL}\nv_lshrrev_b32 v48, 4, {vL}\nv_xor_b32 v47, v47, v48")
e(f"v_add_u32 v46, {sCnt}, v46\nv_lshlrev_b32 v46, 10, v46\nv_lshl_add_u32 {vMisc}, v47, 4, v46")
e(f"s_add_u32 {sT1}, {sT1}, 3072")
with Cap() as du:
    e(f"s_lshl_b32 {sT4}, {sW}, 13\ns_add_u32 {sT4}, {sT4}, {LST}")
    e(f"v_lshrrev_b32 v46, 5, {vL}\nv_bfe_u32 v47, {vL}, 3, 2\nv_bfe_u32 v48, {vL}, 2, 1\nv_and_b32 v49, 3, {vL}")
    e(f"v_lshrrev_b32 v50, 1, v47\nv_xor_b32 v50, v48, v50\nv_lshlrev_b32 v50, 6, v50\nv_lshl_add_u32 v50, v49, 4, v50")
    e(f"v_lshl_add_u32 v47, v46, 2, v47\nv_lshl_add_u32 {vW4d}, v47, 10, v50")
    e(f"v_bfe_u32 v47, {vL}, 2, 2\nv_bfe_u32 v48, {vL}, 4, 1")
    e(f"v_lshlrev_b32 v50, 9, v46\nv_lshl_add_u32 v50, v47, 7, v50\nv_lshl_add_u32 v50, v48, 5, v50\nv_lshl_add_u32 v50, v49, 3, v50")
    e(f"v_add_u32 v50, {sT4}, v50\nv_lshrrev_b32 v47, 1, v47")
    e(f"v_lshl_add_u32 v{W4T}, v47, 6, v50\nv_xor_b32 v47, 1, v47\nv_lshl_add_u32 v{W4T+1}, v47, 6, v50")
    e(f"s_and_b32 {sT4}, {sW}, 1\ns_lshl_b32 {sT4}, {sT4}, 6\nv_xor_b32 v{W4T}, {sT4}, v{W4T}\nv_xor_b32 v{W4T+1}, {sT4}, v{W4T+1}")
defer(du)
CX = 104
with Cap() as du:
    e(f"s_lshl_b32 {sT4}, {sW}, 10\ns_add_u32 {sT4}, {sT4}, {LCX}\nv_add_u32 v{CX}, {sT4}, {vL16}")
    for i in range(1, 4):
        e(f"v_xor_b32 v{CX+i}, {1024*i}, v{CX}")
defer(du)
for g in range(448): assert (g * 1171) >> 16 == g // 56
for n in range(7):
    with Cap() as du:
        e(f"s_and_b32 {sT6}, {sM}, 1")
        e(f"s_lshl_b32 {sT4}, {sT6}, 5")
        e(f"s_cmp_eq_u32 {sT6}, 0\ns_cselect_b32 {sT5}, 192, 0")
        e(f"v_add_u32 v46, {64*n}, {vL}")
        e(f"v_mul_u32_u24 v47, 1171, v46\nv_lshrrev_b32 v47, 16, v47")
        e(f"v_mul_u32_u24 v48, 56, v47\nv_sub_u32 v46, v46, v48")
        e(f"v_lshrrev_b32 v48, 4, v46\nv_and_b32 v49, 3, v46\nv_lshlrev_b32 v48, 6, v48\nv_lshl_add_u32 v48, v49, 4, v48")
        e(f"v_add_u32 v48, {sT4}, v48\nv_bfe_u32 v49, v46, 2, 2")
        e(f"v_and_b32 v50, 1, v46\nv_lshlrev_b32 v50, 4, v50\nv_add_u32 v50, {sT5}, v50\nv_bfe_u32 v51, v46, 1, 2")
        e(f"v_cmp_lt_u32 vcc, 47, v46")
        e(f"v_cndmask_b32 v48, v48, v50, vcc\nv_cndmask_b32 v49, v49, v51, vcc")
        e(f"v_lshl_add_u32 v47, v47, 2, v49\nv_mul_u32_u24 v47, 3584, v47")
        if (n & 3) != 3:
            e(f"v_add_u32 v48, {3072 - 1024*(n&3)}, v48")
        e(f"v_add_u32 v{W3D+n}, v47, v48")
    defer(du)
NL = OPT["pfl"]
with Cap() as du:
    e(f"s_lshr_b32 {sT4}, s2, 3\ns_mul_i32 {sT5}, {sT4}, {128*NL}\ns_lshl_b32 {sT6}, {sJ}, 7\ns_sub_u32 {sT5}, {sT5}, {sT6}\ns_add_u32 {sT5}, {sT5}, 3072")
    e(f"v_lshlrev_b32 v112, 7, {vL}\nv_add_u32 v113, {sT5}, v112")
    e(f"s_lshl2_add_u32 {sT4}, {sT4}, {sW}\ns_mul_i32 {sT4}, {sT4}, {128*NL}\ns_mul_i32 {sT6}, {sM}, 224\ns_sub_u32 {sT4}, {sT4}, {sT6}\ns_add_u32 {sT4}, {sT4}, 3072")
    e(f"v_add_u32 v112, {sT4}, v112")
    e(f"v_cmp_gt_u32 vcc, {NL}, {vL}\nv_mov_b32 v114, 0x40000000\nv_cndmask_b32 v112, v114, v112, vcc\nv_cndmask_b32 v113, v114, v113, vcc")
defer(du)
pfs = [0]


def pf(dyn=False):
    k = pfs[0]
    which = 1 if (k >= 112 // NL or dyn or OPT["pf3"] == 0) else 0
    e(f"buffer_load_dword v114, v{112+which}, {SW4 if which else SW3}, 0 offen", tag="pf")
    if dyn:
        A.untrack()
        e(f"v_add_u32 v113, {4096*NL}, v113\nv_min_u32 v113, 0x40000000, v113")
    else:
        e(f"v_add_u32 v{112+which}, {4096*NL if which else 16384*NL}, v{112+which}")
        pfs[0] += 1


def hook(name):
    o = []
    for t in str(OPT[name]).split("_"):
        if t in ("", "0"):
            continue
        k, n = (t.split("x") + ["1"])[:2]
        f = {"q": pf, "w3": lambda: w3_pump(1), "w4": lambda: w4_issue(1), "n": None}[k]
        o += [f] * int(n)
    return o


srd(32, 48, size=256)
tr_bases12(LW1, True)
def go_post(wait):
    Lr = lab("Lr")
    e(f"s_cmp_lg_u32 {sT2}, 0\ns_cbranch_scc1 {Lr}")
    if wait:
        e(f"s_waitcnt vmcnt({len(A.vm)})")
    e("s_mov_b64 exec, 1")
    e(f"buffer_store_dword {vOne}, v19, {SDBG}, 0 offen sc1")
    A.untrack()
    e("s_mov_b64 exec, -1")
    e(f"{Lr}:")


if OPT["gol"] == 0:
    go_post(True)
stamp(2)
for f in q2[OPT["e4"]:]: f()
if OPT["gol"] == 1:
    go_post(True)


def reduce_q(s, q, t):
    e(f"v_permlane32_swap_b32 v{s}, v{q}")
    e(f"v_add_f32 v{s}, v{s}, v{q}")
    e(f"v_mov_b32 v{t}, v{s}")
    e(f"v_permlane16_swap_b32 v{s}, v{t}")
    e(f"v_add_f32 v{s}, v{s}, v{t}")
    e(f"v_mov_b32 v{t}, v{s}")
    e(f"v_permlane32_swap_b32 v{s}, v{t}")


def x_read(p):
    e(f"ds_read_b128 {vr(BF+4*p)}, {vXr} offset:{16384*(p>>2) + 1024*(p&3)}", tag=f"xr{p}")


gomark = [0]


def go_ld(mod):
    e(f"buffer_load_dword v59, v60, {SDBG}, 0 offen {mod}")
    A.untrack()
    gomark[0] = A.nvm


def go_load():
    L = lab("Lgo")
    e(f"s_cmp_lg_u32 s40, 0\ns_cbranch_scc1 {L}")
    go_ld("sc0")
    e(f"{L}:")


def go_check(final=False):
    L, L2, L0 = lab("Lgo"), lab("Lgp"), lab("Lgs")
    e(f"s_cmp_lg_u32 s40, 0\ns_cbranch_scc1 {L}")
    e(f"s_waitcnt vmcnt({A.nvm - gomark[0]})")
    if final:
        e(f"s_mov_b32 s41, 0")
        e(f"{L0}:")
    e("v_cmp_ne_u32 vcc, 0, v59")
    e("s_cmp_eq_u32 vcc_lo, 15")
    e(f"s_cbranch_scc1 {L2}")
    go_ld("sc1" if final else "sc0")
    if final:
        e("s_waitcnt vmcnt(0)")
        e(f"s_add_u32 s41, s41, 1\ns_cmp_gt_u32 s41, 30000\ns_cbranch_scc1 L_end")
        e(f"s_branch {L0}")
    else:
        e(f"s_branch {L}")
    e(f"{L2}:")
    e("s_mov_b64 exec, 1\ns_mov_b32 s40, 1")
    e(f"buffer_store_byte v56, v57, {SWS}, 0 offen sc1")
    A.untrack()
    e("s_mov_b64 exec, 0xffff")
    e(f"buffer_load_dword v61, v58, {SWS}, 0 offen sc1")
    A.untrack()
    e("s_mov_b64 exec, -1")
    e(f"{L}:")


def p1_pre(i):
    if i % 16 == 0:
        c = i // 16
        A.wait_vm(f"x3" if c == 0 else f"w1c{c}")
        if c == 0 and OPT["gol"] == 2:
            go_post(False)
        for p in {0: range(0, 4), 1: range(4, 8), 2: range(8, 16), 3: []}[c]:
            x_read(p)
        e("s_barrier")
        stamp(2)


SUMA, GRAM = 96, 100


def stat_mfma(p, which):
    if which:
        return f"v_mfma_f32_16x16x32_bf16 {vr(GRAM)}, {vr(BF+4*p)}, {vr(BF+4*p)}, {vr(GRAM) if p else '0'}"
    return f"v_mfma_f32_16x16x32_bf16 {vr(SUMA)}, {vr(ONES)}, {vr(BF+4*p)}, {vr(SUMA) if p else '0'}"


F = {i: [] for i in range(64)}
lq = [lambda p=p: x_issue(p) for p in range(8, 16)] + [lambda c=c, n=n: w12_issue(1, c, n) for c in (2, 3) for n in range(4)]
for i in range(16):
    F[i].append(lq[i])
F[OPT["hel"]].append(go_load)
for k in range(1, 4):
    F[min(48, OPT["hel"] + OPT["held"] * k)].append(go_check)
for p in range(8):
    F[4 * p + 1].append(stat_mfma(p, 0))
    F[4 * p + 2].append(stat_mfma(p, 1))
for k in range(16):
    F[32 + k].append(stat_mfma(8 + (k >> 1), k & 1))
F[OPT["w2b"]].append(lambda: A.wait_lg("xr15"))
for k in range(8):
    F[OPT["w2a"] + OPT["w2d"] * k].append(lambda k=k: w12_issue(2, k >> 2, k & 3))
    F[OPT["w2b"] + OPT["w2d"] * k].append(lambda k=k: w12_issue(2, 2 + (k >> 2), k & 3))
with Cap() as st:
    for r in range(4):
        mk = sum(1 << (20 * g + r) for g in range(4))
        e(f"s_mov_b32 vcc_lo, {mk & 0xffffffff}\ns_mov_b32 vcc_hi, {mk >> 32}")
        e(f"v_cndmask_b32 v41, {'0' if r == 0 else 'v41'}, v{GRAM+r}, vcc")
    e("v_mov_b32 v42, v41\nv_permlane32_swap_b32 v41, v42\nv_add_f32 v41, v41, v42")
    e("v_mov_b32 v42, v41\nv_permlane16_swap_b32 v41, v42\nv_add_f32 v41, v41, v42")
    stat_consts(SUMA, 41, 44)
    e(f"s_lshl_b32 {sT4}, {sS}, 2\ns_add_u32 {sT4}, {sT4}, {sW}\ns_lshl_b32 {sT4}, {sT4}, 14")
    e(f"s_lshl_b32 {sT3}, {sJ}, 11\ns_add_u32 {sT3}, {sT3}, {sT4}")
    e(f"s_lshr_b32 {sT2}, {sW}, 1\ns_lshl_b32 {sT2}, {sT2}, 10")
    e(f"s_add_u32 {sCnt}, {sT3}, {sT2}\ns_xor_b32 {sT2}, {sT2}, 1024\ns_add_u32 {sT2}, {sT3}, {sT2}")
for k, s_ in enumerate(st):
    F[49 + k // 3].append(s_)
F[62].append(lambda: e(f"ds_write_b128 v{CX}, {vr(ACC+16)}", tag="csw"))


def xres():
    e(f"s_lshr_b32 {sT5}, {sMode}, 1\ns_add_u32 m0, {sT5}, {LXR}")
    m0c[0] = None
    e(f"buffer_load_dwordx4 {vMisc}, {SX}, {sT1} offen lds", tag="xres")
    e(f"v_xor_b32 {vMisc}, 64, {vMisc}\ns_add_u32 {sT1}, {sT1}, {8192-1024}")
    e(f"buffer_load_dwordx4 {vMisc}, {SX}, {sT1} offen offset:1024 lds", tag="xres")


F[16].append(xres)
if DU:
    slots = [int(t) for t in str(OPT["dsl"]).split("_")]
    assert len(slots) == len(DU) and slots[-1] < OPT["pfa"] and max(slots) < 49
    for sl_, u in zip(slots, DU):
        F[sl_].append(u)
for k in range(OPT["pfa"], 64, OPT["pfd"]):
    F[k].append(pf)
with Cap() as st:
    tr_bases12(LW2, False, 108)
for k, s_ in enumerate(st):
    F[55 + k // 2].append(s_)

D = 10


def rd1(i):
    ks, sl = i >> 2, i & 3
    p1_pre(i)
    b = 192 + 4 * (i & 15)
    for r in range(2):
        e(f"ds_read_b64_tr_b16 {ar(b+2*r, 2)}, v{TRB+sl} offset:{4096*ks+2048*r}", tag=f"a{i}")


for i in range(D):
    rd1(i)
for i in range(64):
    ks, sl = i >> 2, i & 3
    if i + D < 64:
        rd1(i + D)
    if i % 2 == 0:
        A.wait_lg(f"a{i+1}")
    c = vr(ACC + 4 * sl) if ks > 0 else "0"
    e(f"v_mfma_f32_16x16x32_bf16 {vr(ACC+4*sl)}, {ar(192+4*(i&15))}, {vr(BF+4*ks)}, {c}")
    if sl == 0:
        c = vr(ACC + 16) if ks > 0 else "0"
        e(f"v_mfma_f32_16x16x32_bf16 {vr(ACC+16)}, {ar(192+4*(i&15))}, {vr(ONES)}, {c}")
    for f in F[i]:
        run(f)
stamp(1, 2)
go_check(True)
A.wait_vm("w2c3")
stamp(3)
A.wait_lg0()
e("s_barrier")
for i in range(1, 4):
    e(f"ds_read_b128 {vr(ACC+16+4*i)}, v{CX+i}", tag=f"cs{i}")
e(f"buffer_load_dword v59, v62, {SWS}, 0 offen sc0", tag="hel")
A.wait_lg0()
for i in range(4):
    for h in (0, 2):
        e(f"v_pk_fma_f32 {vr(ACC+4*i+h, 2)}, {vr(ACC+16+4*i+h, 2)}, v[{cI}:{cM}], {vr(ACC+4*i+h, 2)} op_sel:[0,1,0] op_sel_hi:[1,1,1]")
hG = hook("hG")
for i in range(4):
    if hG: run(hG.pop(0))
    for s_ in gelu4pk(ACC + 4 * i, TMP + 4 * (i & 1), [TMP + 8 + 2 * i, TMP + 9 + 2 * i]):
        e(s_)
Lx = lab("Lx")
e(f"s_bitcmp0_b32 {sW}, 0\ns_cbranch_scc1 {Lx}")
for i2 in range(2):
    for d in range(2):
        e(f"v_swap_b32 v{TMP+8+4*i2+d}, v{TMP+10+4*i2+d}")
e(f"{Lx}:")
e(f"buffer_store_dwordx4 {vr(TMP+8)}, {vL16}, {SWS}, {sCnt} offen{fl('gst')}", tag="gst")
e(f"buffer_store_dwordx4 {vr(TMP+12)}, {vL16}, {SWS}, {sT2} offen{fl('gst')}", tag="gst")
stamp(2, 3)
e(f"s_mul_i32 {sW3m}, {sW}, 7168\ns_lshl_b32 {sStg}, {sW}, 13\ns_add_u32 {sStg}, {sStg}, {LST}")
e(f"s_and_b32 {sW3o}, {sW}, 1\ns_mul_i32 {sW3o}, {sW3o}, 114688\ns_lshr_b32 {sT5}, {sW}, 1\ns_add_u32 {sT5}, {sT5}, {sRot3}")
for per in range(4):
    e(f"s_add_u32 s{W3B[per]}, {sT5}, {2*per}\ns_and_b32 s{W3B[per]}, s{W3B[per]}, 7\ns_mul_i32 s{W3B[per]}, s{W3B[per]}, 229376\ns_add_u32 s{W3B[per]}, s{W3B[per]}, {sW3o}")
hA = hook("hA")
for i in range(64):
    ks, sl = i >> 2, i & 3
    for r in range(2):
        e(f"ds_read_b64_tr_b16 {ar(4*i+2*r, 2)}, v{TRB+sl} offset:{4096*ks+2048*r}", tag="w2f")
        k = 2 * i + r - OPT["fr0"]
        if k >= 0 and k % OPT["frd"] == 0 and hA:
            run(hA.pop(0))
for f in hA: run(f)
assert w3s[0] <= 21
e(f"s_add_u32 s60, s28, {FLAG_OFF}\ns_addc_u32 s61, s29, 0")
for mm in range(4):
    e(f"s_add_u32 {sT6}, {sRep}, {mm}\ns_and_b32 {sT6}, {sT6}, 3\ns_and_b32 {sT5}, {sT6}, 1\ns_mul_i32 {sT6}, {sT6}, 7\ns_add_u32 {sT6}, {sT6}, {sT5}\ns_lshl_b32 s{KF[mm]}, {sT6}, 10")
    if mm < 2:
        e(f"s_cmp_eq_u32 {sT5}, 0\ns_cselect_b32 s{DH[mm]}, 6, -1\ns_lshl_b32 s{DH[mm]}, s{DH[mm]}, 10")
XA = 96
e(f"v_and_b32 v44, 15, {vL}\nv_lshrrev_b32 v45, 5, {vL}\nv_bfe_u32 v46, {vL}, 1, 3\nv_xor_b32 v45, v45, v46\nv_bfe_u32 v46, {vL}, 4, 1")
e(f"v_lshlrev_b32 v44, 7, v44\nv_lshl_add_u32 v44, v46, 3, v44\nv_lshl_add_u32 v44, v45, 4, v44")
e(f"s_lshr_b32 {sT5}, {sMode}, 1\ns_add_u32 {sT5}, {sT5}, {LXR}\nv_add_u32 v{XA}, {sT5}, v44")
for fb in range(1, 4):
    e(f"v_xor_b32 v{XA+fb}, {32*fb}, v{XA}")
for fb in range(4):
    e(f"ds_read_b64 {vr(100+2*fb, 2)}, v{XA+fb}", tag="xrr")
e(f"s_and_b32 {sPar}, {sM}, 1")
e(f"s_lshl_b32 {sT1}, {sS}, 2\ns_add_u32 {sT1}, {sT1}, {sW}\ns_lshl_b32 {sT1}, {sT1}, 10")
e(f"s_lshl_b32 {sT2}, {sJ}, 2\ns_add_u32 {sT2}, {sT2}, {sT1}\ns_add_u32 {sT2}, {sT2}, {FLAG_OFF}")
stamp(3)
A.wait_vm("gst")
stamp(3)
Lh, Lh2, Lh3 = lab("Lh"), lab("Lh2"), lab("Lh3")
e(f"v_cmp_eq_u32 vcc, {sHello}, v59")
e(f"s_mov_b32 {sMode}, 0\ns_mov_b32 {sCnt}, 0")
e(f"s_cmp_eq_u32 vcc_lo, 15\ns_cbranch_scc1 {Lh3}")
e(f"{Lh}:")
A.raw(f"s_load_dwordx4 s[36:39], s[42:43], 0 glc")
e("s_waitcnt lgkmcnt(0)")
e("s_and_b64 s[40:41], s[36:37], s[38:39]\ns_and_b32 s40, s40, s41\ns_and_b32 s40, s40, 0x80808080")
e(f"s_cmp_eq_u32 s40, 0x80808080\ns_cbranch_scc1 {Lh2}")
e(f"s_add_u32 {sCnt}, {sCnt}, 1\ns_cmp_gt_u32 {sCnt}, 30000\ns_cbranch_scc1 L_end")
e(f"s_branch {Lh}")
e(f"{Lh2}:")
for i in range(4): e(f"s_xor_b32 s{36+i}, s{36+i}, {sHello}")
e("s_or_b64 s[36:37], s[36:37], s[38:39]\ns_or_b32 s36, s36, s37")
e(f"s_cselect_b32 {sMode}, 4096, 0")
e(f"{Lh3}:")
publish(sT2, OPT["r1"])
A.wait_lg("xrr")
for fb in range(4):
    e(f"v_add_u32 v{XA+fb}, {LX1R-LXR}, v{XA+fb}")
    for d in range(2):
        e(f"v_lshlrev_b32 v{ACC+4*fb+2*d}, 16, v{100+2*fb+d}")
        e(f"v_and_b32 v{ACC+4*fb+2*d+1}, 0xffff0000, v{100+2*fb+d}")
for pp in range(8):
    e(f"s_add_u32 s{44+pp}, {sRot1}, {pp}\ns_and_b32 s{44+pp}, s{44+pp}, 7\ns_lshl_b32 s{44+pp}, s{44+pp}, 11\ns_add_u32 s{44+pp}, s{44+pp}, {sT4}")
A.wait_lg0()
e("s_barrier")
for n in range(1, 4):
    e(f"v_add_u32 {W4V[n]}, {7168*n}, {vW4d}")
for f in hook("hB"): run(f)
GB = BF + 64
poll(sT1, 8, OPT["r1"], None, (lambda: pf(True)) if OPT["pfp"] & 1 else None)
stamp(1, 3)


def g_issue(p):
    e(f"buffer_load_dwordx4 {vr(GB+4*p)}, {vL16}, {SWS}, s{44+(p>>1)} offen offset:{1024*(p&1)}{fl('ld')}", tag=f"g{p}")


NG0 = OPT["ng0"]
for p in range(NG0):
    g_issue(p)
e(f"s_lshl_b32 {sT1}, {sS}, 1\ns_lshr_b32 {sT2}, {sW}, 1\ns_add_u32 {sT1}, {sT1}, {sT2}")
e(f"s_lshl_b32 {sT6}, {sT1}, 10")
e(f"s_lshl_b32 {sT2}, {sT1}, 15\ns_lshl_b32 {sT3}, {sJ}, 12\ns_add_u32 {sT2}, {sT2}, {sT3}")
e(f"s_and_b32 {sT3}, {sW}, 1\ns_lshl_b32 {sT4}, {sT3}, 8\ns_add_u32 {sT2}, {sT2}, {sT4}\ns_add_u32 {sT2}, {sT2}, {X1_OFF}")
e(f"s_lshl_b32 {sT1}, {sT1}, 11\ns_lshl_b32 {sT4}, {sJ}, 8\ns_add_u32 {sT1}, {sT1}, {sT4}")
e(f"s_lshl_b32 {sT4}, {sT3}, 7\ns_add_u32 {sT1}, {sT1}, {sT4}\ns_add_u32 {sT1}, {sT1}, {STAT_OFF}")
e(f"s_lshl_b32 {sT3}, {sT3}, 3\ns_add_u32 {sT3}, {sT3}, {sJ}\ns_lshl_b32 {sT3}, {sT3}, 2")
e(f"s_add_u32 {sT3}, {sT6}, {sT3}\ns_add_u32 {sT3}, {sT3}, {FLAG_OFF + 8192}")
e(f"v_and_b32 v54, 15, {vL}\nv_lshrrev_b32 v55, 4, {vL}\nv_lshlrev_b32 v56, 3, v54\nv_lshlrev_b32 v54, 4, v54\nv_lshl_add_u32 v54, v55, 10, v54")
e(f"v_lshrrev_b32 v40, 5, {vL}\nv_bfe_u32 v41, {vL}, 4, 1\nv_bfe_u32 v42, {vL}, 2, 2\nv_and_b32 v43, 3, {vL}")
e(f"v_mul_u32_u24 v44, {896*8}, v40")
e(f"v_lshl_add_u32 v45, v42, 6, v44\nv_lshl_add_u32 v45, v41, 5, v45\nv_lshl_add_u32 v{TRB}, v43, 3, v45")
e(f"v_add_u32 v{TRB+1}, {896*64}, v{TRB}")
e(f"v_mul_u32_u24 v45, 896, v41\nv_add_u32 v44, v44, v45\nv_lshl_add_u32 v44, v42, 5, v44")
e(f"v_and_b32 v45, 1, v43\nv_lshrrev_b32 v43, 1, v43\nv_lshl_add_u32 v43, v45, 1, v43\nv_lshl_add_u32 v44, v43, 3, v44")
e(f"v_add_u32 v{TRB+2}, 768, v44\nv_add_u32 v{TRB+3}, {768+896*64}, v44")
e(f"v_bfe_u32 v42, {vL}, 2, 1\nv_cmp_eq_u32 vcc, v42, v41")
e(f"v_cndmask_b32 v{ASEL}, 0, v{ONES}, vcc")
for i in range(1, 4): e(f"v_mov_b32 v{ASEL+i}, v{ASEL}")
CSA = 124
e(f"s_mul_i32 {sT4}, {sW}, {896*16}")
e(f"v_add_u32 v{CSA}, {sT4}, v{TRB}\nv_add_u32 v{CSA+1}, {sT4}, v{TRB+2}")
e(f"v_and_b32 v48, 31, {vL}\nv_lshlrev_b32 v48, 3, v48\nv_lshl_add_u32 v48, v40, 10, v48")
F = {i: [] for i in range(64)}
lq = [lambda p=p: g_issue(p) for p in range(NG0, 16)] + hook("hC")
for k, f in enumerate(lq):
    F[k * OPT["p2d"]].append(f)
for i in range(64):
    ks, sl = i >> 2, i & 3
    if sl == 0:
        A.wait_vm(f"g{ks}")
    e(f"v_mfma_f32_16x16x32_bf16 {vr(ACC+4*sl)}, {ar(4*i)}, {vr(GB+4*ks)}, {vr(ACC+4*sl)}")
    for f in F[i]:
        run(f)
stamp(1, 3)
for i in range(8):
    e(f"v_cvt_pk_bf16_f32 v{X1P+i}, v{ACC+2*i}, v{ACC+2*i+1}")
e(f"buffer_store_dwordx4 {vr(X1P)}, v54, {SWS}, {sT2} offen{fl('xst')}", tag="xst")
e(f"buffer_store_dwordx4 {vr(X1P+4)}, v54, {SWS}, {sT2} offen offset:512{fl('xst')}", tag="xst")
for i in range(8):
    e(f"v_dot2_f32_bf16 v40, v{X1P+i}, v{ONES}, {'0' if i == 0 else 'v40'}")
    e(f"v_dot2_f32_bf16 v42, v{X1P+i}, v{X1P+i}, {'0' if i == 0 else 'v42'}")
reduce_q(40, 42, 41)
e("s_mov_b64 exec, 0xffff")
e(f"buffer_store_dwordx2 v[40:41], v56, {SWS}, {sT1} offen{fl('xst')}", tag="xst")
e("s_mov_b64 exec, -1")
for f in hook("hD"): run(f)
for fb in range(4):
    e(f"ds_write_b64 v{XA+fb}, {vr(X1P+2*fb, 2)}", tag="x1r")
e(f"s_lshl_b32 {sT4}, {sW}, 11\ns_add_u32 {sT4}, {sT4}, {STAT_OFF}")
e(f"s_lshl_b32 {sT1}, {sW}, 10\ns_add_u32 {sT1}, {sT1}, 8192")
YT = list(range(8, 16))
e(f"s_lshl_b32 {sT5}, {sW}, 15\ns_add_u32 {sT5}, {sT5}, {X1_OFF}")
for bp in range(8):
    e(f"s_add_u32 s{YT[bp]}, {sRot3}, {bp}\ns_and_b32 s{YT[bp]}, s{YT[bp]}, 7\ns_lshl_b32 s{YT[bp]}, s{YT[bp]}, 12\ns_add_u32 s{YT[bp]}, s{YT[bp]}, {sT5}")
stamp(3)
A.wait_vm("xst")
stamp(3)
publish(sT3, OPT["r2"])
for f in hook("hE"): run(f)
assert w3s[0] == 28
CS = ACC + 32


def cs_items(part):
    it = []
    for q in range(4):
        for b in range(3):
            it.append((CSA, 896 * (64 * part + q) + 256 * b, b))
        if q % 2 == 0:
            it.append((CSA + 1, 896 * (64 * part + q), 3))
    return it


sHs, sHh, sP3 = sT2, "s62", "s63"
e(f"s_mul_i32 {sHh}, {sW}, 112\ns_mul_i32 {sHs}, {sM}, 7\ns_add_u32 {sHh}, {sHh}, {sHs}\ns_lshl_b32 {sHh}, {sHh}, 10\ns_add_u32 {sHh}, {sHh}, {H3_OFF}")
e(f"s_lshl_b32 {sHs}, {sPar}, 10\ns_add_u32 {sHs}, {sHs}, {sHh}")
e(f"s_cmp_eq_u32 {sPar}, 0\ns_cselect_b32 {sT5}, 6144, 0\ns_add_u32 {sHh}, {sHh}, {sT5}")
e(f"s_lshr_b32 {sP3}, {sW}, 1\ns_lshl_b32 {sP3}, {sP3}, 2\ns_lshr_b32 {sT5}, {sM}, 2\ns_add_u32 {sP3}, {sP3}, {sT5}\ns_lshl_b32 {sP3}, {sP3}, 11")
e(f"s_and_b32 {sT5}, {sM}, 3\ns_lshl_b32 {sT5}, {sT5}, 3\ns_add_u32 {sP3}, {sP3}, {sT5}")
e(f"s_and_b32 {sT5}, {sW}, 1\ns_lshl_b32 {sT5}, {sT5}, 2\ns_add_u32 {sP3}, {sP3}, {sT5}")
e(f"s_add_u32 {sP3}, {sP3}, {FLAG_OFF + 16384}")
HA = [4, 5, 6, 7]
e(f"s_mul_i32 {sH0}, {sS}, 224\ns_mul_i32 {sT5}, {sW}, 28\ns_add_u32 {sH0}, {sH0}, {sT5}")
e(f"s_lshl_b32 {sH0}, {sH0}, 10\ns_add_u32 {sH0}, {sH0}, {H3_OFF}")
for mm in range(4):
    e(f"s_add_u32 s{HA[mm]}, {sH0}, s{KF[mm]}")
vH = ["v11", "v56"]
e(f"s_lshr_b32 {sT5}, {sW}, 1\ns_mul_i32 {sT5}, {sT5}, {112*1024}\nv_add_u32 {vH[0]}, {sT5}, {vL16}")
e(f"s_sub_u32 {sT5}, {112*1024}, {sT5}\nv_add_u32 {vH[1]}, {sT5}, {vL16}")
e(f"s_lshl_b32 {sT5}, {sW}, 10\ns_add_u32 {sT5}, {sT5}, {LMISC}")
e(f"v_add_u32 v126, {sT5}, {vL16}\nv_add_u32 v127, {LMISC}, {vL16}")
sQ3 = sT3
e(f"s_lshl_b32 {sQ3}, {sS}, 2\ns_add_u32 {sQ3}, {sQ3}, {sW}\ns_lshl_b32 {sQ3}, {sQ3}, 11\ns_add_u32 {sQ3}, {sQ3}, 16384")
A.wait_vm("w3")
A.wait_lg0()
e("s_barrier")
stamp(4)
for f in hook("hF"): run(f)
w4_issue(8 - w4s["iss"])
items = cs_items(0) + cs_items(1)
D = 6
cs_seen = set()
hS = hook("hS")
for i in range(len(items) + D):
    if i < len(items):
        bs, off, b = items[i]
        for r in range(2):
            e(f"ds_read_b64_tr_b16 {ar(AB+4*(i&7)+2*r, 2)}, v{bs} offset:{off+896*4*r}", tag=f"a{i}")
    k = i - D
    if k >= 0:
        if k % 2 == 0:
            A.wait_lg(f"a{k+1}")
        bs, off, b = items[k]
        c = vr(CS + 4 * b) if b in cs_seen else "0"
        cs_seen.add(b)
        if k % 4 == 1 and hS: run(hS.pop(0))
        e(f"v_mfma_f32_16x16x32_bf16 {vr(CS+4*b)}, {vr(ASEL if b < 3 else ONES)}, {ar(AB+4*(k&7))}, {c}")
HD = ACC + 48
AP = 12
BH = 22
BP = 120
S0 = TMP


def w3_addr(ks, b, r):
    j, q = ks >> 2, ks & 3
    hi = j >= 4
    off = 896 * (16 * (j - 4 * hi) + q + 4 * r)
    if b < 3:
        return TRB + hi, off + 256 * b
    return TRB + 2 + hi, off


items = [(ks, b) for ks in range(32) for b in range(2)]
NA = 64
for p in range(17):
    if p < 16:
        items += [(2 * p, 2), (2 * p + 1, 2)]
    if p > 0:
        items += [(2 * p - 2, 3)]
nrd = [0]


def rd3(upto):
    while nrd[0] <= upto and nrd[0] < len(items):
        i = nrd[0]
        ks, b = items[i]
        for r in range(2):
            bs, off = w3_addr(ks, b, r)
            e(f"ds_read_b64_tr_b16 {ar(AB+4*(i&7)+2*r, 2)}, v{bs} offset:{off}", tag=f"a{i}")
        nrd[0] += 1


def cs_exchange():
    for b in range(4):
        e(f"v_mov_b32 v{S0+b}, v{CS+4*b}")
    e(f"ds_write_b128 v126, {vr(S0)}", tag="csw")
    A.wait_lg0()
    e("s_barrier")
    for i in range(4):
        e(f"ds_read_b128 {vr(CS+4*i)}, v127 offset:{1024*i}", tag="cs")
    rd3(5)


cs_exchange()


def cs_finish():
    A.wait_lg("cs")
    for b in range(0, 4, 2):
        e(f"v_pk_add_f32 {vr(CS+b, 2)}, {vr(CS+b, 2)}, {vr(CS+4+b, 2)}\nv_pk_add_f32 {vr(CS+8+b, 2)}, {vr(CS+8+b, 2)}, {vr(CS+12+b, 2)}")
    for b in range(0, 4, 2):
        e(f"v_pk_add_f32 {vr(CS+b, 2)}, {vr(CS+b, 2)}, {vr(CS+8+b, 2)}")
    for b in range(4):
        e(f"v_cvt_pk_bf16_f32 v{AP+2*b}, v{CS+b}, v{CS+b}")
        e(f"v_and_b32 v{S0}, 0xffff0000, v{AP+2*b}")
        e(f"v_sub_f32 v{S0}, v{CS+b}, v{S0}")
        e(f"v_cvt_pk_bf16_f32 v{AP+2*b+1}, v{S0}, v{S0}")
    e(f"v_mov_b32 v{AP+8}, 0\nv_mov_b32 v{AP+9}, 0")
    e(f"v_mov_b32 v{BH}, 0\nv_mov_b32 v{BH+2}, 0\nv_mov_b32 v{BH+3}, 0\nv_mov_b32 v{BP+2}, 0\nv_mov_b32 v{BP+3}, 0")


poll(sT1, 16, OPT["r2"], cs_finish, (lambda: pf(True)) if OPT["pfp"] & 2 else None)
stamp(1, 3, 4)


def y_issue(ks):
    e(f"buffer_load_dwordx4 {vr(BF+4*ks)}, {vL16}, {SWS}, s{YT[ks>>2]} offen offset:{1024*(ks&3)}{fl('ld')}", tag=f"y{ks}")


def st_issue(jj):
    e(f"buffer_load_dwordx2 {vr(S0+2*jj, 2)}, v48, {SWS}, {sT4} offen offset:{256*jj} sc1", tag="st")


NY0 = OPT["ny0"]
for ks in range(NY0):
    y_issue(ks)
    if ks == 3:
        for jj in range(4): st_issue(jj)
F = {i: [] for i in range(len(items))}
for k, ks in enumerate(range(NY0, 32)):
    F[2 * k].append(lambda ks=ks: y_issue(ks))
with Cap() as st:
    e(f"v_add_f32 v{S0}, v{S0}, v{S0+2}\nv_add_f32 v{S0+1}, v{S0+1}, v{S0+3}\nv_add_f32 v{S0+4}, v{S0+4}, v{S0+6}\nv_add_f32 v{S0+5}, v{S0+5}, v{S0+7}")
    e(f"v_add_f32 v{S0}, v{S0}, v{S0+4}\nv_add_f32 v{S0+1}, v{S0+1}, v{S0+5}")
    e(f"v_mov_b32 v{S0+2}, v{S0}\nv_mov_b32 v{S0+3}, v{S0+1}")
    e(f"v_permlane32_swap_b32 v{S0}, v{S0+2}\nv_permlane32_swap_b32 v{S0+1}, v{S0+3}")
    e(f"v_add_f32 v{S0}, v{S0}, v{S0+2}\nv_add_f32 v{S0+1}, v{S0+1}, v{S0+3}")
    stat_consts(S0, S0 + 1, S0 + 2)
    e(f"v_cvt_pk_bf16_f32 v{S0}, v{cM}, v{cM}\nv_and_b32 v{S0}, 0xffff0000, v{S0}\nv_sub_f32 v{S0}, v{cM}, v{S0}")
    e(f"v_cvt_pk_bf16_f32 v{S0}, v{cM}, v{S0}")
    e(f"v_cmp_gt_u32 vcc, 32, {vL}")
    e(f"v_cndmask_b32 v{BP}, 0, v{S0}, vcc")
    e(f"v_mov_b32 v{BP+1}, v{BP}\nv_mov_b32 v{BH+4}, v{BP}")
    e(f"v_permlane16_swap_b32 v{BH+4}, v{BH}")
    e(f"v_mov_b32 v{BH+5}, v{BH+4}\nv_mov_b32 v{BH+1}, v{BH}")
IS = 64 - (len(st) + 2) // 3
for k, s_ in enumerate(st):
    F[IS + k // 3].append(s_)
wq = []
for c in range(OPT["wa0"] and 2):
    wq += [lambda: w4_read(2), lambda: w4_read(2)]
for k, f in enumerate(wq):
    F[OPT["wa0"] + 2 * k + 1].append(f)
i0 = 2 * (32 - NY0)
if OPT["wa0"]:
    F[i0].append(w4_release)
    for k in range(8):
        F[i0 + k * OPT["wad"]].append(lambda: w4_issue(1))
for k, f in enumerate(hook("hP")):
    F[1 + 4 * k].append(f)
started = set()


def corr(b):
    e(f"v_mfma_f32_32x32x16_bf16 {vr(ACC+16*b, 16)}, {vr(AP+2*b)}, {vr(BP)}, {vr(ACC+16*b, 16)}")


def mf3(i):
    ks, b = items[i]
    if b < 3:
        c = vr(ACC + 16 * b, 16) if b in started else "0"
        e(f"v_mfma_f32_32x32x16_bf16 {vr(ACC+16*b, 16)}, {ar(AB+4*(i&7))}, {vr(BF+4*ks)}, {c}")
    else:
        for u in range(2):
            c = vr(HD + 4 * u) if b in started else "0"
            e(f"v_mfma_f32_16x16x32_bf16 {vr(HD+4*u)}, {ar(AB+4*(i&7))}, {vr(BF+4*ks+4*u)}, {c}")
    started.add(b)


for i in range(NA):
    ks, b = items[i]
    if b == 0:
        rd3(i + 7)
        A.wait_vm(f"y{ks}")
        A.wait_lg(f"a{i+1}")
    if i == 32:
        stamp(4)
    mf3(i)
    for f in F[i]:
        run(f)
corr(0)
corr(1)
stamp(1, 4)


def h3_store(dsts, blk):
    for c2 in range(2):
        off = 2048 * blk + 1024 * c2
        if off == 4096:
            e(f"s_add_u32 {sHs}, {sHs}, 4096")
        e(f"buffer_store_dwordx4 {vr(dsts+4*c2)}, {vL16}, {SWS}, {sHs} offen offset:{off&4095}{fl('hst')}", tag=f"h{blk}")


def epi_pk(acc, T, dsts, fill, ng=4):
    k = 0
    for g in range(ng):
        for s_ in gelu4pk(acc + 4 * g, T + 4 * (g & 1), [dsts + 2 * g, dsts + 2 * g + 1]):
            e(s_)
            k += 1
            if k % 5 == 0 and fill:
                run(fill.pop(0))


def pub3(tag):
    A.wait_vm(tag)
    publish(sP3, OPT["r3"])
    e(f"s_add_u32 {sP3}, {sP3}, 512")


fill = []
for c in range(OPT["wg"]):
    fill += [f for f in w4_cycle()] + [None] * 7
epi_pk(ACC, TMP, TMP + 8, fill)
h3_store(TMP + 8, 0)
epi_pk(ACC + 16, TMP, X1P, fill)
h3_store(X1P, 1)
for f in fill:
    run(f)
stamp(4, 5)
fill = []
for c in range(OPT["wb"]):
    fill += w4_cycle() + [None] * OPT["wbg"]
zs = [0]


def z_issue(n=1):
    for _ in range(n):
        z = zs[0]
        if z >= 56:
            return
        mm, ksl = P4K[z >> 1]
        blk, c2 = KSL[ksl]
        tb = z & 1
        so, off = f"s{HA[mm]}", 2048 * blk + 1024 * c2
        if blk == 3:
            so, off = sT5, 0
            if tb == 0:
                e(f"s_add_u32 {sT5}, s{HA[mm]}, s{DH[mm&1]}")
        elif blk == 2:
            so, off = sT5, 1024 * c2
            if tb == 0 and c2 == 0:
                e(f"s_add_u32 {sT5}, s{HA[mm]}, 4096")
        e(f"buffer_load_dwordx4 {vr(BF+4*(z&31))}, {vH[tb]}, {SWS}, {so} offen offset:{off}{fl('ld')}", tag=f"z{z}")
        zs[0] += 1


def phb(lo, hi, zz):
    for i in range(lo, hi):
        ks, b = items[i]
        rd3(i + 6)
        A.wait_lg(f"a{i}")
        mf3(i)
        if b == 2 and ks % 2 == 0 and ks > 0 or i == len(items) - 2:
            k2 = ks - 2 if i != len(items) - 2 else 30
            if i == len(items) - 2:
                corr(2)
            for d in range(4):
                e(f"v_permlane16_swap_b32 v{BF+4*k2+d}, v{BF+4*k2+4+d}")
        if i == NA + 3 * OPT["pubb"]:
            pub3("h1")
        elif i > NA + 2:
            for _ in range(OPT["wbn"]):
                if fill:
                    run(fill.pop(0))
        if zz and zs[0] < OPT["zla"]:
            z_issue(1)


PA = NA + OPT["pola"]
phb(NA, PA, 0)
poll(sQ3, 8, OPT["r3"], lambda: phb(PA, PA + 4, 0))
stamp(5)
e(f"s_add_u32 {sQ3}, {sQ3}, 512")
phb(PA + 4, len(items), 1)
e(f"v_mfma_f32_16x16x32_bf16 {vr(HD)}, {vr(AP+4)}, {vr(BH+2)}, {vr(HD)}")
e(f"v_mfma_f32_16x16x32_bf16 {vr(HD+4)}, {vr(AP+6)}, {vr(BH)}, {vr(HD+4)}")
for f in fill:
    run(f)
stamp(1, 4, 5)
sys.stderr.write(f"w4 state at P3 end {w4s}\n")
def tail1():
    e(f"v_and_b32 v60, 31, {vL}\nv_bfe_u32 v61, {vL}, 1, 3\nv_lshrrev_b32 v62, 5, {vL}")
    e(f"s_and_b32 {sT5}, {sW}, 1\ns_lshl_b32 {sT5}, {sT5}, 2\nv_xor_b32 v61, {sT5}, v61")
    e(f"s_lshr_b32 {sT5}, {sW}, 1\ns_lshl_b32 {sT5}, {sT5}, 12\ns_add_u32 {sT5}, {sT5}, {LX1R}")
    e(f"v_lshl_add_u32 v60, v60, 7, {sT5}\nv_lshl_add_u32 v60, v61, 4, v60\nv_lshl_add_u32 v60, v62, 3, v60")
    for g in range(1, 4):
        e(f"v_xor_b32 v{60+g}, {16*g}, v60")
    for g in range(4):
        e(f"ds_read_b64 {vr(ACC+16+2*g, 2)}, v{60+g}", tag="xr")
    epi_pk(ACC + 32, TMP, TMP + 8, [])
    h3_store(TMP + 8, 2)


z_issue(OPT["zla"] - zs[0])
tail1()
for d in range(4):
    e(f"v_permlane16_swap_b32 v{HD+d}, v{HD+4+d}")
epi_pk(HD, TMP, X1P, [], 2)
e(f"buffer_store_dwordx4 {vr(X1P)}, {vL16}, {SWS}, {sHh} offen{fl('hst')}", tag="h3")
A.wait_lg("xr")
for g in range(4):
    for d in range(2):
        e(f"v_lshlrev_b32 v{ACC+4*g+2*d}, 16, v{ACC+16+2*g+d}")
        e(f"v_and_b32 v{ACC+4*g+2*d+1}, 0xffff0000, v{ACC+16+2*g+d}")
stamp(1, 4, 5)
started = {0}
F = {i: [] for i in range(112)}
F[OPT["pub2"]].append(lambda: (pub3("h3"), stamp(5)))

fill = []
while len(fill) // 8 * 4 + w4s["con"] < 56:
    fill += w4_cycle() + [None]
for k, f in enumerate(fill):
    F[1 + k].append(f)
with Cap() as st:
    e("s_barrier")
    e(f"s_lshl_b32 {sT4}, {sW}, 14\nv_add_u32 v40, {sT4}, {vL16}")
    for i in range(1, 4):
        e(f"v_xor_b32 v{40+i}, {16384*i}, v40")
    e(f"s_lshr_b32 {sT1}, {sW}, 1\ns_lshl_b32 {sT1}, {sT1}, 15\ns_and_b32 {sT4}, {sW}, 1\ns_lshl_b32 {sT4}, {sT4}, 6\ns_add_u32 {sT1}, {sT1}, {sT4}")
    if OPT["otr"]:
        e(f"v_and_b32 v44, 31, {vL}\nv_lshrrev_b32 v45, 5, {vL}\nv_bfe_u32 v46, {vL}, 1, 2\nv_lshlrev_b32 v44, 6, v44")
        e(f"v_lshl_add_u32 v44, v45, 3, v44\nv_lshl_add_u32 v44, v46, 4, v44\ns_lshl_b32 {sT4}, {sW}, 14\nv_add_u32 v32, {sT4}, v44")
        for g in range(1, 4):
            e(f"v_xor_b32 v{32+g}, {16*g}, v32")
        e(f"v_bfe_u32 v45, {vL}, 3, 2\nv_lshlrev_b32 v45, 4, v45\nv_xor_b32 v36, v45, v40")
        e(f"v_lshrrev_b32 v44, 2, {vL}\nv_and_b32 v45, 3, {vL}\nv_lshlrev_b32 v44, 10, v44\nv_lshl_add_u32 v44, v45, 4, v44")
        e(f"s_add_u32 {sT4}, {sT1}, 16384")
    else:
        e(f"v_and_b32 v44, 31, {vL}\nv_lshrrev_b32 v45, 5, {vL}\nv_lshlrev_b32 v44, 10, v44\nv_lshl_add_u32 v44, v45, 4, v44")
for k, s_ in enumerate(st):
    F[92 + k // 2].append(s_)


def p4(lo, hi):
    for i in range(lo, hi):
        z, b = i >> 1, i & 1
        mm, ksl = P4K[z >> 1]
        if b == 0:
            A.wait_vm(f"z{z}")
            if z % 4 == 0:
                assert w4s["con"] >= z + 4, (z, w4s)
                A.wait_lg(f"w4c{z+3}")
        sl = 2 * (z & 1) + b
        c = vr(ACC + 16 * sl, 16) if sl in started else "0"
        started.add(sl)
        e(f"v_mfma_f32_32x32x16_bf16 {vr(ACC+16*sl, 16)}, {ar(8*(7*mm+ksl)+4*b)}, {vr(BF+4*(z&31))}, {c}")
        if b == 1 and zs[0] < lim[0] and zs[0] - z <= OPT["zla"]:
            z_issue(1)
        for f in F[i]:
            run(f)


lim = [32]
P2_ = OPT["pol2"]
p4(0, P2_)
stamp(5)
poll(sQ3, 8, OPT["r3"], lambda: p4(P2_, P2_ + 8))
stamp(4, 5)
lim = [56]
z_issue(min(4, OPT["zla"] - (zs[0] - (P2_ + 8) // 2)))
p4(P2_ + 8, 112)
stamp(1, 5)
for i in range(1, 4):
    for g in range(4):
        e(f"ds_write_b128 v{40+i}, {vr(ACC+16*i+4*g)} offset:{RED+4096*i+1024*g}", tag="rw")
A.wait_lg0()
e("s_barrier")
for g in range(4):
    for i in range(1, 4):
        e(f"ds_read_b128 {vr(BF+16*i+4*g)}, v40 offset:{RED+4096*i+1024*g}", tag=f"rr{g}")
for g in range(4):
    A.wait_lg(f"rr{g}")
    r, a = BF + 4 * g, ACC + 4 * g
    for h in (0, 2):
        e(f"v_pk_add_f32 {vr(a+h, 2)}, {vr(a+h, 2)}, {vr(r+16+h, 2)}")
        e(f"v_pk_add_f32 {vr(r+32+h, 2)}, {vr(r+32+h, 2)}, {vr(r+48+h, 2)}")
    for h in (0, 2):
        e(f"v_pk_add_f32 {vr(a+h, 2)}, {vr(a+h, 2)}, {vr(r+32+h, 2)}")
    for d in range(2):
        e(f"v_cvt_pk_bf16_f32 v{TMP+8+2*g+d}, v{a+2*d}, v{a+2*d+1}")
    if OPT["otr"]:
        e(f"ds_write_b64 v{32+g}, {vr(TMP+8+2*g, 2)} offset:{RED}", tag="ow")
    elif g % 2 == 1:
        o = TMP + 8 + 4 * (g >> 1)
        e(f"v_permlane32_swap_b32 v{o}, v{o+2}\nv_permlane32_swap_b32 v{o+1}, v{o+3}")
        e(f"buffer_store_dwordx4 {vr(o)}, v44, {SOUT}, {sT1} offen offset:{32*(g>>1)}{fl('ost')}", tag="o")
if OPT["otr"]:
    for i2 in range(2):
        e(f"ds_read_b128 {vr(BF+4*i2)}, v36 offset:{RED+1024*i2}", tag=f"or{i2}")
    for i2 in range(2):
        A.wait_lg(f"or{i2}")
        e(f"buffer_store_dwordx4 {vr(BF+4*i2)}, v44, {SOUT}, {(sT1, sT4)[i2]} offen{fl('ost')}", tag="o")
if PROF:
    stamp(5)
    A.wait_vm0()
    stamp(1, 5)
    A.wait_lg0()
    e("s_load_dwordx2 s[36:37], s[0:1], 56")
    A.wait_lg0()
    e(f"s_mov_b32 {sT1}, {PROF_OFF}")
    srd(28, 36, add=sT1, size=1 << 20)
    e(f"s_lshl_b32 {sT1}, s2, 2\ns_add_u32 {sT1}, {sT1}, {sW}\ns_lshl_b32 {sT1}, {sT1}, 6")
    e("v_mov_b32 v2, 0")
    for i in range(nstamp[0]):
        e(f"v_mov_b32 v3, s{82+2*i}")
        e(f"buffer_store_dword v3, v2, {SWS}, {sT1} offen offset:{4*i}")
    if OPT["dbg"]:
        e(f"s_lshl_b32 {sT4}, s2, 2\ns_add_u32 {sT4}, {sT4}, {sW}\ns_cmp_lg_u32 {sT4}, {OPT['dbg']}\ns_cbranch_scc1 L_end")
        e("s_mov_b64 exec, 1")
        for i in range(nstamp[0]):
            e(f"s_sub_u32 {sT4}, s{82+2*i}, s82\nv_mov_b32 v3, {sT4}")
            e(f"buffer_store_dword v3, v2, {SDBG}, 0 offen offset:{4*i} sc1")
        e(f"v_mov_b32 v3, {sMode}\nbuffer_store_dword v3, v2, {SDBG}, 0 offen offset:40 sc1")
        e("s_mov_b64 exec, -1")
    e(f"v_mov_b32 v3, {sMode}")
    e(f"buffer_store_dword v3, v2, {SWS}, {sT1} offen offset:60")
e("L_end:")
e("s_endpgm")
A.raw("L_codeend:")
A.raw('.section .rodata,"a"\n.p2align 6\n.amdhsa_kernel standalone__mixer_s_mlp__prompt_kernel')
A.raw("""  .amdhsa_next_free_vgpr 512
  .amdhsa_next_free_sgpr 102
  .amdhsa_accum_offset 256
  .amdhsa_group_segment_fixed_size 0
  .amdhsa_kernarg_size 64
  .amdhsa_user_sgpr_count 2
  .amdhsa_user_sgpr_kernarg_segment_ptr 1
  .amdhsa_system_sgpr_workgroup_id_x 1
.end_amdhsa_kernel""")
sys.stdout.write(A.text())
sys.stderr.write(f"lines {len(A.lines)} nops {A.nnop} stamps {nstamp[0]}\n")
```

```python
import sys, math, struct
sys.path.insert(0, "tools")
from asmlib import Asm

OPT = dict(pfn=2, pubg=128, gol=0, pft=1, e4=0, dfr=0, dsl="33_33_34_34_35_35_36_36_37_32", r1=16, r2=16, r3=8, fst="none", dbg=0, pfl=56, rot3=0, pfp=0, pfw=1, pfa=34, pfd=15, hG="", hS="", hP="nx9_q", pola=30, wbn=1, wbg=1, otr=1, hA="nx6_w3x14", hB="", hC="w3x14", hD="q", hE="", hF="", wa0=22, wad=1, wg=3, wb=5, pubb=5, zla=12, pub2=20, pol2=40, w4p=0, w2a=17, w2b=25, w2d=1, pf3=1, pf4="-1", pf4a=0, pf4b=0, ld="sc1", ng0=12, p2n=7, nb1=7, na1=4, fr0=24, frd=5, tlb=0, hel=14, held=7, ny0=12, na0=10, p2s=4, p2d=2, nb0=0, w4o="la", w4s=50, w4d=3, prof=0, gst="sc1", xst="sc1", hst="sc1", ost="sc1", forceslow=0)
for a in sys.argv[1:]:
    k, v = a.split("=")
    OPT[k] = int(v) if v.lstrip("-").isdigit() else v
PROF = OPT["prof"]


def fl(name):
    v = OPT[name]
    return "" if v == "none" else " " + v.replace("_", " ")


def f32(x):
    return "0x%08x" % struct.unpack("<I", struct.pack("<f", x))[0]


G_OFF = 0
X1_OFF = 128 << 10
H3_OFF = 256 << 10
STAT_OFF = 704 << 10
FLAG_OFF = 720 << 10
HEL_OFF = 12288
PROF_OFF = 16 << 20
WS_SIZE = 1 << 20
LW1 = 0
LW2 = 98304
LST = 131072
LXR = 86016
LX1R = 114688
LMISC = 122880
LCX = 94208
LDS_TOTAL = 163840
RED = 0
sW = "s3"
SX, SW1, SW2, SW3, SW4, SOUT, SWS, SDBG = ("s[4:7]", "s[8:11]", "s[12:15]", "s[16:19]", "s[20:23]", "s[24:27]",
                                           "s[28:31]", "s[32:35]")
sG, sM, sS, sJ, sT0, sMode, sHello, sRot1 = "s52", "s53", "s54", "s55", "s56", "s57", "s58", "s59"
sRot3 = "s52"
sKW = "s56"
KF = [73, 74, 78, 79]
DH = [80, 81]
sFB = "s[60:61]"
sDB = "s[62:63]"
sStg = "s64"
sT1, sT2, sT3, sT4, sT5, sT6 = "s65", "s66", "s67", "s68", "s69", "s70"
sRep, sCnt = "s71", "s72"
sH0 = "s58"
sPar = "s75"
sW3o, sW3m = "s76", "s77"
sW4o = "s76"
vL, vL16, vRep, vW4d, vOne, vMisc = "v0", "v1", "v6", "v7", "v10", "v11"
TRB = 2
W4T = 8
W3D = 12
ONES = 20
ASEL = 24
cA, cB, cI, cM = 28, 29, 30, 31
X1P = 32
TMP = 40
ACC = 64
BF = 128
AB = 224

K1 = -2.0 * math.sqrt(2.0 / math.pi) * math.log2(math.e)
K3 = 0.044715

A = Asm()
e = A.e
nlab = [0]
nstamp = [0]


def lab(p="L"):
    nlab[0] += 1
    return f"{p}_{nlab[0]}"


def stamp(*sets):
    if not sets:
        sets = (1,)
    if PROF in sets:
        i = nstamp[0]
        assert i < 10
        e(f"s_memtime s[{82+2*i}:{83+2*i}]")
        nstamp[0] += 1


def vr(b, n=4):
    return f"v[{b}:{b+n-1}]"


def ar(b, n=4):
    return f"a[{b}:{b+n-1}]"


def srd(dst, ptr_lo, add=None, size=0x7fffffff):
    if add is None:
        e(f"s_mov_b32 s{dst}, s{ptr_lo}\ns_mov_b32 s{dst+1}, s{ptr_lo+1}")
    else:
        e(f"s_add_u32 s{dst}, s{ptr_lo}, {add}\ns_addc_u32 s{dst+1}, s{ptr_lo+1}, 0")
    e(f"s_mov_b32 s{dst+2}, {size}\ns_mov_b32 s{dst+3}, 0x20000")


def poll(soff, ndw, nrep, between=None, inloop=None):
    L, Lw, Ld = lab("Lp"), lab("Lw"), lab("Ld")

    def issue(nxt):
        Lg = lab("Lg")
        e(f"s_cmp_ge_u32 {sRep}, {nrep*64}\ns_cbranch_scc1 {Lg}")
        e(f"s_add_u32 {sT6}, {soff}, {sRep}")
        e(f"s_load_dwordx{ndw} s[36:{36+ndw-1}], {sFB}, {sT6}")
        e(f"s_add_u32 {sRep}, {sRep}, 64\ns_branch {nxt}")
        e(f"{Lg}:")
        e(f"s_load_dwordx{ndw} s[36:{36+ndw-1}], {sFB}, {soff} glc")

    e(f"s_mov_b32 {sRep}, {sMode}\ns_mov_b32 {sCnt}, 0")
    if between is not None:
        Lb = lab("Lb")
        issue(Lb)
        e(f"{Lb}:")
        between()
        e(f"s_branch {Lw}")
    e(f"{L}:")
    e(f"s_add_u32 {sCnt}, {sCnt}, 1\ns_cmp_gt_u32 {sCnt}, 30000\ns_cbranch_scc1 L_end")
    if inloop:
        inloop()
    issue(Lw)
    e(f"{Lw}:")
    A.wait_lg0()
    n = ndw
    while n > 2:
        for i in range(0, n // 2, 2):
            e(f"s_and_b64 s[{36+i}:{37+i}], s[{36+i}:{37+i}], s[{36+n//2+i}:{37+n//2+i}]")
        n //= 2
    e("s_and_b32 s36, s36, s37")
    e(f"s_cbranch_scc0 {L}")


def publish(soff, nrep):
    Ls, Ld = lab("Ls"), lab("Ld")
    e(f"s_cmp_lg_u32 {sMode}, 0\ns_cbranch_scc1 {Ls}")
    e(f"s_mov_b64 exec, {(1 << nrep) - 1}")
    e(f"buffer_store_dword {vOne}, {vRep}, {SWS}, {soff} offen{fl('fst')}", tag="flag")
    e(f"s_branch {Ld}")
    e(f"{Ls}:")
    e("s_mov_b64 exec, 1")
    e(f"buffer_store_dword {vOne}, {vRep}, {SWS}, {soff} offen sc1", tag="flag")
    A.untrack()
    e(f"{Ld}:")
    e("s_mov_b64 exec, -1")


def stat_consts(vS, vQ, t):
    e(f"v_mul_f32 v{cM}, {f32(-1.0/512)}, v{vS}")
    e(f"v_mul_f32 v{t}, v{cM}, v{cM}")
    e(f"v_mov_b32 v{t+1}, {f32(1.0/512)}")
    e(f"v_fma_f32 v{t}, v{vQ}, v{t+1}, -v{t}")
    e(f"v_max_f32 v{t}, 0, v{t}")
    e(f"v_add_f32 v{t}, {f32(1e-5)}, v{t}")
    e(f"v_rsq_f32 v{t+1}, v{t}")
    e(f"v_sqrt_f32 v{cI}, v{t}")
    e(f"v_mul_f32 v{cA}, {f32(K1)}, v{t+1}")
    e(f"v_mul_f32 v{t}, v{t+1}, v{t+1}")
    e(f"v_mul_f32 v{t}, {f32(K3)}, v{t}")
    e(f"v_mul_f32 v{cB}, v{cA}, v{t}")


def gelu4(a, T, dst):
    o = []
    for i in range(4): o.append(f"v_mul_f32_e64 v{T+i}, v{a[i]}, v{a[i]}")
    for i in range(4): o.append(f"v_fma_f32 v{T+i}, v{T+i}, v{cB}, v{cA}")
    for i in range(4): o.append(f"v_mul_f32_e64 v{T+i}, v{a[i]}, v{T+i}")
    for i in range(4): o.append(f"v_exp_f32_e64 v{T+i}, v{T+i}")
    for i in range(4): o.append(f"v_fma_f32 v{T+i}, v{T+i}, v{cI}, v{cI}")
    for i in range(4): o.append(f"v_rcp_f32_e64 v{T+i}, v{T+i}")
    for i in range(4): o.append(f"v_mul_f32_e64 v{T+i}, v{a[i]}, v{T+i}")
    o.append(f"v_cvt_pk_bf16_f32 v{dst[0]}, v{T}, v{T+1}")
    o.append(f"v_cvt_pk_bf16_f32 v{dst[1]}, v{T+2}, v{T+3}")
    return o


def gelu4pk(a, T, dst):
    o = []
    for i in (0, 2): o.append(f"v_pk_mul_f32 v[{T+i}:{T+i+1}], v[{a+i}:{a+i+1}], v[{a+i}:{a+i+1}]")
    for i in (0, 2): o.append(f"v_pk_fma_f32 v[{T+i}:{T+i+1}], v[{T+i}:{T+i+1}], v[{cA}:{cB}], v[{cA}:{cB}] op_sel:[0,1,0] op_sel_hi:[1,1,0]")
    for i in (0, 2): o.append(f"v_pk_mul_f32 v[{T+i}:{T+i+1}], v[{a+i}:{a+i+1}], v[{T+i}:{T+i+1}]")
    for i in range(4): o.append(f"v_exp_f32_e64 v{T+i}, v{T+i}")
    for i in (0, 2): o.append(f"v_pk_fma_f32 v[{T+i}:{T+i+1}], v[{T+i}:{T+i+1}], v[{cI}:{cM}], v[{cI}:{cM}] op_sel:[0,0,0] op_sel_hi:[1,0,0]")
    for i in range(4): o.append(f"v_rcp_f32_e64 v{T+i}, v{T+i}")
    for i in (0, 2): o.append(f"v_pk_mul_f32 v[{T+i}:{T+i+1}], v[{a+i}:{a+i+1}], v[{T+i}:{T+i+1}]")
    o.append(f"v_cvt_pk_bf16_f32 v{dst[0]}, v{T}, v{T+1}")
    o.append(f"v_cvt_pk_bf16_f32 v{dst[1]}, v{T+2}, v{T+3}")
    return o


KSL = [(0, 0), (0, 1), (1, 0), (1, 1), (3, 0), (2, 0), (2, 1)]
W4G = []
for mm in range(4):
    W4G += [[(mm, 0), (mm, 1)], [(mm, 2), (mm, 3)]]
for mm in (0, 2):
    W4G += [[(mm, 5), (mm, 6)], [(mm + 1, 5), (mm + 1, 6)], [(mm, 4), (mm + 1, 4)]]
P4K = [k for g in W4G for k in g]
W4V = ["v7", "v57", "v58", "v59"]
w4s = dict(iss=0, con=0, free=0)


def w4_issue(n=1):
    for _ in range(n):
        i = w4s["iss"]
        if i >= 56:
            return
        g, n4 = i >> 2, i & 3
        assert 4 * (g - 1) <= w4s["free"], ("w4 ring overrun", i, w4s)
        mm, ksl = W4G[g][n4 >> 1]
        blk, c2 = KSL[ksl]
        set_m0(sStg, 4096 * (g & 1))
        if blk == 3:
            if n4 & 1 == 0:
                e(f"s_add_u32 {sW4o}, s{KF[mm]}, s{DH[mm&1]}")
                e(f"s_lshl4_add_u32 {sW4o}, {sW4o}, {(3072 - 8192*n4) & 0xffffffff}")
        elif n4 == 0:
            e(f"s_lshl4_add_u32 {sW4o}, s{KF[mm]}, {3072 + 32768*blk}")
        e(f"buffer_load_dwordx4 {W4V[n4]}, {SW4}, {sW4o} offen offset:{1024*n4} lds", tag=f"w4_{i}")
        w4s["iss"] += 1


def w4_read(n=4, wait=True):
    n = min(n, w4s["iss"] - w4s["con"])
    if n <= 0:
        return
    A.wait_vm(f"w4_{min(w4s['iss'], (w4s['con']+n+3)//4*4)-1}")
    for _ in range(n):
        i = w4s["con"]
        mm, ksl = W4G[i >> 2][(i >> 1) & 1]
        k, rd = 7 * mm + ksl, i & 1
        for b in range(2):
            e(f"ds_read_b64_tr_b16 {ar(8*k+4*b+2*rd, 2)}, v{W4T+b} offset:{1024*(i&7)}", tag=f"w4c{i}")
        w4s["con"] += 1


def w4_release():
    if w4s["free"] < w4s["con"]:
        A.wait_lg(f"w4c{w4s['con']-1}")
        w4s["free"] = w4s["con"]


def w4_cycle():
    return [lambda: w4_read(2), lambda: w4_read(2), None, lambda: (w4_release(), w4_issue(1)), lambda: w4_issue(1),
            lambda: w4_issue(1), lambda: w4_issue(1)]


m0c = [None]


def set_m0(sreg, lit):
    if m0c[0] != (sreg, lit):
        e(f"s_add_u32 m0, {sreg}, {lit}")
        m0c[0] = (sreg, lit)


W3B = [4, 5, 6, 7]
w3s = [0]


def w3_pump(cnt=1):
    for _ in range(cnt):
        i = w3s[0]
        if i >= 28:
            return
        period, n = i // 7, i % 7
        set_m0(sW3m, period * 4 * 7168 + (4096 if n >= 4 else 0))
        e(f"buffer_load_dwordx4 v{W3D+n}, {SW3}, s{W3B[period]} offen offset:{1024*(n&3)} lds", tag="w3")
        w3s[0] += 1


def tr_bases12(lbase, rot, t=TMP):
    e(f"v_lshrrev_b32 v{t}, 4, {vL}")
    e(f"v_bfe_u32 v{t+1}, {vL}, 2, 2")
    e(f"v_and_b32 v{t+2}, 3, {vL}")
    e(f"v_lshlrev_b32 v{t+3}, 9, v{t}")
    e(f"v_lshl_add_u32 v{t+3}, v{t+1}, 7, v{t+3}")
    e(f"v_lshl_add_u32 v{t+3}, v{t+2}, 3, v{t+3}")
    if lbase:
        e(f"v_add_u32 v{t+3}, {lbase}, v{t+3}")
    e(f"v_and_b32 v{t}, 1, v{t}")
    e(f"v_lshrrev_b32 v{t+1}, 1, v{t+1}")
    e(f"v_lshl_add_u32 v{t}, v{t}, 1, v{t+1}")
    if rot:
        e(f"v_xor_b32 v{t}, {sW}, v{t}")
    for i in range(4):
        e(f"v_xor_b32 v{t+1}, {i}, v{t}")
        e(f"v_lshl_add_u32 v{TRB+i}, v{t+1}, 5, v{t+3}")


def run(f):
    if f is None:
        return
    if callable(f):
        f()
    else:
        e(f)


class Cap:
    def __enter__(self):
        global e
        self.o = []
        self.old = e
        e = lambda s_, tag=None: self.o.extend([l for l in s_.split("\n") if l.strip()])
        return self.o

    def __exit__(self, *a):
        global e
        e = self.old


A.raw(f"; @launch grid=(256,1,1) block=(256,1,1) lds={LDS_TOTAL}")
A.raw('.amdgcn_target "amdgcn-amd-amdhsa--gfx950"')
A.raw(".text\n.globl standalone__mixer_s_mlp__prompt_kernel\n.p2align 8\n.type standalone__mixer_s_mlp__prompt_kernel,@function")
A.raw("standalone__mixer_s_mlp__prompt_kernel:")
e("s_cmp_ge_u32 s2, 256\ns_cbranch_scc1 L_end")
e("s_load_dwordx16 s[36:51], s[0:1], 0")
stamp(1, 2, 3, 4)
e("s_getpc_b64 s[68:69]")
A.raw("L_pc:")
if OPT["pft"]:
    e(f"v_lshrrev_b32 v2, 6, v0\nv_and_b32 {vL}, 63, v0\ns_bfe_u32 {sT6}, s2, 0x20003\ns_lshl_b32 {sT6}, {sT6}, 13")
    e(f"v_lshlrev_b32 v46, 7, {vL}\nv_lshl_add_u32 v46, v2, 11, v46\nv_add_u32 v46, {sT6}, v46\nv_min_u32 v46, L_codeend-L_pc-4, v46")
    e("s_mov_b64 exec, 0xffff")
    e("global_load_dword v255, v46, s[68:69]", tag="pf")
    A.untrack()
    e("s_mov_b64 exec, -1")
VX, VW1, VW2 = 192, 196, 200
vXr = "v63"
XR = list(range(73, 81))
WK = [81, 60, 61, 64]
if not OPT["pft"]:
    e(f"v_lshrrev_b32 v2, 6, v0")
    e(f"v_and_b32 {vL}, 63, v0")
e(f"v_readfirstlane_b32 {sW}, v2")
e(f"s_and_b32 {sT1}, s2, 7\ns_lshr_b32 {sT2}, s2, 3")
e(f"s_lshr_b32 {sT3}, {sT2}, 4\ns_lshl_b32 {sG}, {sT1}, 1\ns_add_u32 {sG}, {sG}, {sT3}")
e(f"s_and_b32 {sM}, {sT2}, 15\ns_lshr_b32 {sS}, {sM}, 3\ns_and_b32 {sJ}, {sM}, 7")
e(f"s_lshr_b32 {sRep}, {sT2}, 3")
e(f"s_lshl_b32 {sRot1}, {sRep}, 1\ns_add_u32 {sRot1}, {sRot1}, {sJ}")
e(f"s_lshl_b32 {sT0}, {sG}, 7\ns_lshl_b32 {sT1}, {sS}, 6\ns_add_u32 {sT0}, {sT0}, {sT1}")
e(f"s_lshr_b32 {sT1}, {sJ}, 1\ns_lshr_b32 {sT2}, {sT1}, 1\ns_add_u32 {sT2}, {sT2}, 1")
e(f"s_and_b32 {sT1}, {sT1}, 1\ns_cmp_eq_u32 {sT1}, 0\ns_cselect_b32 {sT3}, -1, 1\ns_mul_i32 {sT2}, {sT2}, {sT3}")
e(f"s_lshl_b32 {sT1}, {sW}, 4\ns_add_u32 {sCnt}, {sT1}, {sT0}\ns_add_u32 {sT2}, {sT2}, {sCnt}")
e(f"v_lshrrev_b32 v40, 2, {vL}\nv_add_u32 v40, {sT2}, v40\nv_and_b32 v40, 0xfffff, v40\nv_lshlrev_b32 v40, 10, v40")
e(f"v_lshrrev_b32 v46, 5, {vL}\nv_and_b32 v41, 3, {vL}\nv_lshlrev_b32 v42, 1, v46\nv_xor_b32 v41, v41, v42\nv_lshl_add_u32 v40, v41, 4, v40")
for n in range(4):
    e(f"v_add_u32 v{VX+n}, {64*(n&1) - 1024*n + 3072}, v40")
e(f"v_bfe_u32 v47, {vL}, 3, 2\nv_bfe_u32 v48, {vL}, 1, 2\nv_and_b32 v49, 1, {vL}")
e(f"v_lshrrev_b32 v50, 1, v47\nv_add_u32 v50, v42, v50\nv_xor_b32 v50, v48, v50")
e(f"v_lshlrev_b32 v50, 5, v50\nv_lshl_add_u32 v50, v49, 4, v50\nv_lshl_add_u32 v50, v47, 10, v50")
e(f"v_lshl_add_u32 v{VW1}, v46, 13, v50\nv_lshl_add_u32 v{VW2}, v46, 12, v50")
for n in range(1, 4):
    e(f"v_add_u32 v{VW1+n}, {[0, 15, 2, 17][n]*1024}, v{VW1}")
e(f"v_lshlrev_b32 {vL16}, 4, {vL}")
e(f"s_lshl_b32 {sT1}, {sJ}, 7")
e(f"s_lshl_b32 {sMode}, {sW}, 12")
e(f"s_lshl_b32 {sT3}, {sT0}, 10\ns_add_u32 {sT3}, {sT3}, {sT1}")
e(f"s_lshl1_add_u32 {sKW}, {sRot1}, {sW}")
for pp in range(8):
    e(f"s_add_u32 s{XR[pp]}, {sRot1}, {pp}\ns_and_b32 s{XR[pp]}, s{XR[pp]}, 7\ns_lshl_b32 s{XR[pp]}, s{XR[pp]}, 7")
for c in range(4):
    e(f"s_add_u32 s{WK[c]}, {sKW}, {4*c}\ns_and_b32 s{WK[c]}, s{WK[c]}, 15\ns_lshl_b32 s{WK[c]}, s{WK[c]}, 15")
for i in range(4): e(f"v_mov_b32 v{52+i}, 0")
e(f"s_and_b32 {sT2}, {sM}, 3\ns_or_b32 {sT2}, {sT2}, {sW}")
e(f"s_lshl_b32 {sHello}, {sM}, 11\ns_add_u32 {sHello}, {sHello}, {FLAG_OFF}")
if not OPT["pft"]:
    e(f"s_and_b32 {sT6}, {sJ}, 3\ns_lshl_b32 {sT6}, {sT6}, 2\ns_add_u32 {sT6}, {sT6}, {sW}\ns_lshl_b32 {sT6}, {sT6}, 11")
    e(f"v_lshlrev_b32 v46, 7, {vL}\nv_add_u32 v46, {sT6}, v46\nv_min_u32 v46, L_codeend-L_pc-4, v46")
e(f"s_lshl_b32 {sT6}, {sG}, 20")
e(f"s_mov_b32 s6, {2048*1024 + 3072}\ns_mov_b32 s7, 0x20000")
A.wait_lg0()
stamp(2)
e(f"s_sub_u32 s4, s36, 3072\ns_subb_u32 s5, s37, 0")
srd(28, 50, add=sT6, size=WS_SIZE)
Lr = lab("Lr")
e(f"s_cmp_lg_u32 {sT2}, 0\ns_cbranch_scc1 {Lr}")
e(f"s_add_u32 s32, {sHello}, 4096")
for k in range(8):
    e(f"buffer_store_dwordx4 v[52:55], {vL16}, {SWS}, {sHello if k < 4 else 's32'} offen offset:{1024*(k&3)} sc1")
    A.untrack()
e(f"{Lr}:")


def x_issue(p):
    set_m0(sMode, LW2 + 16384 * (p >> 2))
    e(f"buffer_load_dwordx4 v{VX+(p&3)}, {SX}, s{XR[p>>1]} offen offset:{1024*(p&3)} lds", tag=f"x{p}")


def w12_issue(which, c, n):
    set_m0(sMode, (LW1 if which == 1 else LW2) + 16384 * c)
    e(f"buffer_load_dwordx4 v{(VW1 if which == 1 else VW2)+n}, {SW1 if which == 1 else SW2}, s{WK[c]} offen offset:{1024*n} lds",
      tag=f"w{which}c{c}")


x_issue(0)
x_issue(1)
srd(8, 38, add=sT1, size=512 * 1024 - 896)
for n in range(4): w12_issue(1, 0, n)
x_issue(2)
x_issue(3)
if not OPT["pft"]:
    e("s_mov_b64 exec, 0xffff")
    e("global_load_dword v255, v46, s[68:69]", tag="pf")
    e("s_mov_b64 exec, -1")
q2 = [lambda p=p: x_issue(p) for p in range(4, 8)] + [lambda n=n: w12_issue(1, 1, n) for n in range(4)]
for f in q2[:OPT["e4"]]: f()
stamp(2)
DU = []


def defer(lines):
    if OPT["dfr"]:
        DU.append("\n".join(lines))
    else:
        e("\n".join(lines))
srd(12, 40, add=sT1, size=512 * 1024 - 896)
srd(24, 46, add=sT3, size=64 * 1024 - 896)
for n in range(1, 4):
    e(f"v_add_u32 v{VW2+n}, {7*1024*n}, v{VW2}")
e(f"v_lshlrev_b32 {vRep}, 6, {vL}")
e(f"v_mov_b32 {vOne}, 1")
e(f"s_mul_i32 {sT3}, {sM}, 224")
e(f"s_sub_u32 s16, s42, 3072\ns_subb_u32 s17, s43, 0")
e(f"s_add_u32 s16, s16, {sT3}\ns_addc_u32 s17, s17, 0")
e(f"s_mov_b32 s18, {512*3584 + 3072 - 224*15}\ns_mov_b32 s19, 0x20000")
e(f"s_mul_i32 {sT3}, {sW}, {448*1024}\ns_add_u32 {sT3}, {sT3}, {sT1}")
e(f"s_sub_u32 s20, s44, 3072\ns_subb_u32 s21, s45, 0")
e(f"s_add_u32 s20, s20, {sT3}\ns_addc_u32 s21, s21, 0")
e(f"s_mov_b32 s22, {448*1024 - 896 + 3072}\ns_mov_b32 s23, 0x20000")
if OPT["tlb"]:
    e(f"s_lshl_b32 {sT3}, {sW}, 4\nv_add_u32 v46, {sT3}, {vL}\nv_mul_u32_u24 v47, 28672, v46\nv_mul_u32_u24 v48, 28672, {vL}")
    e(f"v_lshlrev_b32 v49, 13, v46\nv_lshlrev_b32 v46, 10, v46")
    e("s_mov_b64 exec, 0xffff")
    e(f"buffer_load_dword v255, v49, {SW2}, 0 offen", tag="pf")
    e(f"buffer_load_dword v255, v47, {SW3}, 0 offen offset:3072", tag="pf")
    e(f"buffer_load_dword v255, v48, {SW4}, 0 offen offset:3072", tag="pf")
    e("s_mov_b64 exec, 1")
    e(f"buffer_load_dword v255, v46, {SOUT}, 0 offen", tag="pf")
    e("s_mov_b64 exec, -1")
e(f"s_lshl_b32 {sT3}, {sG}, 4\ns_add_u32 s62, s48, {sT3}\ns_addc_u32 s63, s49, 0")
e(f"v_lshl_add_u32 v60, {vL}, 2, {sT3}\nv_cmp_gt_u32 vcc, 4, {vL}\nv_cndmask_b32 v60, -1, v60, vcc")
e(f"v_lshlrev_b32 v62, 2, {vL}\nv_add_u32 v62, {FLAG_OFF + HEL_OFF}, v62\nv_cndmask_b32 v62, -1, v62, vcc")
e(f"s_add_u32 {sT3}, {sT3}, {sM}\nv_mov_b32 v19, {sT3}")
e(f"v_lshlrev_b32 v58, 7, {vL}\nv_add_u32 v58, {sHello}, v58")
e(f"s_add_u32 s42, s28, {FLAG_OFF + HEL_OFF}\ns_addc_u32 s43, s29, 0")
e(f"s_add_u32 {sT3}, {sM}, {FLAG_OFF + HEL_OFF}\nv_mov_b32 v57, {sT3}")
e(f"s_getreg_b32 {sHello}, hwreg(HW_REG_XCC_ID)")
e(f"s_and_b32 {sHello}, {sHello}, 15\ns_or_b32 {sHello}, {sHello}, 0x80")
if OPT["forceslow"]:
    e(f"s_cmp_eq_u32 {sM}, 5\ns_cselect_b32 {sHello}, 0x89, {sHello}")
e(f"v_mov_b32 v56, {sHello}")
e(f"s_mul_i32 {sHello}, {sHello}, 0x01010101")
e(f"s_mov_b32 s40, {sW}")
e(f"s_and_b32 {sT4}, {sG}, 1\ns_lshl_b32 {sT4}, {sT4}, 2\ns_add_u32 {sRot3}, {sT4}, {sM}")
if OPT["rot3"] == 0:
    e(f"s_mov_b32 {sRot3}, 0")
e(f"s_add_u32 {sRep}, {sRep}, {sJ}")
for i in range(4): e(f"v_mov_b32 v{ONES+i}, 0x3f803f80")
e(f"v_and_b32 v46, 15, {vL}\nv_lshrrev_b32 v47, 4, {vL}\nv_bfe_u32 v48, {vL}, 3, 1\nv_lshlrev_b32 v48, 1, v48\nv_xor_b32 v47, v47, v48")
e(f"v_lshlrev_b32 v46, 6, v46\nv_lshl_add_u32 v46, v47, 4, v46\ns_add_u32 {sT4}, {sMode}, {LW2}\nv_add_u32 {vXr}, {sT4}, v46")
e(f"v_lshrrev_b32 v46, 3, {vL}\nv_and_b32 v47, 7, {vL}\nv_lshrrev_b32 v48, 4, {vL}\nv_xor_b32 v47, v47, v48")
e(f"v_add_u32 v46, {sCnt}, v46\nv_lshlrev_b32 v46, 10, v46\nv_lshl_add_u32 {vMisc}, v47, 4, v46")
e(f"s_add_u32 {sT1}, {sT1}, 3072")
with Cap() as du:
    e(f"s_lshl_b32 {sT4}, {sW}, 13\ns_add_u32 {sT4}, {sT4}, {LST}")
    e(f"v_lshrrev_b32 v46, 5, {vL}\nv_bfe_u32 v47, {vL}, 3, 2\nv_bfe_u32 v48, {vL}, 2, 1\nv_and_b32 v49, 3, {vL}")
    e(f"v_lshrrev_b32 v50, 1, v47\nv_xor_b32 v50, v48, v50\nv_lshlrev_b32 v50, 6, v50\nv_lshl_add_u32 v50, v49, 4, v50")
    e(f"v_lshl_add_u32 v47, v46, 2, v47\nv_lshl_add_u32 {vW4d}, v47, 10, v50")
    e(f"v_bfe_u32 v47, {vL}, 2, 2\nv_bfe_u32 v48, {vL}, 4, 1")
    e(f"v_lshlrev_b32 v50, 9, v46\nv_lshl_add_u32 v50, v47, 7, v50\nv_lshl_add_u32 v50, v48, 5, v50\nv_lshl_add_u32 v50, v49, 3, v50")
    e(f"v_add_u32 v50, {sT4}, v50\nv_lshrrev_b32 v47, 1, v47")
    e(f"v_lshl_add_u32 v{W4T}, v47, 6, v50\nv_xor_b32 v47, 1, v47\nv_lshl_add_u32 v{W4T+1}, v47, 6, v50")
    e(f"s_and_b32 {sT4}, {sW}, 1\ns_lshl_b32 {sT4}, {sT4}, 6\nv_xor_b32 v{W4T}, {sT4}, v{W4T}\nv_xor_b32 v{W4T+1}, {sT4}, v{W4T+1}")
defer(du)
CX = 104
with Cap() as du:
    e(f"s_lshl_b32 {sT4}, {sW}, 10\ns_add_u32 {sT4}, {sT4}, {LCX}\nv_add_u32 v{CX}, {sT4}, {vL16}")
    for i in range(1, 4):
        e(f"v_xor_b32 v{CX+i}, {1024*i}, v{CX}")
defer(du)
for g in range(448): assert (g * 1171) >> 16 == g // 56
for n in range(7):
    with Cap() as du:
        e(f"s_and_b32 {sT6}, {sM}, 1")
        e(f"s_lshl_b32 {sT4}, {sT6}, 5")
        e(f"s_cmp_eq_u32 {sT6}, 0\ns_cselect_b32 {sT5}, 192, 0")
        e(f"v_add_u32 v46, {64*n}, {vL}")
        e(f"v_mul_u32_u24 v47, 1171, v46\nv_lshrrev_b32 v47, 16, v47")
        e(f"v_mul_u32_u24 v48, 56, v47\nv_sub_u32 v46, v46, v48")
        e(f"v_lshrrev_b32 v48, 4, v46\nv_and_b32 v49, 3, v46\nv_lshlrev_b32 v48, 6, v48\nv_lshl_add_u32 v48, v49, 4, v48")
        e(f"v_add_u32 v48, {sT4}, v48\nv_bfe_u32 v49, v46, 2, 2")
        e(f"v_and_b32 v50, 1, v46\nv_lshlrev_b32 v50, 4, v50\nv_add_u32 v50, {sT5}, v50\nv_bfe_u32 v51, v46, 1, 2")
        e(f"v_cmp_lt_u32 vcc, 47, v46")
        e(f"v_cndmask_b32 v48, v48, v50, vcc\nv_cndmask_b32 v49, v49, v51, vcc")
        e(f"v_lshl_add_u32 v47, v47, 2, v49\nv_mul_u32_u24 v47, 3584, v47")
        if (n & 3) != 3:
            e(f"v_add_u32 v48, {3072 - 1024*(n&3)}, v48")
        e(f"v_add_u32 v{W3D+n}, v47, v48")
    defer(du)
NL = OPT["pfl"]
with Cap() as du:
    e(f"s_lshr_b32 {sT4}, s2, 3\ns_mul_i32 {sT5}, {sT4}, {128*NL}\ns_lshl_b32 {sT6}, {sJ}, 7\ns_sub_u32 {sT5}, {sT5}, {sT6}\ns_add_u32 {sT5}, {sT5}, 3072")
    e(f"v_lshlrev_b32 v112, 7, {vL}\nv_add_u32 v113, {sT5}, v112")
    e(f"s_lshl2_add_u32 {sT4}, {sT4}, {sW}\ns_mul_i32 {sT4}, {sT4}, {128*NL}\ns_mul_i32 {sT6}, {sM}, 224\ns_sub_u32 {sT4}, {sT4}, {sT6}\ns_add_u32 {sT4}, {sT4}, 3072")
    e(f"v_add_u32 v112, {sT4}, v112")
    e(f"v_cmp_gt_u32 vcc, {NL}, {vL}\nv_mov_b32 v114, 0x40000000\nv_cndmask_b32 v112, v114, v112, vcc\nv_cndmask_b32 v113, v114, v113, vcc")
defer(du)
pfs = [0]


def pf(dyn=False):
    k = pfs[0]
    which = 1 if (k >= 112 // NL or dyn or OPT["pf3"] == 0) else 0
    e(f"buffer_load_dword v114, v{112+which}, {SW4 if which else SW3}, 0 offen", tag="pf")
    if dyn:
        A.untrack()
        e(f"v_add_u32 v113, {4096*NL}, v113\nv_min_u32 v113, 0x40000000, v113")
    else:
        e(f"v_add_u32 v{112+which}, {4096*NL if which else 16384*NL}, v{112+which}")
        pfs[0] += 1


def hook(name):
    o = []
    for t in str(OPT[name]).split("_"):
        if t in ("", "0"):
            continue
        k, n = (t.split("x") + ["1"])[:2]
        f = {"q": pf, "w3": lambda: w3_pump(1), "w4": lambda: w4_issue(1), "n": None}[k]
        o += [f] * int(n)
    return o


srd(32, 48, size=256)
tr_bases12(LW1, True)
def go_post(wait):
    Lr = lab("Lr")
    e(f"s_cmp_lg_u32 {sT2}, 0\ns_cbranch_scc1 {Lr}")
    if wait:
        e(f"s_waitcnt vmcnt({len(A.vm)})")
    e("s_mov_b64 exec, 1")
    e(f"buffer_store_dword {vOne}, v19, {SDBG}, 0 offen sc1")
    A.untrack()
    e("s_mov_b64 exec, -1")
    e(f"{Lr}:")


if OPT["gol"] == 0:
    go_post(True)
stamp(2)
for f in q2[OPT["e4"]:]: f()
if OPT["gol"] == 1:
    go_post(True)


def reduce_q(s, q, t):
    e(f"v_permlane32_swap_b32 v{s}, v{q}")
    e(f"v_add_f32 v{s}, v{s}, v{q}")
    e(f"v_mov_b32 v{t}, v{s}")
    e(f"v_permlane16_swap_b32 v{s}, v{t}")
    e(f"v_add_f32 v{s}, v{s}, v{t}")
    e(f"v_mov_b32 v{t}, v{s}")
    e(f"v_permlane32_swap_b32 v{s}, v{t}")


def x_read(p):
    e(f"ds_read_b128 {vr(BF+4*p)}, {vXr} offset:{16384*(p>>2) + 1024*(p&3)}", tag=f"xr{p}")


gomark = [0]


def go_ld(mod):
    e(f"buffer_load_dword v59, v60, {SDBG}, 0 offen {mod}")
    A.untrack()
    gomark[0] = A.nvm


def go_load():
    L = lab("Lgo")
    e(f"s_cmp_lg_u32 s40, 0\ns_cbranch_scc1 {L}")
    go_ld("sc0")
    e(f"{L}:")


def go_check(final=False):
    L, L2, L0 = lab("Lgo"), lab("Lgp"), lab("Lgs")
    e(f"s_cmp_lg_u32 s40, 0\ns_cbranch_scc1 {L}")
    e(f"s_waitcnt vmcnt({A.nvm - gomark[0]})")
    if final:
        e(f"s_mov_b32 s41, 0")
        e(f"{L0}:")
    e("v_cmp_ne_u32 vcc, 0, v59")
    e("s_cmp_eq_u32 vcc_lo, 15")
    e(f"s_cbranch_scc1 {L2}")
    go_ld("sc1" if final else "sc0")
    if final:
        e("s_waitcnt vmcnt(0)")
        e(f"s_add_u32 s41, s41, 1\ns_cmp_gt_u32 s41, 30000\ns_cbranch_scc1 L_end")
        e(f"s_branch {L0}")
    else:
        e(f"s_branch {L}")
    e(f"{L2}:")
    e("s_mov_b64 exec, 1\ns_mov_b32 s40, 1")
    e(f"buffer_store_byte v56, v57, {SWS}, 0 offen sc1")
    A.untrack()
    e("s_mov_b64 exec, 0xffff")
    e(f"buffer_load_dword v61, v58, {SWS}, 0 offen sc1")
    A.untrack()
    e("s_mov_b64 exec, -1")
    e(f"{L}:")


def p1_pre(i):
    if i % 16 == 0:
        c = i // 16
        A.wait_vm(f"x3" if c == 0 else f"w1c{c}")
        if c == 0 and OPT["gol"] == 2:
            go_post(False)
        for p in {0: range(0, 4), 1: range(4, 8), 2: range(8, 16), 3: []}[c]:
            x_read(p)
        e("s_barrier")
        stamp(2)


SUMA, GRAM = 96, 100


def stat_mfma(p, which):
    if which:
        return f"v_mfma_f32_16x16x32_bf16 {vr(GRAM)}, {vr(BF+4*p)}, {vr(BF+4*p)}, {vr(GRAM) if p else '0'}"
    return f"v_mfma_f32_16x16x32_bf16 {vr(SUMA)}, {vr(ONES)}, {vr(BF+4*p)}, {vr(SUMA) if p else '0'}"


F = {i: [] for i in range(64)}
lq = [lambda p=p: x_issue(p) for p in range(8, 16)] + [lambda c=c, n=n: w12_issue(1, c, n) for c in (2, 3) for n in range(4)]
for i in range(16):
    F[i].append(lq[i])
F[OPT["hel"]].append(go_load)
for k in range(1, 4):
    F[min(48, OPT["hel"] + OPT["held"] * k)].append(go_check)
for p in range(8):
    F[4 * p + 1].append(stat_mfma(p, 0))
    F[4 * p + 2].append(stat_mfma(p, 1))
for k in range(16):
    F[32 + k].append(stat_mfma(8 + (k >> 1), k & 1))
F[OPT["w2b"]].append(lambda: A.wait_lg("xr15"))
for k in range(8):
    F[OPT["w2a"] + OPT["w2d"] * k].append(lambda k=k: w12_issue(2, k >> 2, k & 3))
    F[OPT["w2b"] + OPT["w2d"] * k].append(lambda k=k: w12_issue(2, 2 + (k >> 2), k & 3))
with Cap() as st:
    for r in range(4):
        mk = sum(1 << (20 * g + r) for g in range(4))
        e(f"s_mov_b32 vcc_lo, {mk & 0xffffffff}\ns_mov_b32 vcc_hi, {mk >> 32}")
        e(f"v_cndmask_b32 v41, {'0' if r == 0 else 'v41'}, v{GRAM+r}, vcc")
    e("v_mov_b32 v42, v41\nv_permlane32_swap_b32 v41, v42\nv_add_f32 v41, v41, v42")
    e("v_mov_b32 v42, v41\nv_permlane16_swap_b32 v41, v42\nv_add_f32 v41, v41, v42")
    stat_consts(SUMA, 41, 44)
    e(f"s_lshl_b32 {sT4}, {sS}, 2\ns_add_u32 {sT4}, {sT4}, {sW}\ns_lshl_b32 {sT4}, {sT4}, 14")
    e(f"s_lshl_b32 {sT3}, {sJ}, 11\ns_add_u32 {sT3}, {sT3}, {sT4}")
    e(f"s_lshr_b32 {sT2}, {sW}, 1\ns_lshl_b32 {sT2}, {sT2}, 10")
    e(f"s_add_u32 {sCnt}, {sT3}, {sT2}\ns_xor_b32 {sT2}, {sT2}, 1024\ns_add_u32 {sT2}, {sT3}, {sT2}")
for k, s_ in enumerate(st):
    F[49 + k // 3].append(s_)
F[62].append(lambda: e(f"ds_write_b128 v{CX}, {vr(ACC+16)}", tag="csw"))


def xres():
    e(f"s_lshr_b32 {sT5}, {sMode}, 1\ns_add_u32 m0, {sT5}, {LXR}")
    m0c[0] = None
    e(f"buffer_load_dwordx4 {vMisc}, {SX}, {sT1} offen lds", tag="xres")
    e(f"v_xor_b32 {vMisc}, 64, {vMisc}\ns_add_u32 {sT1}, {sT1}, {8192-1024}")
    e(f"buffer_load_dwordx4 {vMisc}, {SX}, {sT1} offen offset:1024 lds", tag="xres")


F[16].append(xres)
if DU:
    slots = [int(t) for t in str(OPT["dsl"]).split("_")]
    assert len(slots) == len(DU) and slots[-1] < OPT["pfa"] and max(slots) < 49
    for sl_, u in zip(slots, DU):
        F[sl_].append(u)
for k in list(range(OPT["pfa"], 64, OPT["pfd"]))[:OPT["pfn"]]:
    F[k].append(pf)
with Cap() as st:
    tr_bases12(LW2, False, 108)
for k, s_ in enumerate(st):
    F[55 + k // 2].append(s_)

D = 10


def rd1(i):
    ks, sl = i >> 2, i & 3
    p1_pre(i)
    b = 192 + 4 * (i & 15)
    for r in range(2):
        e(f"ds_read_b64_tr_b16 {ar(b+2*r, 2)}, v{TRB+sl} offset:{4096*ks+2048*r}", tag=f"a{i}")


for i in range(D):
    rd1(i)
for i in range(64):
    ks, sl = i >> 2, i & 3
    if i + D < 64:
        rd1(i + D)
    if i % 2 == 0:
        A.wait_lg(f"a{i+1}")
    c = vr(ACC + 4 * sl) if ks > 0 else "0"
    e(f"v_mfma_f32_16x16x32_bf16 {vr(ACC+4*sl)}, {ar(192+4*(i&15))}, {vr(BF+4*ks)}, {c}")
    if sl == 0:
        c = vr(ACC + 16) if ks > 0 else "0"
        e(f"v_mfma_f32_16x16x32_bf16 {vr(ACC+16)}, {ar(192+4*(i&15))}, {vr(ONES)}, {c}")
    for f in F[i]:
        run(f)
stamp(1, 2)
go_check(True)
A.wait_vm("w2c3")
stamp(3)
A.wait_lg0()
e("s_barrier")
for i in range(1, 4):
    e(f"ds_read_b128 {vr(ACC+16+4*i)}, v{CX+i}", tag=f"cs{i}")
e(f"buffer_load_dword v59, v62, {SWS}, 0 offen sc0", tag="hel")
A.wait_lg0()
for i in range(4):
    for h in (0, 2):
        e(f"v_pk_fma_f32 {vr(ACC+4*i+h, 2)}, {vr(ACC+16+4*i+h, 2)}, v[{cI}:{cM}], {vr(ACC+4*i+h, 2)} op_sel:[0,1,0] op_sel_hi:[1,1,1]")
hG = hook("hG")
for i in range(4):
    if hG: run(hG.pop(0))
    for s_ in gelu4pk(ACC + 4 * i, TMP + 4 * (i & 1), [TMP + 8 + 2 * i, TMP + 9 + 2 * i]):
        e(s_)
Lx = lab("Lx")
e(f"s_bitcmp0_b32 {sW}, 0\ns_cbranch_scc1 {Lx}")
for i2 in range(2):
    for d in range(2):
        e(f"v_swap_b32 v{TMP+8+4*i2+d}, v{TMP+10+4*i2+d}")
e(f"{Lx}:")
e(f"buffer_store_dwordx4 {vr(TMP+8)}, {vL16}, {SWS}, {sCnt} offen{fl('gst')}", tag="gst")
e(f"buffer_store_dwordx4 {vr(TMP+12)}, {vL16}, {SWS}, {sT2} offen{fl('gst')}", tag="gst")
stamp(2, 3)
e(f"s_mul_i32 {sW3m}, {sW}, 7168\ns_lshl_b32 {sStg}, {sW}, 13\ns_add_u32 {sStg}, {sStg}, {LST}")
e(f"s_and_b32 {sW3o}, {sW}, 1\ns_mul_i32 {sW3o}, {sW3o}, 114688\ns_lshr_b32 {sT5}, {sW}, 1\ns_add_u32 {sT5}, {sT5}, {sRot3}")
for per in range(4):
    e(f"s_add_u32 s{W3B[per]}, {sT5}, {2*per}\ns_and_b32 s{W3B[per]}, s{W3B[per]}, 7\ns_mul_i32 s{W3B[per]}, s{W3B[per]}, 229376\ns_add_u32 s{W3B[per]}, s{W3B[per]}, {sW3o}")
XA = 96


def pre_pub():
    e(f"s_add_u32 s60, s28, {FLAG_OFF}\ns_addc_u32 s61, s29, 0")
    for mm in range(4):
        e(f"s_add_u32 {sT6}, {sRep}, {mm}\ns_and_b32 {sT6}, {sT6}, 3\ns_and_b32 {sT5}, {sT6}, 1\ns_mul_i32 {sT6}, {sT6}, 7\ns_add_u32 {sT6}, {sT6}, {sT5}\ns_lshl_b32 s{KF[mm]}, {sT6}, 10")
        if mm < 2:
            e(f"s_cmp_eq_u32 {sT5}, 0\ns_cselect_b32 s{DH[mm]}, 6, -1\ns_lshl_b32 s{DH[mm]}, s{DH[mm]}, 10")
    e(f"v_and_b32 v44, 15, {vL}\nv_lshrrev_b32 v45, 5, {vL}\nv_bfe_u32 v46, {vL}, 1, 3\nv_xor_b32 v45, v45, v46\nv_bfe_u32 v46, {vL}, 4, 1")
    e(f"v_lshlrev_b32 v44, 7, v44\nv_lshl_add_u32 v44, v46, 3, v44\nv_lshl_add_u32 v44, v45, 4, v44")
    e(f"s_lshr_b32 {sT5}, {sMode}, 1\ns_add_u32 {sT5}, {sT5}, {LXR}\nv_add_u32 v{XA}, {sT5}, v44")
    for fb in range(1, 4):
        e(f"v_xor_b32 v{XA+fb}, {32*fb}, v{XA}")
    for fb in range(4):
        e(f"ds_read_b64 {vr(100+2*fb, 2)}, v{XA+fb}", tag="xrr")
    e(f"s_and_b32 {sPar}, {sM}, 1")
    e(f"s_lshl_b32 {sT1}, {sS}, 2\ns_add_u32 {sT1}, {sT1}, {sW}\ns_lshl_b32 {sT1}, {sT1}, 10")
    e(f"s_lshl_b32 {sT2}, {sJ}, 2\ns_add_u32 {sT2}, {sT2}, {sT1}\ns_add_u32 {sT2}, {sT2}, {FLAG_OFF}")


def g_pub():
    stamp(3)
    A.wait_vm("gst")
    stamp(3)
    Lh, Lh2, Lh3 = lab("Lh"), lab("Lh2"), lab("Lh3")
    e(f"v_cmp_eq_u32 vcc, {sHello}, v59")
    e(f"s_mov_b32 {sMode}, 0\ns_mov_b32 {sCnt}, 0")
    e(f"s_cmp_eq_u32 vcc_lo, 15\ns_cbranch_scc1 {Lh3}")
    e(f"{Lh}:")
    A.raw(f"s_load_dwordx4 s[36:39], s[42:43], 0 glc")
    e("s_waitcnt lgkmcnt(0)")
    e("s_and_b64 s[40:41], s[36:37], s[38:39]\ns_and_b32 s40, s40, s41\ns_and_b32 s40, s40, 0x80808080")
    e(f"s_cmp_eq_u32 s40, 0x80808080\ns_cbranch_scc1 {Lh2}")
    e(f"s_add_u32 {sCnt}, {sCnt}, 1\ns_cmp_gt_u32 {sCnt}, 30000\ns_cbranch_scc1 L_end")
    e(f"s_branch {Lh}")
    e(f"{Lh2}:")
    for i in range(4): e(f"s_xor_b32 s{36+i}, s{36+i}, {sHello}")
    e("s_or_b64 s[36:37], s[36:37], s[38:39]\ns_or_b32 s36, s36, s37")
    e(f"s_cselect_b32 {sMode}, 4096, 0")
    e(f"{Lh3}:")
    publish(sT2, OPT["r1"])


def post_pub():
    A.wait_lg("xrr")
    for fb in range(4):
        e(f"v_add_u32 v{XA+fb}, {LX1R-LXR}, v{XA+fb}")
        for d in range(2):
            e(f"v_lshlrev_b32 v{ACC+4*fb+2*d}, 16, v{100+2*fb+d}")
            e(f"v_and_b32 v{ACC+4*fb+2*d+1}, 0xffff0000, v{100+2*fb+d}")
    for pp in range(8):
        e(f"s_add_u32 s{44+pp}, {sRot1}, {pp}\ns_and_b32 s{44+pp}, s{44+pp}, 7\ns_lshl_b32 s{44+pp}, s{44+pp}, 11\ns_add_u32 s{44+pp}, s{44+pp}, {sT4}")


PG = OPT["pubg"]
if PG < 128:
    pre_pub()
hA = hook("hA")
for i in range(64):
    ks, sl = i >> 2, i & 3
    for r in range(2):
        e(f"ds_read_b64_tr_b16 {ar(4*i+2*r, 2)}, v{TRB+sl} offset:{4096*ks+2048*r}", tag="w2f")
        if 2 * i + r == PG:
            g_pub()
        if 2 * i + r == 12 and PG < 128:
            post_pub()
        k = 2 * i + r - OPT["fr0"]
        if k >= 0 and k % OPT["frd"] == 0 and hA:
            run(hA.pop(0))
for f in hA: run(f)
assert w3s[0] <= 21
if PG >= 128:
    pre_pub()
    g_pub()
    post_pub()
A.wait_lg0()
e("s_barrier")
for n in range(1, 4):
    e(f"v_add_u32 {W4V[n]}, {7168*n}, {vW4d}")
for f in hook("hB"): run(f)
GB = BF + 64
poll(sT1, 8, OPT["r1"], None, (lambda: pf(True)) if OPT["pfp"] & 1 else None)
stamp(1, 3)


def g_issue(p):
    e(f"buffer_load_dwordx4 {vr(GB+4*p)}, {vL16}, {SWS}, s{44+(p>>1)} offen offset:{1024*(p&1)}{fl('ld')}", tag=f"g{p}")


NG0 = OPT["ng0"]
for p in range(NG0):
    g_issue(p)
e(f"s_lshl_b32 {sT1}, {sS}, 1\ns_lshr_b32 {sT2}, {sW}, 1\ns_add_u32 {sT1}, {sT1}, {sT2}")
e(f"s_lshl_b32 {sT6}, {sT1}, 10")
e(f"s_lshl_b32 {sT2}, {sT1}, 15\ns_lshl_b32 {sT3}, {sJ}, 12\ns_add_u32 {sT2}, {sT2}, {sT3}")
e(f"s_and_b32 {sT3}, {sW}, 1\ns_lshl_b32 {sT4}, {sT3}, 8\ns_add_u32 {sT2}, {sT2}, {sT4}\ns_add_u32 {sT2}, {sT2}, {X1_OFF}")
e(f"s_lshl_b32 {sT1}, {sT1}, 11\ns_lshl_b32 {sT4}, {sJ}, 8\ns_add_u32 {sT1}, {sT1}, {sT4}")
e(f"s_lshl_b32 {sT4}, {sT3}, 7\ns_add_u32 {sT1}, {sT1}, {sT4}\ns_add_u32 {sT1}, {sT1}, {STAT_OFF}")
e(f"s_lshl_b32 {sT3}, {sT3}, 3\ns_add_u32 {sT3}, {sT3}, {sJ}\ns_lshl_b32 {sT3}, {sT3}, 2")
e(f"s_add_u32 {sT3}, {sT6}, {sT3}\ns_add_u32 {sT3}, {sT3}, {FLAG_OFF + 8192}")
e(f"v_and_b32 v54, 15, {vL}\nv_lshrrev_b32 v55, 4, {vL}\nv_lshlrev_b32 v56, 3, v54\nv_lshlrev_b32 v54, 4, v54\nv_lshl_add_u32 v54, v55, 10, v54")
e(f"v_lshrrev_b32 v40, 5, {vL}\nv_bfe_u32 v41, {vL}, 4, 1\nv_bfe_u32 v42, {vL}, 2, 2\nv_and_b32 v43, 3, {vL}")
e(f"v_mul_u32_u24 v44, {896*8}, v40")
e(f"v_lshl_add_u32 v45, v42, 6, v44\nv_lshl_add_u32 v45, v41, 5, v45\nv_lshl_add_u32 v{TRB}, v43, 3, v45")
e(f"v_add_u32 v{TRB+1}, {896*64}, v{TRB}")
e(f"v_mul_u32_u24 v45, 896, v41\nv_add_u32 v44, v44, v45\nv_lshl_add_u32 v44, v42, 5, v44")
e(f"v_and_b32 v45, 1, v43\nv_lshrrev_b32 v43, 1, v43\nv_lshl_add_u32 v43, v45, 1, v43\nv_lshl_add_u32 v44, v43, 3, v44")
e(f"v_add_u32 v{TRB+2}, 768, v44\nv_add_u32 v{TRB+3}, {768+896*64}, v44")
e(f"v_bfe_u32 v42, {vL}, 2, 1\nv_cmp_eq_u32 vcc, v42, v41")
e(f"v_cndmask_b32 v{ASEL}, 0, v{ONES}, vcc")
for i in range(1, 4): e(f"v_mov_b32 v{ASEL+i}, v{ASEL}")
CSA = 124
e(f"s_mul_i32 {sT4}, {sW}, {896*16}")
e(f"v_add_u32 v{CSA}, {sT4}, v{TRB}\nv_add_u32 v{CSA+1}, {sT4}, v{TRB+2}")
e(f"v_and_b32 v48, 31, {vL}\nv_lshlrev_b32 v48, 3, v48\nv_lshl_add_u32 v48, v40, 10, v48")
F = {i: [] for i in range(64)}
lq = [lambda p=p: g_issue(p) for p in range(NG0, 16)] + hook("hC")
for k, f in enumerate(lq):
    F[k * OPT["p2d"]].append(f)
for i in range(64):
    ks, sl = i >> 2, i & 3
    if sl == 0:
        A.wait_vm(f"g{ks}")
    e(f"v_mfma_f32_16x16x32_bf16 {vr(ACC+4*sl)}, {ar(4*i)}, {vr(GB+4*ks)}, {vr(ACC+4*sl)}")
    for f in F[i]:
        run(f)
stamp(1, 3)
for i in range(8):
    e(f"v_cvt_pk_bf16_f32 v{X1P+i}, v{ACC+2*i}, v{ACC+2*i+1}")
e(f"buffer_store_dwordx4 {vr(X1P)}, v54, {SWS}, {sT2} offen{fl('xst')}", tag="xst")
e(f"buffer_store_dwordx4 {vr(X1P+4)}, v54, {SWS}, {sT2} offen offset:512{fl('xst')}", tag="xst")
for i in range(8):
    e(f"v_dot2_f32_bf16 v40, v{X1P+i}, v{ONES}, {'0' if i == 0 else 'v40'}")
    e(f"v_dot2_f32_bf16 v42, v{X1P+i}, v{X1P+i}, {'0' if i == 0 else 'v42'}")
reduce_q(40, 42, 41)
e("s_mov_b64 exec, 0xffff")
e(f"buffer_store_dwordx2 v[40:41], v56, {SWS}, {sT1} offen{fl('xst')}", tag="xst")
e("s_mov_b64 exec, -1")
for f in hook("hD"): run(f)
for fb in range(4):
    e(f"ds_write_b64 v{XA+fb}, {vr(X1P+2*fb, 2)}", tag="x1r")
e(f"s_lshl_b32 {sT4}, {sW}, 11\ns_add_u32 {sT4}, {sT4}, {STAT_OFF}")
e(f"s_lshl_b32 {sT1}, {sW}, 10\ns_add_u32 {sT1}, {sT1}, 8192")
YT = list(range(8, 16))
e(f"s_lshl_b32 {sT5}, {sW}, 15\ns_add_u32 {sT5}, {sT5}, {X1_OFF}")
for bp in range(8):
    e(f"s_add_u32 s{YT[bp]}, {sRot3}, {bp}\ns_and_b32 s{YT[bp]}, s{YT[bp]}, 7\ns_lshl_b32 s{YT[bp]}, s{YT[bp]}, 12\ns_add_u32 s{YT[bp]}, s{YT[bp]}, {sT5}")
stamp(3)
A.wait_vm("xst")
stamp(3)
publish(sT3, OPT["r2"])
for f in hook("hE"): run(f)
assert w3s[0] == 28
CS = ACC + 32


def cs_items(part):
    it = []
    for q in range(4):
        for b in range(3):
            it.append((CSA, 896 * (64 * part + q) + 256 * b, b))
        if q % 2 == 0:
            it.append((CSA + 1, 896 * (64 * part + q), 3))
    return it


sHs, sHh, sP3 = sT2, "s62", "s63"
e(f"s_mul_i32 {sHh}, {sW}, 112\ns_mul_i32 {sHs}, {sM}, 7\ns_add_u32 {sHh}, {sHh}, {sHs}\ns_lshl_b32 {sHh}, {sHh}, 10\ns_add_u32 {sHh}, {sHh}, {H3_OFF}")
e(f"s_lshl_b32 {sHs}, {sPar}, 10\ns_add_u32 {sHs}, {sHs}, {sHh}")
e(f"s_cmp_eq_u32 {sPar}, 0\ns_cselect_b32 {sT5}, 6144, 0\ns_add_u32 {sHh}, {sHh}, {sT5}")
e(f"s_lshr_b32 {sP3}, {sW}, 1\ns_lshl_b32 {sP3}, {sP3}, 2\ns_lshr_b32 {sT5}, {sM}, 2\ns_add_u32 {sP3}, {sP3}, {sT5}\ns_lshl_b32 {sP3}, {sP3}, 11")
e(f"s_and_b32 {sT5}, {sM}, 3\ns_lshl_b32 {sT5}, {sT5}, 3\ns_add_u32 {sP3}, {sP3}, {sT5}")
e(f"s_and_b32 {sT5}, {sW}, 1\ns_lshl_b32 {sT5}, {sT5}, 2\ns_add_u32 {sP3}, {sP3}, {sT5}")
e(f"s_add_u32 {sP3}, {sP3}, {FLAG_OFF + 16384}")
HA = [4, 5, 6, 7]
e(f"s_mul_i32 {sH0}, {sS}, 224\ns_mul_i32 {sT5}, {sW}, 28\ns_add_u32 {sH0}, {sH0}, {sT5}")
e(f"s_lshl_b32 {sH0}, {sH0}, 10\ns_add_u32 {sH0}, {sH0}, {H3_OFF}")
for mm in range(4):
    e(f"s_add_u32 s{HA[mm]}, {sH0}, s{KF[mm]}")
vH = ["v11", "v56"]
e(f"s_lshr_b32 {sT5}, {sW}, 1\ns_mul_i32 {sT5}, {sT5}, {112*1024}\nv_add_u32 {vH[0]}, {sT5}, {vL16}")
e(f"s_sub_u32 {sT5}, {112*1024}, {sT5}\nv_add_u32 {vH[1]}, {sT5}, {vL16}")
e(f"s_lshl_b32 {sT5}, {sW}, 10\ns_add_u32 {sT5}, {sT5}, {LMISC}")
e(f"v_add_u32 v126, {sT5}, {vL16}\nv_add_u32 v127, {LMISC}, {vL16}")
sQ3 = sT3
e(f"s_lshl_b32 {sQ3}, {sS}, 2\ns_add_u32 {sQ3}, {sQ3}, {sW}\ns_lshl_b32 {sQ3}, {sQ3}, 11\ns_add_u32 {sQ3}, {sQ3}, 16384")
A.wait_vm("w3")
A.wait_lg0()
e("s_barrier")
stamp(4)
for f in hook("hF"): run(f)
w4_issue(8 - w4s["iss"])
items = cs_items(0) + cs_items(1)
D = 6
cs_seen = set()
hS = hook("hS")
for i in range(len(items) + D):
    if i < len(items):
        bs, off, b = items[i]
        for r in range(2):
            e(f"ds_read_b64_tr_b16 {ar(AB+4*(i&7)+2*r, 2)}, v{bs} offset:{off+896*4*r}", tag=f"a{i}")
    k = i - D
    if k >= 0:
        if k % 2 == 0:
            A.wait_lg(f"a{k+1}")
        bs, off, b = items[k]
        c = vr(CS + 4 * b) if b in cs_seen else "0"
        cs_seen.add(b)
        if k % 4 == 1 and hS: run(hS.pop(0))
        e(f"v_mfma_f32_16x16x32_bf16 {vr(CS+4*b)}, {vr(ASEL if b < 3 else ONES)}, {ar(AB+4*(k&7))}, {c}")
HD = ACC + 48
AP = 12
BH = 22
BP = 120
S0 = TMP


def w3_addr(ks, b, r):
    j, q = ks >> 2, ks & 3
    hi = j >= 4
    off = 896 * (16 * (j - 4 * hi) + q + 4 * r)
    if b < 3:
        return TRB + hi, off + 256 * b
    return TRB + 2 + hi, off


items = [(ks, b) for ks in range(32) for b in range(2)]
NA = 64
for p in range(17):
    if p < 16:
        items += [(2 * p, 2), (2 * p + 1, 2)]
    if p > 0:
        items += [(2 * p - 2, 3)]
nrd = [0]


def rd3(upto):
    while nrd[0] <= upto and nrd[0] < len(items):
        i = nrd[0]
        ks, b = items[i]
        for r in range(2):
            bs, off = w3_addr(ks, b, r)
            e(f"ds_read_b64_tr_b16 {ar(AB+4*(i&7)+2*r, 2)}, v{bs} offset:{off}", tag=f"a{i}")
        nrd[0] += 1


def cs_exchange():
    for b in range(4):
        e(f"v_mov_b32 v{S0+b}, v{CS+4*b}")
    e(f"ds_write_b128 v126, {vr(S0)}", tag="csw")
    A.wait_lg0()
    e("s_barrier")
    for i in range(4):
        e(f"ds_read_b128 {vr(CS+4*i)}, v127 offset:{1024*i}", tag="cs")
    rd3(5)


cs_exchange()


def cs_finish():
    A.wait_lg("cs")
    for b in range(0, 4, 2):
        e(f"v_pk_add_f32 {vr(CS+b, 2)}, {vr(CS+b, 2)}, {vr(CS+4+b, 2)}\nv_pk_add_f32 {vr(CS+8+b, 2)}, {vr(CS+8+b, 2)}, {vr(CS+12+b, 2)}")
    for b in range(0, 4, 2):
        e(f"v_pk_add_f32 {vr(CS+b, 2)}, {vr(CS+b, 2)}, {vr(CS+8+b, 2)}")
    for b in range(4):
        e(f"v_cvt_pk_bf16_f32 v{AP+2*b}, v{CS+b}, v{CS+b}")
        e(f"v_and_b32 v{S0}, 0xffff0000, v{AP+2*b}")
        e(f"v_sub_f32 v{S0}, v{CS+b}, v{S0}")
        e(f"v_cvt_pk_bf16_f32 v{AP+2*b+1}, v{S0}, v{S0}")
    e(f"v_mov_b32 v{AP+8}, 0\nv_mov_b32 v{AP+9}, 0")
    e(f"v_mov_b32 v{BH}, 0\nv_mov_b32 v{BH+2}, 0\nv_mov_b32 v{BH+3}, 0\nv_mov_b32 v{BP+2}, 0\nv_mov_b32 v{BP+3}, 0")


poll(sT1, 16, OPT["r2"], cs_finish, (lambda: pf(True)) if OPT["pfp"] & 2 else None)
stamp(1, 3, 4)


def y_issue(ks):
    e(f"buffer_load_dwordx4 {vr(BF+4*ks)}, {vL16}, {SWS}, s{YT[ks>>2]} offen offset:{1024*(ks&3)}{fl('ld')}", tag=f"y{ks}")


def st_issue(jj):
    e(f"buffer_load_dwordx2 {vr(S0+2*jj, 2)}, v48, {SWS}, {sT4} offen offset:{256*jj} sc1", tag="st")


NY0 = OPT["ny0"]
for ks in range(NY0):
    y_issue(ks)
    if ks == 3:
        for jj in range(4): st_issue(jj)
F = {i: [] for i in range(len(items))}
for k, ks in enumerate(range(NY0, 32)):
    F[2 * k].append(lambda ks=ks: y_issue(ks))
with Cap() as st:
    e(f"v_add_f32 v{S0}, v{S0}, v{S0+2}\nv_add_f32 v{S0+1}, v{S0+1}, v{S0+3}\nv_add_f32 v{S0+4}, v{S0+4}, v{S0+6}\nv_add_f32 v{S0+5}, v{S0+5}, v{S0+7}")
    e(f"v_add_f32 v{S0}, v{S0}, v{S0+4}\nv_add_f32 v{S0+1}, v{S0+1}, v{S0+5}")
    e(f"v_mov_b32 v{S0+2}, v{S0}\nv_mov_b32 v{S0+3}, v{S0+1}")
    e(f"v_permlane32_swap_b32 v{S0}, v{S0+2}\nv_permlane32_swap_b32 v{S0+1}, v{S0+3}")
    e(f"v_add_f32 v{S0}, v{S0}, v{S0+2}\nv_add_f32 v{S0+1}, v{S0+1}, v{S0+3}")
    stat_consts(S0, S0 + 1, S0 + 2)
    e(f"v_cvt_pk_bf16_f32 v{S0}, v{cM}, v{cM}\nv_and_b32 v{S0}, 0xffff0000, v{S0}\nv_sub_f32 v{S0}, v{cM}, v{S0}")
    e(f"v_cvt_pk_bf16_f32 v{S0}, v{cM}, v{S0}")
    e(f"v_cmp_gt_u32 vcc, 32, {vL}")
    e(f"v_cndmask_b32 v{BP}, 0, v{S0}, vcc")
    e(f"v_mov_b32 v{BP+1}, v{BP}\nv_mov_b32 v{BH+4}, v{BP}")
    e(f"v_permlane16_swap_b32 v{BH+4}, v{BH}")
    e(f"v_mov_b32 v{BH+5}, v{BH+4}\nv_mov_b32 v{BH+1}, v{BH}")
IS = 64 - (len(st) + 2) // 3
for k, s_ in enumerate(st):
    F[IS + k // 3].append(s_)
wq = []
for c in range(OPT["wa0"] and 2):
    wq += [lambda: w4_read(2), lambda: w4_read(2)]
for k, f in enumerate(wq):
    F[OPT["wa0"] + 2 * k + 1].append(f)
i0 = 2 * (32 - NY0)
if OPT["wa0"]:
    F[i0].append(w4_release)
    for k in range(8):
        F[i0 + k * OPT["wad"]].append(lambda: w4_issue(1))
for k, f in enumerate(hook("hP")):
    F[1 + 4 * k].append(f)
started = set()


def corr(b):
    e(f"v_mfma_f32_32x32x16_bf16 {vr(ACC+16*b, 16)}, {vr(AP+2*b)}, {vr(BP)}, {vr(ACC+16*b, 16)}")


def mf3(i):
    ks, b = items[i]
    if b < 3:
        c = vr(ACC + 16 * b, 16) if b in started else "0"
        e(f"v_mfma_f32_32x32x16_bf16 {vr(ACC+16*b, 16)}, {ar(AB+4*(i&7))}, {vr(BF+4*ks)}, {c}")
    else:
        for u in range(2):
            c = vr(HD + 4 * u) if b in started else "0"
            e(f"v_mfma_f32_16x16x32_bf16 {vr(HD+4*u)}, {ar(AB+4*(i&7))}, {vr(BF+4*ks+4*u)}, {c}")
    started.add(b)


for i in range(NA):
    ks, b = items[i]
    if b == 0:
        rd3(i + 7)
        A.wait_vm(f"y{ks}")
        A.wait_lg(f"a{i+1}")
    if i == 32:
        stamp(4)
    mf3(i)
    for f in F[i]:
        run(f)
corr(0)
corr(1)
stamp(1, 4)


def h3_store(dsts, blk):
    for c2 in range(2):
        off = 2048 * blk + 1024 * c2
        if off == 4096:
            e(f"s_add_u32 {sHs}, {sHs}, 4096")
        e(f"buffer_store_dwordx4 {vr(dsts+4*c2)}, {vL16}, {SWS}, {sHs} offen offset:{off&4095}{fl('hst')}", tag=f"h{blk}")


def epi_pk(acc, T, dsts, fill, ng=4):
    k = 0
    for g in range(ng):
        for s_ in gelu4pk(acc + 4 * g, T + 4 * (g & 1), [dsts + 2 * g, dsts + 2 * g + 1]):
            e(s_)
            k += 1
            if k % 5 == 0 and fill:
                run(fill.pop(0))


def pub3(tag):
    A.wait_vm(tag)
    publish(sP3, OPT["r3"])
    e(f"s_add_u32 {sP3}, {sP3}, 512")


fill = []
for c in range(OPT["wg"]):
    fill += [f for f in w4_cycle()] + [None] * 7
epi_pk(ACC, TMP, TMP + 8, fill)
h3_store(TMP + 8, 0)
epi_pk(ACC + 16, TMP, X1P, fill)
h3_store(X1P, 1)
for f in fill:
    run(f)
stamp(4, 5)
fill = []
for c in range(OPT["wb"]):
    fill += w4_cycle() + [None] * OPT["wbg"]
zs = [0]


def z_issue(n=1):
    for _ in range(n):
        z = zs[0]
        if z >= 56:
            return
        mm, ksl = P4K[z >> 1]
        blk, c2 = KSL[ksl]
        tb = z & 1
        so, off = f"s{HA[mm]}", 2048 * blk + 1024 * c2
        if blk == 3:
            so, off = sT5, 0
            if tb == 0:
                e(f"s_add_u32 {sT5}, s{HA[mm]}, s{DH[mm&1]}")
        elif blk == 2:
            so, off = sT5, 1024 * c2
            if tb == 0 and c2 == 0:
                e(f"s_add_u32 {sT5}, s{HA[mm]}, 4096")
        e(f"buffer_load_dwordx4 {vr(BF+4*(z&31))}, {vH[tb]}, {SWS}, {so} offen offset:{off}{fl('ld')}", tag=f"z{z}")
        zs[0] += 1


def phb(lo, hi, zz):
    for i in range(lo, hi):
        ks, b = items[i]
        rd3(i + 6)
        A.wait_lg(f"a{i}")
        mf3(i)
        if b == 2 and ks % 2 == 0 and ks > 0 or i == len(items) - 2:
            k2 = ks - 2 if i != len(items) - 2 else 30
            if i == len(items) - 2:
                corr(2)
            for d in range(4):
                e(f"v_permlane16_swap_b32 v{BF+4*k2+d}, v{BF+4*k2+4+d}")
        if i == NA + 3 * OPT["pubb"]:
            pub3("h1")
        elif i > NA + 2:
            for _ in range(OPT["wbn"]):
                if fill:
                    run(fill.pop(0))
        if zz and zs[0] < OPT["zla"]:
            z_issue(1)


PA = NA + OPT["pola"]
phb(NA, PA, 0)
poll(sQ3, 8, OPT["r3"], lambda: phb(PA, PA + 4, 0))
stamp(5)
e(f"s_add_u32 {sQ3}, {sQ3}, 512")
phb(PA + 4, len(items), 1)
e(f"v_mfma_f32_16x16x32_bf16 {vr(HD)}, {vr(AP+4)}, {vr(BH+2)}, {vr(HD)}")
e(f"v_mfma_f32_16x16x32_bf16 {vr(HD+4)}, {vr(AP+6)}, {vr(BH)}, {vr(HD+4)}")
for f in fill:
    run(f)
stamp(1, 4, 5)
sys.stderr.write(f"w4 state at P3 end {w4s}\n")
def tail1():
    e(f"v_and_b32 v60, 31, {vL}\nv_bfe_u32 v61, {vL}, 1, 3\nv_lshrrev_b32 v62, 5, {vL}")
    e(f"s_and_b32 {sT5}, {sW}, 1\ns_lshl_b32 {sT5}, {sT5}, 2\nv_xor_b32 v61, {sT5}, v61")
    e(f"s_lshr_b32 {sT5}, {sW}, 1\ns_lshl_b32 {sT5}, {sT5}, 12\ns_add_u32 {sT5}, {sT5}, {LX1R}")
    e(f"v_lshl_add_u32 v60, v60, 7, {sT5}\nv_lshl_add_u32 v60, v61, 4, v60\nv_lshl_add_u32 v60, v62, 3, v60")
    for g in range(1, 4):
        e(f"v_xor_b32 v{60+g}, {16*g}, v60")
    for g in range(4):
        e(f"ds_read_b64 {vr(ACC+16+2*g, 2)}, v{60+g}", tag="xr")
    epi_pk(ACC + 32, TMP, TMP + 8, [])
    h3_store(TMP + 8, 2)


z_issue(OPT["zla"] - zs[0])
tail1()
for d in range(4):
    e(f"v_permlane16_swap_b32 v{HD+d}, v{HD+4+d}")
epi_pk(HD, TMP, X1P, [], 2)
e(f"buffer_store_dwordx4 {vr(X1P)}, {vL16}, {SWS}, {sHh} offen{fl('hst')}", tag="h3")
A.wait_lg("xr")
for g in range(4):
    for d in range(2):
        e(f"v_lshlrev_b32 v{ACC+4*g+2*d}, 16, v{ACC+16+2*g+d}")
        e(f"v_and_b32 v{ACC+4*g+2*d+1}, 0xffff0000, v{ACC+16+2*g+d}")
stamp(1, 4, 5)
started = {0}
F = {i: [] for i in range(112)}
F[OPT["pub2"]].append(lambda: (pub3("h3"), stamp(5)))

fill = []
while len(fill) // 8 * 4 + w4s["con"] < 56:
    fill += w4_cycle() + [None]
for k, f in enumerate(fill):
    F[1 + k].append(f)
with Cap() as st:
    e("s_barrier")
    e(f"s_lshl_b32 {sT4}, {sW}, 14\nv_add_u32 v40, {sT4}, {vL16}")
    for i in range(1, 4):
        e(f"v_xor_b32 v{40+i}, {16384*i}, v40")
    e(f"s_lshr_b32 {sT1}, {sW}, 1\ns_lshl_b32 {sT1}, {sT1}, 15\ns_and_b32 {sT4}, {sW}, 1\ns_lshl_b32 {sT4}, {sT4}, 6\ns_add_u32 {sT1}, {sT1}, {sT4}")
    if OPT["otr"]:
        e(f"v_and_b32 v44, 31, {vL}\nv_lshrrev_b32 v45, 5, {vL}\nv_bfe_u32 v46, {vL}, 1, 2\nv_lshlrev_b32 v44, 6, v44")
        e(f"v_lshl_add_u32 v44, v45, 3, v44\nv_lshl_add_u32 v44, v46, 4, v44\ns_lshl_b32 {sT4}, {sW}, 14\nv_add_u32 v32, {sT4}, v44")
        for g in range(1, 4):
            e(f"v_xor_b32 v{32+g}, {16*g}, v32")
        e(f"v_bfe_u32 v45, {vL}, 3, 2\nv_lshlrev_b32 v45, 4, v45\nv_xor_b32 v36, v45, v40")
        e(f"v_lshrrev_b32 v44, 2, {vL}\nv_and_b32 v45, 3, {vL}\nv_lshlrev_b32 v44, 10, v44\nv_lshl_add_u32 v44, v45, 4, v44")
        e(f"s_add_u32 {sT4}, {sT1}, 16384")
    else:
        e(f"v_and_b32 v44, 31, {vL}\nv_lshrrev_b32 v45, 5, {vL}\nv_lshlrev_b32 v44, 10, v44\nv_lshl_add_u32 v44, v45, 4, v44")
for k, s_ in enumerate(st):
    F[92 + k // 2].append(s_)


def p4(lo, hi):
    for i in range(lo, hi):
        z, b = i >> 1, i & 1
        mm, ksl = P4K[z >> 1]
        if b == 0:
            A.wait_vm(f"z{z}")
            if z % 4 == 0:
                assert w4s["con"] >= z + 4, (z, w4s)
                A.wait_lg(f"w4c{z+3}")
        sl = 2 * (z & 1) + b
        c = vr(ACC + 16 * sl, 16) if sl in started else "0"
        started.add(sl)
        e(f"v_mfma_f32_32x32x16_bf16 {vr(ACC+16*sl, 16)}, {ar(8*(7*mm+ksl)+4*b)}, {vr(BF+4*(z&31))}, {c}")
        if b == 1 and zs[0] < lim[0] and zs[0] - z <= OPT["zla"]:
            z_issue(1)
        for f in F[i]:
            run(f)


lim = [32]
P2_ = OPT["pol2"]
p4(0, P2_)
stamp(5)
poll(sQ3, 8, OPT["r3"], lambda: p4(P2_, P2_ + 8))
stamp(4, 5)
lim = [56]
z_issue(min(4, OPT["zla"] - (zs[0] - (P2_ + 8) // 2)))
p4(P2_ + 8, 112)
stamp(1, 5)
for i in range(1, 4):
    for g in range(4):
        e(f"ds_write_b128 v{40+i}, {vr(ACC+16*i+4*g)} offset:{RED+4096*i+1024*g}", tag="rw")
A.wait_lg0()
e("s_barrier")
for g in range(4):
    for i in range(1, 4):
        e(f"ds_read_b128 {vr(BF+16*i+4*g)}, v40 offset:{RED+4096*i+1024*g}", tag=f"rr{g}")
for g in range(4):
    A.wait_lg(f"rr{g}")
    r, a = BF + 4 * g, ACC + 4 * g
    for h in (0, 2):
        e(f"v_pk_add_f32 {vr(a+h, 2)}, {vr(a+h, 2)}, {vr(r+16+h, 2)}")
        e(f"v_pk_add_f32 {vr(r+32+h, 2)}, {vr(r+32+h, 2)}, {vr(r+48+h, 2)}")
    for h in (0, 2):
        e(f"v_pk_add_f32 {vr(a+h, 2)}, {vr(a+h, 2)}, {vr(r+32+h, 2)}")
    for d in range(2):
        e(f"v_cvt_pk_bf16_f32 v{TMP+8+2*g+d}, v{a+2*d}, v{a+2*d+1}")
    if OPT["otr"]:
        e(f"ds_write_b64 v{32+g}, {vr(TMP+8+2*g, 2)} offset:{RED}", tag="ow")
    elif g % 2 == 1:
        o = TMP + 8 + 4 * (g >> 1)
        e(f"v_permlane32_swap_b32 v{o}, v{o+2}\nv_permlane32_swap_b32 v{o+1}, v{o+3}")
        e(f"buffer_store_dwordx4 {vr(o)}, v44, {SOUT}, {sT1} offen offset:{32*(g>>1)}{fl('ost')}", tag="o")
if OPT["otr"]:
    for i2 in range(2):
        e(f"ds_read_b128 {vr(BF+4*i2)}, v36 offset:{RED+1024*i2}", tag=f"or{i2}")
    for i2 in range(2):
        A.wait_lg(f"or{i2}")
        e(f"buffer_store_dwordx4 {vr(BF+4*i2)}, v44, {SOUT}, {(sT1, sT4)[i2]} offen{fl('ost')}", tag="o")
if PROF:
    stamp(5)
    A.wait_vm0()
    stamp(1, 5)
    A.wait_lg0()
    e("s_load_dwordx2 s[36:37], s[0:1], 56")
    A.wait_lg0()
    e(f"s_mov_b32 {sT1}, {PROF_OFF}")
    srd(28, 36, add=sT1, size=1 << 20)
    e(f"s_lshl_b32 {sT1}, s2, 2\ns_add_u32 {sT1}, {sT1}, {sW}\ns_lshl_b32 {sT1}, {sT1}, 6")
    e("v_mov_b32 v2, 0")
    for i in range(nstamp[0]):
        e(f"v_mov_b32 v3, s{82+2*i}")
        e(f"buffer_store_dword v3, v2, {SWS}, {sT1} offen offset:{4*i}")
    if OPT["dbg"]:
        e(f"s_lshl_b32 {sT4}, s2, 2\ns_add_u32 {sT4}, {sT4}, {sW}\ns_cmp_lg_u32 {sT4}, {OPT['dbg']}\ns_cbranch_scc1 L_end")
        e("s_mov_b64 exec, 1")
        for i in range(nstamp[0]):
            e(f"s_sub_u32 {sT4}, s{82+2*i}, s82\nv_mov_b32 v3, {sT4}")
            e(f"buffer_store_dword v3, v2, {SDBG}, 0 offen offset:{4*i} sc1")
        e(f"v_mov_b32 v3, {sMode}\nbuffer_store_dword v3, v2, {SDBG}, 0 offen offset:40 sc1")
        e("s_mov_b64 exec, -1")
    e(f"v_mov_b32 v3, {sMode}")
    e(f"buffer_store_dword v3, v2, {SWS}, {sT1} offen offset:60")
e("L_end:")
e("s_endpgm")
A.raw("L_codeend:")
A.raw('.section .rodata,"a"\n.p2align 6\n.amdhsa_kernel standalone__mixer_s_mlp__prompt_kernel')
A.raw("""  .amdhsa_next_free_vgpr 512
  .amdhsa_next_free_sgpr 102
  .amdhsa_accum_offset 256
  .amdhsa_group_segment_fixed_size 0
  .amdhsa_kernarg_size 64
  .amdhsa_user_sgpr_count 2
  .amdhsa_user_sgpr_kernarg_segment_ptr 1
  .amdhsa_system_sgpr_workgroup_id_x 1
.end_amdhsa_kernel""")
sys.stdout.write(A.text())
sys.stderr.write(f"lines {len(A.lines)} nops {A.nnop} stamps {nstamp[0]}\n")
```

```python
import sys, math, struct
sys.path.insert(0, "tools")
from asmlib import Asm

OPT = dict(pfn=1, pubg=50, polg=128, ngi=4, ngd=2, gol=0, pft=1, e4=0, dfr=0, dsl="33_33_34_34_35_35_36_36_37_32", r1=16, r2=16, r3=8, fst="none", dbg=0, pfl=56, rot3=0, pfp=0, pfw=1, pfa=34, pfd=15, hG="", hS="", hP="nx9_q", pola=30, wbn=1, wbg=1, otr=1, hA="nx6_w3x14", hB="", hC="w3x14", hD="q", hE="", hF="", wa0=22, wad=1, wg=3, wb=5, pubb=5, zla=12, pub2=20, pol2=40, w4p=0, w2a=17, w2b=25, w2d=1, pf3=1, pf4="-1", pf4a=0, pf4b=0, ld="sc1", ng0=12, p2n=7, nb1=7, na1=4, fr0=24, frd=5, tlb=0, hel=14, held=7, ny0=12, na0=10, p2s=4, p2d=2, nb0=0, w4o="la", w4s=50, w4d=3, prof=0, gst="sc1", xst="sc1", hst="sc1", ost="sc1", forceslow=0)
for a in sys.argv[1:]:
    k, v = a.split("=")
    OPT[k] = int(v) if v.lstrip("-").isdigit() else v
PROF = OPT["prof"]


def fl(name):
    v = OPT[name]
    return "" if v == "none" else " " + v.replace("_", " ")


def f32(x):
    return "0x%08x" % struct.unpack("<I", struct.pack("<f", x))[0]


G_OFF = 0
X1_OFF = 128 << 10
H3_OFF = 256 << 10
STAT_OFF = 704 << 10
FLAG_OFF = 720 << 10
HEL_OFF = 12288
PROF_OFF = 16 << 20
WS_SIZE = 1 << 20
LW1 = 0
LW2 = 98304
LST = 131072
LXR = 86016
LX1R = 114688
LMISC = 122880
LCX = 94208
LDS_TOTAL = 163840
RED = 0
sW = "s3"
SX, SW1, SW2, SW3, SW4, SOUT, SWS, SDBG = ("s[4:7]", "s[8:11]", "s[12:15]", "s[16:19]", "s[20:23]", "s[24:27]",
                                           "s[28:31]", "s[32:35]")
sG, sM, sS, sJ, sT0, sMode, sHello, sRot1 = "s52", "s53", "s54", "s55", "s56", "s57", "s58", "s59"
sRot3 = "s52"
sKW = "s56"
KF = [73, 74, 78, 79]
DH = [80, 81]
sFB = "s[60:61]"
sDB = "s[62:63]"
sStg = "s64"
sT1, sT2, sT3, sT4, sT5, sT6 = "s65", "s66", "s67", "s68", "s69", "s70"
sRep, sCnt = "s71", "s72"
sH0 = "s58"
sPar = "s75"
sW3o, sW3m = "s76", "s77"
sW4o = "s76"
vL, vL16, vRep, vW4d, vOne, vMisc = "v0", "v1", "v6", "v7", "v10", "v11"
TRB = 2
W4T = 8
W3D = 12
ONES = 20
ASEL = 24
cA, cB, cI, cM = 28, 29, 30, 31
X1P = 32
TMP = 40
ACC = 64
BF = 128
AB = 224

K1 = -2.0 * math.sqrt(2.0 / math.pi) * math.log2(math.e)
K3 = 0.044715

A = Asm()
e = A.e
nlab = [0]
nstamp = [0]


def lab(p="L"):
    nlab[0] += 1
    return f"{p}_{nlab[0]}"


def stamp(*sets):
    if not sets:
        sets = (1,)
    if PROF in sets:
        i = nstamp[0]
        assert i < 10
        e(f"s_memtime s[{82+2*i}:{83+2*i}]")
        nstamp[0] += 1


def vr(b, n=4):
    return f"v[{b}:{b+n-1}]"


def ar(b, n=4):
    return f"a[{b}:{b+n-1}]"


def srd(dst, ptr_lo, add=None, size=0x7fffffff):
    if add is None:
        e(f"s_mov_b32 s{dst}, s{ptr_lo}\ns_mov_b32 s{dst+1}, s{ptr_lo+1}")
    else:
        e(f"s_add_u32 s{dst}, s{ptr_lo}, {add}\ns_addc_u32 s{dst+1}, s{ptr_lo+1}, 0")
    e(f"s_mov_b32 s{dst+2}, {size}\ns_mov_b32 s{dst+3}, 0x20000")


def poll(soff, ndw, nrep, between=None, inloop=None):
    L, Lw, Ld = lab("Lp"), lab("Lw"), lab("Ld")

    def issue(nxt):
        Lg = lab("Lg")
        e(f"s_cmp_ge_u32 {sRep}, {nrep*64}\ns_cbranch_scc1 {Lg}")
        e(f"s_add_u32 {sT6}, {soff}, {sRep}")
        e(f"s_load_dwordx{ndw} s[36:{36+ndw-1}], {sFB}, {sT6}")
        e(f"s_add_u32 {sRep}, {sRep}, 64\ns_branch {nxt}")
        e(f"{Lg}:")
        e(f"s_load_dwordx{ndw} s[36:{36+ndw-1}], {sFB}, {soff} glc")

    e(f"s_mov_b32 {sRep}, {sMode}\ns_mov_b32 {sCnt}, 0")
    if between is not None:
        Lb = lab("Lb")
        issue(Lb)
        e(f"{Lb}:")
        between()
        e(f"s_branch {Lw}")
    e(f"{L}:")
    e(f"s_add_u32 {sCnt}, {sCnt}, 1\ns_cmp_gt_u32 {sCnt}, 30000\ns_cbranch_scc1 L_end")
    if inloop:
        inloop()
    issue(Lw)
    e(f"{Lw}:")
    A.wait_lg0()
    n = ndw
    while n > 2:
        for i in range(0, n // 2, 2):
            e(f"s_and_b64 s[{36+i}:{37+i}], s[{36+i}:{37+i}], s[{36+n//2+i}:{37+n//2+i}]")
        n //= 2
    e("s_and_b32 s36, s36, s37")
    e(f"s_cbranch_scc0 {L}")


def publish(soff, nrep):
    Ls, Ld = lab("Ls"), lab("Ld")
    e(f"s_cmp_lg_u32 {sMode}, 0\ns_cbranch_scc1 {Ls}")
    e(f"s_mov_b64 exec, {(1 << nrep) - 1}")
    e(f"buffer_store_dword {vOne}, {vRep}, {SWS}, {soff} offen{fl('fst')}", tag="flag")
    e(f"s_branch {Ld}")
    e(f"{Ls}:")
    e("s_mov_b64 exec, 1")
    e(f"buffer_store_dword {vOne}, {vRep}, {SWS}, {soff} offen sc1", tag="flag")
    A.untrack()
    e(f"{Ld}:")
    e("s_mov_b64 exec, -1")


def stat_consts(vS, vQ, t):
    e(f"v_mul_f32 v{cM}, {f32(-1.0/512)}, v{vS}")
    e(f"v_mul_f32 v{t}, v{cM}, v{cM}")
    e(f"v_mov_b32 v{t+1}, {f32(1.0/512)}")
    e(f"v_fma_f32 v{t}, v{vQ}, v{t+1}, -v{t}")
    e(f"v_max_f32 v{t}, 0, v{t}")
    e(f"v_add_f32 v{t}, {f32(1e-5)}, v{t}")
    e(f"v_rsq_f32 v{t+1}, v{t}")
    e(f"v_sqrt_f32 v{cI}, v{t}")
    e(f"v_mul_f32 v{cA}, {f32(K1)}, v{t+1}")
    e(f"v_mul_f32 v{t}, v{t+1}, v{t+1}")
    e(f"v_mul_f32 v{t}, {f32(K3)}, v{t}")
    e(f"v_mul_f32 v{cB}, v{cA}, v{t}")


def gelu4(a, T, dst):
    o = []
    for i in range(4): o.append(f"v_mul_f32_e64 v{T+i}, v{a[i]}, v{a[i]}")
    for i in range(4): o.append(f"v_fma_f32 v{T+i}, v{T+i}, v{cB}, v{cA}")
    for i in range(4): o.append(f"v_mul_f32_e64 v{T+i}, v{a[i]}, v{T+i}")
    for i in range(4): o.append(f"v_exp_f32_e64 v{T+i}, v{T+i}")
    for i in range(4): o.append(f"v_fma_f32 v{T+i}, v{T+i}, v{cI}, v{cI}")
    for i in range(4): o.append(f"v_rcp_f32_e64 v{T+i}, v{T+i}")
    for i in range(4): o.append(f"v_mul_f32_e64 v{T+i}, v{a[i]}, v{T+i}")
    o.append(f"v_cvt_pk_bf16_f32 v{dst[0]}, v{T}, v{T+1}")
    o.append(f"v_cvt_pk_bf16_f32 v{dst[1]}, v{T+2}, v{T+3}")
    return o


def gelu4pk(a, T, dst):
    o = []
    for i in (0, 2): o.append(f"v_pk_mul_f32 v[{T+i}:{T+i+1}], v[{a+i}:{a+i+1}], v[{a+i}:{a+i+1}]")
    for i in (0, 2): o.append(f"v_pk_fma_f32 v[{T+i}:{T+i+1}], v[{T+i}:{T+i+1}], v[{cA}:{cB}], v[{cA}:{cB}] op_sel:[0,1,0] op_sel_hi:[1,1,0]")
    for i in (0, 2): o.append(f"v_pk_mul_f32 v[{T+i}:{T+i+1}], v[{a+i}:{a+i+1}], v[{T+i}:{T+i+1}]")
    for i in range(4): o.append(f"v_exp_f32_e64 v{T+i}, v{T+i}")
    for i in (0, 2): o.append(f"v_pk_fma_f32 v[{T+i}:{T+i+1}], v[{T+i}:{T+i+1}], v[{cI}:{cM}], v[{cI}:{cM}] op_sel:[0,0,0] op_sel_hi:[1,0,0]")
    for i in range(4): o.append(f"v_rcp_f32_e64 v{T+i}, v{T+i}")
    for i in (0, 2): o.append(f"v_pk_mul_f32 v[{T+i}:{T+i+1}], v[{a+i}:{a+i+1}], v[{T+i}:{T+i+1}]")
    o.append(f"v_cvt_pk_bf16_f32 v{dst[0]}, v{T}, v{T+1}")
    o.append(f"v_cvt_pk_bf16_f32 v{dst[1]}, v{T+2}, v{T+3}")
    return o


KSL = [(0, 0), (0, 1), (1, 0), (1, 1), (3, 0), (2, 0), (2, 1)]
W4G = []
for mm in range(4):
    W4G += [[(mm, 0), (mm, 1)], [(mm, 2), (mm, 3)]]
for mm in (0, 2):
    W4G += [[(mm, 5), (mm, 6)], [(mm + 1, 5), (mm + 1, 6)], [(mm, 4), (mm + 1, 4)]]
P4K = [k for g in W4G for k in g]
W4V = ["v7", "v57", "v58", "v59"]
w4s = dict(iss=0, con=0, free=0)


def w4_issue(n=1):
    for _ in range(n):
        i = w4s["iss"]
        if i >= 56:
            return
        g, n4 = i >> 2, i & 3
        assert 4 * (g - 1) <= w4s["free"], ("w4 ring overrun", i, w4s)
        mm, ksl = W4G[g][n4 >> 1]
        blk, c2 = KSL[ksl]
        set_m0(sStg, 4096 * (g & 1))
        if blk == 3:
            if n4 & 1 == 0:
                e(f"s_add_u32 {sW4o}, s{KF[mm]}, s{DH[mm&1]}")
                e(f"s_lshl4_add_u32 {sW4o}, {sW4o}, {(3072 - 8192*n4) & 0xffffffff}")
        elif n4 == 0:
            e(f"s_lshl4_add_u32 {sW4o}, s{KF[mm]}, {3072 + 32768*blk}")
        e(f"buffer_load_dwordx4 {W4V[n4]}, {SW4}, {sW4o} offen offset:{1024*n4} lds", tag=f"w4_{i}")
        w4s["iss"] += 1


def w4_read(n=4, wait=True):
    n = min(n, w4s["iss"] - w4s["con"])
    if n <= 0:
        return
    A.wait_vm(f"w4_{min(w4s['iss'], (w4s['con']+n+3)//4*4)-1}")
    for _ in range(n):
        i = w4s["con"]
        mm, ksl = W4G[i >> 2][(i >> 1) & 1]
        k, rd = 7 * mm + ksl, i & 1
        for b in range(2):
            e(f"ds_read_b64_tr_b16 {ar(8*k+4*b+2*rd, 2)}, v{W4T+b} offset:{1024*(i&7)}", tag=f"w4c{i}")
        w4s["con"] += 1


def w4_release():
    if w4s["free"] < w4s["con"]:
        A.wait_lg(f"w4c{w4s['con']-1}")
        w4s["free"] = w4s["con"]


def w4_cycle():
    return [lambda: w4_read(2), lambda: w4_read(2), None, lambda: (w4_release(), w4_issue(1)), lambda: w4_issue(1),
            lambda: w4_issue(1), lambda: w4_issue(1)]


m0c = [None]


def set_m0(sreg, lit):
    if m0c[0] != (sreg, lit):
        e(f"s_add_u32 m0, {sreg}, {lit}")
        m0c[0] = (sreg, lit)


W3B = [4, 5, 6, 7]
w3s = [0]


def w3_pump(cnt=1):
    for _ in range(cnt):
        i = w3s[0]
        if i >= 28:
            return
        period, n = i // 7, i % 7
        set_m0(sW3m, period * 4 * 7168 + (4096 if n >= 4 else 0))
        e(f"buffer_load_dwordx4 v{W3D+n}, {SW3}, s{W3B[period]} offen offset:{1024*(n&3)} lds", tag="w3")
        w3s[0] += 1


def tr_bases12(lbase, rot, t=TMP):
    e(f"v_lshrrev_b32 v{t}, 4, {vL}")
    e(f"v_bfe_u32 v{t+1}, {vL}, 2, 2")
    e(f"v_and_b32 v{t+2}, 3, {vL}")
    e(f"v_lshlrev_b32 v{t+3}, 9, v{t}")
    e(f"v_lshl_add_u32 v{t+3}, v{t+1}, 7, v{t+3}")
    e(f"v_lshl_add_u32 v{t+3}, v{t+2}, 3, v{t+3}")
    if lbase:
        e(f"v_add_u32 v{t+3}, {lbase}, v{t+3}")
    e(f"v_and_b32 v{t}, 1, v{t}")
    e(f"v_lshrrev_b32 v{t+1}, 1, v{t+1}")
    e(f"v_lshl_add_u32 v{t}, v{t}, 1, v{t+1}")
    if rot:
        e(f"v_xor_b32 v{t}, {sW}, v{t}")
    for i in range(4):
        e(f"v_xor_b32 v{t+1}, {i}, v{t}")
        e(f"v_lshl_add_u32 v{TRB+i}, v{t+1}, 5, v{t+3}")


def run(f):
    if f is None:
        return
    if callable(f):
        f()
    else:
        e(f)


class Cap:
    def __enter__(self):
        global e
        self.o = []
        self.old = e
        e = lambda s_, tag=None: self.o.extend([l for l in s_.split("\n") if l.strip()])
        return self.o

    def __exit__(self, *a):
        global e
        e = self.old


A.raw(f"; @launch grid=(256,1,1) block=(256,1,1) lds={LDS_TOTAL}")
A.raw('.amdgcn_target "amdgcn-amd-amdhsa--gfx950"')
A.raw(".text\n.globl standalone__mixer_s_mlp__prompt_kernel\n.p2align 8\n.type standalone__mixer_s_mlp__prompt_kernel,@function")
A.raw("standalone__mixer_s_mlp__prompt_kernel:")
e("s_cmp_ge_u32 s2, 256\ns_cbranch_scc1 L_end")
e("s_load_dwordx16 s[36:51], s[0:1], 0")
stamp(1, 2, 3, 4)
e("s_getpc_b64 s[68:69]")
A.raw("L_pc:")
if OPT["pft"]:
    e(f"v_lshrrev_b32 v2, 6, v0\nv_and_b32 {vL}, 63, v0\ns_bfe_u32 {sT6}, s2, 0x20003\ns_lshl_b32 {sT6}, {sT6}, 13")
    e(f"v_lshlrev_b32 v46, 7, {vL}\nv_lshl_add_u32 v46, v2, 11, v46\nv_add_u32 v46, {sT6}, v46\nv_min_u32 v46, L_codeend-L_pc-4, v46")
    e("s_mov_b64 exec, 0xffff")
    e("global_load_dword v255, v46, s[68:69]", tag="pf")
    A.untrack()
    e("s_mov_b64 exec, -1")
VX, VW1, VW2 = 192, 196, 200
vXr = "v63"
XR = list(range(73, 81))
WK = [81, 60, 61, 64]
if not OPT["pft"]:
    e(f"v_lshrrev_b32 v2, 6, v0")
    e(f"v_and_b32 {vL}, 63, v0")
e(f"v_readfirstlane_b32 {sW}, v2")
e(f"s_and_b32 {sT1}, s2, 7\ns_lshr_b32 {sT2}, s2, 3")
e(f"s_lshr_b32 {sT3}, {sT2}, 4\ns_lshl_b32 {sG}, {sT1}, 1\ns_add_u32 {sG}, {sG}, {sT3}")
e(f"s_and_b32 {sM}, {sT2}, 15\ns_lshr_b32 {sS}, {sM}, 3\ns_and_b32 {sJ}, {sM}, 7")
e(f"s_lshr_b32 {sRep}, {sT2}, 3")
e(f"s_lshl_b32 {sRot1}, {sRep}, 1\ns_add_u32 {sRot1}, {sRot1}, {sJ}")
e(f"s_lshl_b32 {sT0}, {sG}, 7\ns_lshl_b32 {sT1}, {sS}, 6\ns_add_u32 {sT0}, {sT0}, {sT1}")
e(f"s_lshr_b32 {sT1}, {sJ}, 1\ns_lshr_b32 {sT2}, {sT1}, 1\ns_add_u32 {sT2}, {sT2}, 1")
e(f"s_and_b32 {sT1}, {sT1}, 1\ns_cmp_eq_u32 {sT1}, 0\ns_cselect_b32 {sT3}, -1, 1\ns_mul_i32 {sT2}, {sT2}, {sT3}")
e(f"s_lshl_b32 {sT1}, {sW}, 4\ns_add_u32 {sCnt}, {sT1}, {sT0}\ns_add_u32 {sT2}, {sT2}, {sCnt}")
e(f"v_lshrrev_b32 v40, 2, {vL}\nv_add_u32 v40, {sT2}, v40\nv_and_b32 v40, 0xfffff, v40\nv_lshlrev_b32 v40, 10, v40")
e(f"v_lshrrev_b32 v46, 5, {vL}\nv_and_b32 v41, 3, {vL}\nv_lshlrev_b32 v42, 1, v46\nv_xor_b32 v41, v41, v42\nv_lshl_add_u32 v40, v41, 4, v40")
for n in range(4):
    e(f"v_add_u32 v{VX+n}, {64*(n&1) - 1024*n + 3072}, v40")
e(f"v_bfe_u32 v47, {vL}, 3, 2\nv_bfe_u32 v48, {vL}, 1, 2\nv_and_b32 v49, 1, {vL}")
e(f"v_lshrrev_b32 v50, 1, v47\nv_add_u32 v50, v42, v50\nv_xor_b32 v50, v48, v50")
e(f"v_lshlrev_b32 v50, 5, v50\nv_lshl_add_u32 v50, v49, 4, v50\nv_lshl_add_u32 v50, v47, 10, v50")
e(f"v_lshl_add_u32 v{VW1}, v46, 13, v50\nv_lshl_add_u32 v{VW2}, v46, 12, v50")
for n in range(1, 4):
    e(f"v_add_u32 v{VW1+n}, {[0, 15, 2, 17][n]*1024}, v{VW1}")
e(f"v_lshlrev_b32 {vL16}, 4, {vL}")
e(f"s_lshl_b32 {sT1}, {sJ}, 7")
e(f"s_lshl_b32 {sMode}, {sW}, 12")
e(f"s_lshl_b32 {sT3}, {sT0}, 10\ns_add_u32 {sT3}, {sT3}, {sT1}")
e(f"s_lshl1_add_u32 {sKW}, {sRot1}, {sW}")
for pp in range(8):
    e(f"s_add_u32 s{XR[pp]}, {sRot1}, {pp}\ns_and_b32 s{XR[pp]}, s{XR[pp]}, 7\ns_lshl_b32 s{XR[pp]}, s{XR[pp]}, 7")
for c in range(4):
    e(f"s_add_u32 s{WK[c]}, {sKW}, {4*c}\ns_and_b32 s{WK[c]}, s{WK[c]}, 15\ns_lshl_b32 s{WK[c]}, s{WK[c]}, 15")
for i in range(4): e(f"v_mov_b32 v{52+i}, 0")
e(f"s_and_b32 {sT2}, {sM}, 3\ns_or_b32 {sT2}, {sT2}, {sW}")
e(f"s_lshl_b32 {sHello}, {sM}, 11\ns_add_u32 {sHello}, {sHello}, {FLAG_OFF}")
if not OPT["pft"]:
    e(f"s_and_b32 {sT6}, {sJ}, 3\ns_lshl_b32 {sT6}, {sT6}, 2\ns_add_u32 {sT6}, {sT6}, {sW}\ns_lshl_b32 {sT6}, {sT6}, 11")
    e(f"v_lshlrev_b32 v46, 7, {vL}\nv_add_u32 v46, {sT6}, v46\nv_min_u32 v46, L_codeend-L_pc-4, v46")
e(f"s_lshl_b32 {sT6}, {sG}, 20")
e(f"s_mov_b32 s6, {2048*1024 + 3072}\ns_mov_b32 s7, 0x20000")
A.wait_lg0()
stamp(2)
e(f"s_sub_u32 s4, s36, 3072\ns_subb_u32 s5, s37, 0")
srd(28, 50, add=sT6, size=WS_SIZE)
Lr = lab("Lr")
e(f"s_cmp_lg_u32 {sT2}, 0\ns_cbranch_scc1 {Lr}")
e(f"s_add_u32 s32, {sHello}, 4096")
for k in range(8):
    e(f"buffer_store_dwordx4 v[52:55], {vL16}, {SWS}, {sHello if k < 4 else 's32'} offen offset:{1024*(k&3)} sc1")
    A.untrack()
e(f"{Lr}:")


def x_issue(p):
    set_m0(sMode, LW2 + 16384 * (p >> 2))
    e(f"buffer_load_dwordx4 v{VX+(p&3)}, {SX}, s{XR[p>>1]} offen offset:{1024*(p&3)} lds", tag=f"x{p}")


def w12_issue(which, c, n):
    set_m0(sMode, (LW1 if which == 1 else LW2) + 16384 * c)
    e(f"buffer_load_dwordx4 v{(VW1 if which == 1 else VW2)+n}, {SW1 if which == 1 else SW2}, s{WK[c]} offen offset:{1024*n} lds",
      tag=f"w{which}c{c}")


x_issue(0)
x_issue(1)
srd(8, 38, add=sT1, size=512 * 1024 - 896)
for n in range(4): w12_issue(1, 0, n)
x_issue(2)
x_issue(3)
if not OPT["pft"]:
    e("s_mov_b64 exec, 0xffff")
    e("global_load_dword v255, v46, s[68:69]", tag="pf")
    e("s_mov_b64 exec, -1")
q2 = [lambda p=p: x_issue(p) for p in range(4, 8)] + [lambda n=n: w12_issue(1, 1, n) for n in range(4)]
for f in q2[:OPT["e4"]]: f()
stamp(2)
DU = []


def defer(lines):
    if OPT["dfr"]:
        DU.append("\n".join(lines))
    else:
        e("\n".join(lines))
srd(12, 40, add=sT1, size=512 * 1024 - 896)
srd(24, 46, add=sT3, size=64 * 1024 - 896)
for n in range(1, 4):
    e(f"v_add_u32 v{VW2+n}, {7*1024*n}, v{VW2}")
e(f"v_lshlrev_b32 {vRep}, 6, {vL}")
e(f"v_mov_b32 {vOne}, 1")
e(f"s_mul_i32 {sT3}, {sM}, 224")
e(f"s_sub_u32 s16, s42, 3072\ns_subb_u32 s17, s43, 0")
e(f"s_add_u32 s16, s16, {sT3}\ns_addc_u32 s17, s17, 0")
e(f"s_mov_b32 s18, {512*3584 + 3072 - 224*15}\ns_mov_b32 s19, 0x20000")
e(f"s_mul_i32 {sT3}, {sW}, {448*1024}\ns_add_u32 {sT3}, {sT3}, {sT1}")
e(f"s_sub_u32 s20, s44, 3072\ns_subb_u32 s21, s45, 0")
e(f"s_add_u32 s20, s20, {sT3}\ns_addc_u32 s21, s21, 0")
e(f"s_mov_b32 s22, {448*1024 - 896 + 3072}\ns_mov_b32 s23, 0x20000")
if OPT["tlb"]:
    e(f"s_lshl_b32 {sT3}, {sW}, 4\nv_add_u32 v46, {sT3}, {vL}\nv_mul_u32_u24 v47, 28672, v46\nv_mul_u32_u24 v48, 28672, {vL}")
    e(f"v_lshlrev_b32 v49, 13, v46\nv_lshlrev_b32 v46, 10, v46")
    e("s_mov_b64 exec, 0xffff")
    e(f"buffer_load_dword v255, v49, {SW2}, 0 offen", tag="pf")
    e(f"buffer_load_dword v255, v47, {SW3}, 0 offen offset:3072", tag="pf")
    e(f"buffer_load_dword v255, v48, {SW4}, 0 offen offset:3072", tag="pf")
    e("s_mov_b64 exec, 1")
    e(f"buffer_load_dword v255, v46, {SOUT}, 0 offen", tag="pf")
    e("s_mov_b64 exec, -1")
e(f"s_lshl_b32 {sT3}, {sG}, 4\ns_add_u32 s62, s48, {sT3}\ns_addc_u32 s63, s49, 0")
e(f"v_lshl_add_u32 v60, {vL}, 2, {sT3}\nv_cmp_gt_u32 vcc, 4, {vL}\nv_cndmask_b32 v60, -1, v60, vcc")
e(f"v_lshlrev_b32 v62, 2, {vL}\nv_add_u32 v62, {FLAG_OFF + HEL_OFF}, v62\nv_cndmask_b32 v62, -1, v62, vcc")
e(f"s_add_u32 {sT3}, {sT3}, {sM}\nv_mov_b32 v19, {sT3}")
e(f"v_lshlrev_b32 v58, 7, {vL}\nv_add_u32 v58, {sHello}, v58")
e(f"s_add_u32 s42, s28, {FLAG_OFF + HEL_OFF}\ns_addc_u32 s43, s29, 0")
e(f"s_add_u32 {sT3}, {sM}, {FLAG_OFF + HEL_OFF}\nv_mov_b32 v57, {sT3}")
e(f"s_getreg_b32 {sHello}, hwreg(HW_REG_XCC_ID)")
e(f"s_and_b32 {sHello}, {sHello}, 15\ns_or_b32 {sHello}, {sHello}, 0x80")
if OPT["forceslow"]:
    e(f"s_cmp_eq_u32 {sM}, 5\ns_cselect_b32 {sHello}, 0x89, {sHello}")
e(f"v_mov_b32 v56, {sHello}")
e(f"s_mul_i32 {sHello}, {sHello}, 0x01010101")
e(f"s_mov_b32 s40, {sW}")
e(f"s_and_b32 {sT4}, {sG}, 1\ns_lshl_b32 {sT4}, {sT4}, 2\ns_add_u32 {sRot3}, {sT4}, {sM}")
if OPT["rot3"] == 0:
    e(f"s_mov_b32 {sRot3}, 0")
e(f"s_add_u32 {sRep}, {sRep}, {sJ}")
for i in range(4): e(f"v_mov_b32 v{ONES+i}, 0x3f803f80")
e(f"v_and_b32 v46, 15, {vL}\nv_lshrrev_b32 v47, 4, {vL}\nv_bfe_u32 v48, {vL}, 3, 1\nv_lshlrev_b32 v48, 1, v48\nv_xor_b32 v47, v47, v48")
e(f"v_lshlrev_b32 v46, 6, v46\nv_lshl_add_u32 v46, v47, 4, v46\ns_add_u32 {sT4}, {sMode}, {LW2}\nv_add_u32 {vXr}, {sT4}, v46")
e(f"v_lshrrev_b32 v46, 3, {vL}\nv_and_b32 v47, 7, {vL}\nv_lshrrev_b32 v48, 4, {vL}\nv_xor_b32 v47, v47, v48")
e(f"v_add_u32 v46, {sCnt}, v46\nv_lshlrev_b32 v46, 10, v46\nv_lshl_add_u32 {vMisc}, v47, 4, v46")
e(f"s_add_u32 {sT1}, {sT1}, 3072")
with Cap() as du:
    e(f"s_lshl_b32 {sT4}, {sW}, 13\ns_add_u32 {sT4}, {sT4}, {LST}")
    e(f"v_lshrrev_b32 v46, 5, {vL}\nv_bfe_u32 v47, {vL}, 3, 2\nv_bfe_u32 v48, {vL}, 2, 1\nv_and_b32 v49, 3, {vL}")
    e(f"v_lshrrev_b32 v50, 1, v47\nv_xor_b32 v50, v48, v50\nv_lshlrev_b32 v50, 6, v50\nv_lshl_add_u32 v50, v49, 4, v50")
    e(f"v_lshl_add_u32 v47, v46, 2, v47\nv_lshl_add_u32 {vW4d}, v47, 10, v50")
    e(f"v_bfe_u32 v47, {vL}, 2, 2\nv_bfe_u32 v48, {vL}, 4, 1")
    e(f"v_lshlrev_b32 v50, 9, v46\nv_lshl_add_u32 v50, v47, 7, v50\nv_lshl_add_u32 v50, v48, 5, v50\nv_lshl_add_u32 v50, v49, 3, v50")
    e(f"v_add_u32 v50, {sT4}, v50\nv_lshrrev_b32 v47, 1, v47")
    e(f"v_lshl_add_u32 v{W4T}, v47, 6, v50\nv_xor_b32 v47, 1, v47\nv_lshl_add_u32 v{W4T+1}, v47, 6, v50")
    e(f"s_and_b32 {sT4}, {sW}, 1\ns_lshl_b32 {sT4}, {sT4}, 6\nv_xor_b32 v{W4T}, {sT4}, v{W4T}\nv_xor_b32 v{W4T+1}, {sT4}, v{W4T+1}")
defer(du)
CX = 104
with Cap() as du:
    e(f"s_lshl_b32 {sT4}, {sW}, 10\ns_add_u32 {sT4}, {sT4}, {LCX}\nv_add_u32 v{CX}, {sT4}, {vL16}")
    for i in range(1, 4):
        e(f"v_xor_b32 v{CX+i}, {1024*i}, v{CX}")
defer(du)
for g in range(448): assert (g * 1171) >> 16 == g // 56
for n in range(7):
    with Cap() as du:
        e(f"s_and_b32 {sT6}, {sM}, 1")
        e(f"s_lshl_b32 {sT4}, {sT6}, 5")
        e(f"s_cmp_eq_u32 {sT6}, 0\ns_cselect_b32 {sT5}, 192, 0")
        e(f"v_add_u32 v46, {64*n}, {vL}")
        e(f"v_mul_u32_u24 v47, 1171, v46\nv_lshrrev_b32 v47, 16, v47")
        e(f"v_mul_u32_u24 v48, 56, v47\nv_sub_u32 v46, v46, v48")
        e(f"v_lshrrev_b32 v48, 4, v46\nv_and_b32 v49, 3, v46\nv_lshlrev_b32 v48, 6, v48\nv_lshl_add_u32 v48, v49, 4, v48")
        e(f"v_add_u32 v48, {sT4}, v48\nv_bfe_u32 v49, v46, 2, 2")
        e(f"v_and_b32 v50, 1, v46\nv_lshlrev_b32 v50, 4, v50\nv_add_u32 v50, {sT5}, v50\nv_bfe_u32 v51, v46, 1, 2")
        e(f"v_cmp_lt_u32 vcc, 47, v46")
        e(f"v_cndmask_b32 v48, v48, v50, vcc\nv_cndmask_b32 v49, v49, v51, vcc")
        e(f"v_lshl_add_u32 v47, v47, 2, v49\nv_mul_u32_u24 v47, 3584, v47")
        if (n & 3) != 3:
            e(f"v_add_u32 v48, {3072 - 1024*(n&3)}, v48")
        e(f"v_add_u32 v{W3D+n}, v47, v48")
    defer(du)
NL = OPT["pfl"]
with Cap() as du:
    e(f"s_lshr_b32 {sT4}, s2, 3\ns_mul_i32 {sT5}, {sT4}, {128*NL}\ns_lshl_b32 {sT6}, {sJ}, 7\ns_sub_u32 {sT5}, {sT5}, {sT6}\ns_add_u32 {sT5}, {sT5}, 3072")
    e(f"v_lshlrev_b32 v112, 7, {vL}\nv_add_u32 v113, {sT5}, v112")
    e(f"s_lshl2_add_u32 {sT4}, {sT4}, {sW}\ns_mul_i32 {sT4}, {sT4}, {128*NL}\ns_mul_i32 {sT6}, {sM}, 224\ns_sub_u32 {sT4}, {sT4}, {sT6}\ns_add_u32 {sT4}, {sT4}, 3072")
    e(f"v_add_u32 v112, {sT4}, v112")
    e(f"v_cmp_gt_u32 vcc, {NL}, {vL}\nv_mov_b32 v114, 0x40000000\nv_cndmask_b32 v112, v114, v112, vcc\nv_cndmask_b32 v113, v114, v113, vcc")
defer(du)
pfs = [0]


def pf(dyn=False):
    k = pfs[0]
    which = 1 if (k >= 112 // NL or dyn or OPT["pf3"] == 0) else 0
    e(f"buffer_load_dword v114, v{112+which}, {SW4 if which else SW3}, 0 offen", tag="pf")
    if dyn:
        A.untrack()
        e(f"v_add_u32 v113, {4096*NL}, v113\nv_min_u32 v113, 0x40000000, v113")
    else:
        e(f"v_add_u32 v{112+which}, {4096*NL if which else 16384*NL}, v{112+which}")
        pfs[0] += 1


def hook(name):
    o = []
    for t in str(OPT[name]).split("_"):
        if t in ("", "0"):
            continue
        k, n = (t.split("x") + ["1"])[:2]
        f = {"q": pf, "w3": lambda: w3_pump(1), "w4": lambda: w4_issue(1), "n": None}[k]
        o += [f] * int(n)
    return o


srd(32, 48, size=256)
tr_bases12(LW1, True)
def go_post(wait):
    Lr = lab("Lr")
    e(f"s_cmp_lg_u32 {sT2}, 0\ns_cbranch_scc1 {Lr}")
    if wait:
        e(f"s_waitcnt vmcnt({len(A.vm)})")
    e("s_mov_b64 exec, 1")
    e(f"buffer_store_dword {vOne}, v19, {SDBG}, 0 offen sc1")
    A.untrack()
    e("s_mov_b64 exec, -1")
    e(f"{Lr}:")


if OPT["gol"] == 0:
    go_post(True)
stamp(2)
for f in q2[OPT["e4"]:]: f()
if OPT["gol"] == 1:
    go_post(True)


def reduce_q(s, q, t):
    e(f"v_permlane32_swap_b32 v{s}, v{q}")
    e(f"v_add_f32 v{s}, v{s}, v{q}")
    e(f"v_mov_b32 v{t}, v{s}")
    e(f"v_permlane16_swap_b32 v{s}, v{t}")
    e(f"v_add_f32 v{s}, v{s}, v{t}")
    e(f"v_mov_b32 v{t}, v{s}")
    e(f"v_permlane32_swap_b32 v{s}, v{t}")


def x_read(p):
    e(f"ds_read_b128 {vr(BF+4*p)}, {vXr} offset:{16384*(p>>2) + 1024*(p&3)}", tag=f"xr{p}")


gomark = [0]


def go_ld(mod):
    e(f"buffer_load_dword v59, v60, {SDBG}, 0 offen {mod}")
    A.untrack()
    gomark[0] = A.nvm


def go_load():
    L = lab("Lgo")
    e(f"s_cmp_lg_u32 s40, 0\ns_cbranch_scc1 {L}")
    go_ld("sc0")
    e(f"{L}:")


def go_check(final=False):
    L, L2, L0 = lab("Lgo"), lab("Lgp"), lab("Lgs")
    e(f"s_cmp_lg_u32 s40, 0\ns_cbranch_scc1 {L}")
    e(f"s_waitcnt vmcnt({A.nvm - gomark[0]})")
    if final:
        e(f"s_mov_b32 s41, 0")
        e(f"{L0}:")
    e("v_cmp_ne_u32 vcc, 0, v59")
    e("s_cmp_eq_u32 vcc_lo, 15")
    e(f"s_cbranch_scc1 {L2}")
    go_ld("sc1" if final else "sc0")
    if final:
        e("s_waitcnt vmcnt(0)")
        e(f"s_add_u32 s41, s41, 1\ns_cmp_gt_u32 s41, 30000\ns_cbranch_scc1 L_end")
        e(f"s_branch {L0}")
    else:
        e(f"s_branch {L}")
    e(f"{L2}:")
    e("s_mov_b64 exec, 1\ns_mov_b32 s40, 1")
    e(f"buffer_store_byte v56, v57, {SWS}, 0 offen sc1")
    A.untrack()
    e("s_mov_b64 exec, 0xffff")
    e(f"buffer_load_dword v61, v58, {SWS}, 0 offen sc1")
    A.untrack()
    e("s_mov_b64 exec, -1")
    e(f"{L}:")


def p1_pre(i):
    if i % 16 == 0:
        c = i // 16
        A.wait_vm(f"x3" if c == 0 else f"w1c{c}")
        if c == 0 and OPT["gol"] == 2:
            go_post(False)
        for p in {0: range(0, 4), 1: range(4, 8), 2: range(8, 16), 3: []}[c]:
            x_read(p)
        e("s_barrier")
        stamp(2)


SUMA, GRAM = 96, 100


def stat_mfma(p, which):
    if which:
        return f"v_mfma_f32_16x16x32_bf16 {vr(GRAM)}, {vr(BF+4*p)}, {vr(BF+4*p)}, {vr(GRAM) if p else '0'}"
    return f"v_mfma_f32_16x16x32_bf16 {vr(SUMA)}, {vr(ONES)}, {vr(BF+4*p)}, {vr(SUMA) if p else '0'}"


F = {i: [] for i in range(64)}
lq = [lambda p=p: x_issue(p) for p in range(8, 16)] + [lambda c=c, n=n: w12_issue(1, c, n) for c in (2, 3) for n in range(4)]
for i in range(16):
    F[i].append(lq[i])
F[OPT["hel"]].append(go_load)
for k in range(1, 4):
    F[min(48, OPT["hel"] + OPT["held"] * k)].append(go_check)
for p in range(8):
    F[4 * p + 1].append(stat_mfma(p, 0))
    F[4 * p + 2].append(stat_mfma(p, 1))
for k in range(16):
    F[32 + k].append(stat_mfma(8 + (k >> 1), k & 1))
F[OPT["w2b"]].append(lambda: A.wait_lg("xr15"))
for k in range(8):
    F[OPT["w2a"] + OPT["w2d"] * k].append(lambda k=k: w12_issue(2, k >> 2, k & 3))
    F[OPT["w2b"] + OPT["w2d"] * k].append(lambda k=k: w12_issue(2, 2 + (k >> 2), k & 3))
with Cap() as st:
    for r in range(4):
        mk = sum(1 << (20 * g + r) for g in range(4))
        e(f"s_mov_b32 vcc_lo, {mk & 0xffffffff}\ns_mov_b32 vcc_hi, {mk >> 32}")
        e(f"v_cndmask_b32 v41, {'0' if r == 0 else 'v41'}, v{GRAM+r}, vcc")
    e("v_mov_b32 v42, v41\nv_permlane32_swap_b32 v41, v42\nv_add_f32 v41, v41, v42")
    e("v_mov_b32 v42, v41\nv_permlane16_swap_b32 v41, v42\nv_add_f32 v41, v41, v42")
    stat_consts(SUMA, 41, 44)
    e(f"s_lshl_b32 {sT4}, {sS}, 2\ns_add_u32 {sT4}, {sT4}, {sW}\ns_lshl_b32 {sT4}, {sT4}, 14")
    e(f"s_lshl_b32 {sT3}, {sJ}, 11\ns_add_u32 {sT3}, {sT3}, {sT4}")
    e(f"s_lshr_b32 {sT2}, {sW}, 1\ns_lshl_b32 {sT2}, {sT2}, 10")
    e(f"s_add_u32 {sCnt}, {sT3}, {sT2}\ns_xor_b32 {sT2}, {sT2}, 1024\ns_add_u32 {sT2}, {sT3}, {sT2}")
for k, s_ in enumerate(st):
    F[49 + k // 3].append(s_)
F[62].append(lambda: e(f"ds_write_b128 v{CX}, {vr(ACC+16)}", tag="csw"))


def xres():
    e(f"s_lshr_b32 {sT5}, {sMode}, 1\ns_add_u32 m0, {sT5}, {LXR}")
    m0c[0] = None
    e(f"buffer_load_dwordx4 {vMisc}, {SX}, {sT1} offen lds", tag="xres")
    e(f"v_xor_b32 {vMisc}, 64, {vMisc}\ns_add_u32 {sT1}, {sT1}, {8192-1024}")
    e(f"buffer_load_dwordx4 {vMisc}, {SX}, {sT1} offen offset:1024 lds", tag="xres")


F[16].append(xres)
if DU:
    slots = [int(t) for t in str(OPT["dsl"]).split("_")]
    assert len(slots) == len(DU) and slots[-1] < OPT["pfa"] and max(slots) < 49
    for sl_, u in zip(slots, DU):
        F[sl_].append(u)
for k in list(range(OPT["pfa"], 64, OPT["pfd"]))[:OPT["pfn"]]:
    F[k].append(pf)
with Cap() as st:
    tr_bases12(LW2, False, 108)
for k, s_ in enumerate(st):
    F[55 + k // 2].append(s_)

D = 10


def rd1(i):
    ks, sl = i >> 2, i & 3
    p1_pre(i)
    b = 192 + 4 * (i & 15)
    for r in range(2):
        e(f"ds_read_b64_tr_b16 {ar(b+2*r, 2)}, v{TRB+sl} offset:{4096*ks+2048*r}", tag=f"a{i}")


for i in range(D):
    rd1(i)
for i in range(64):
    ks, sl = i >> 2, i & 3
    if i + D < 64:
        rd1(i + D)
    if i % 2 == 0:
        A.wait_lg(f"a{i+1}")
    c = vr(ACC + 4 * sl) if ks > 0 else "0"
    e(f"v_mfma_f32_16x16x32_bf16 {vr(ACC+4*sl)}, {ar(192+4*(i&15))}, {vr(BF+4*ks)}, {c}")
    if sl == 0:
        c = vr(ACC + 16) if ks > 0 else "0"
        e(f"v_mfma_f32_16x16x32_bf16 {vr(ACC+16)}, {ar(192+4*(i&15))}, {vr(ONES)}, {c}")
    for f in F[i]:
        run(f)
stamp(1, 2)
go_check(True)
A.wait_vm("w2c3")
stamp(3)
A.wait_lg0()
e("s_barrier")
for i in range(1, 4):
    e(f"ds_read_b128 {vr(ACC+16+4*i)}, v{CX+i}", tag=f"cs{i}")
e(f"buffer_load_dword v59, v62, {SWS}, 0 offen sc0", tag="hel")
A.wait_lg0()
for i in range(4):
    for h in (0, 2):
        e(f"v_pk_fma_f32 {vr(ACC+4*i+h, 2)}, {vr(ACC+16+4*i+h, 2)}, v[{cI}:{cM}], {vr(ACC+4*i+h, 2)} op_sel:[0,1,0] op_sel_hi:[1,1,1]")
hG = hook("hG")
for i in range(4):
    if hG: run(hG.pop(0))
    for s_ in gelu4pk(ACC + 4 * i, TMP + 4 * (i & 1), [TMP + 8 + 2 * i, TMP + 9 + 2 * i]):
        e(s_)
Lx = lab("Lx")
e(f"s_bitcmp0_b32 {sW}, 0\ns_cbranch_scc1 {Lx}")
for i2 in range(2):
    for d in range(2):
        e(f"v_swap_b32 v{TMP+8+4*i2+d}, v{TMP+10+4*i2+d}")
e(f"{Lx}:")
e(f"buffer_store_dwordx4 {vr(TMP+8)}, {vL16}, {SWS}, {sCnt} offen{fl('gst')}", tag="gst")
e(f"buffer_store_dwordx4 {vr(TMP+12)}, {vL16}, {SWS}, {sT2} offen{fl('gst')}", tag="gst")
stamp(2, 3)
e(f"s_mul_i32 {sW3m}, {sW}, 7168\ns_lshl_b32 {sStg}, {sW}, 13\ns_add_u32 {sStg}, {sStg}, {LST}")
e(f"s_and_b32 {sW3o}, {sW}, 1\ns_mul_i32 {sW3o}, {sW3o}, 114688\ns_lshr_b32 {sT5}, {sW}, 1\ns_add_u32 {sT5}, {sT5}, {sRot3}")
for per in range(4):
    e(f"s_add_u32 s{W3B[per]}, {sT5}, {2*per}\ns_and_b32 s{W3B[per]}, s{W3B[per]}, 7\ns_mul_i32 s{W3B[per]}, s{W3B[per]}, 229376\ns_add_u32 s{W3B[per]}, s{W3B[per]}, {sW3o}")
XA = 96


def pre_pub():
    e(f"s_add_u32 s60, s28, {FLAG_OFF}\ns_addc_u32 s61, s29, 0")
    for mm in range(4):
        e(f"s_add_u32 {sT6}, {sRep}, {mm}\ns_and_b32 {sT6}, {sT6}, 3\ns_and_b32 {sT5}, {sT6}, 1\ns_mul_i32 {sT6}, {sT6}, 7\ns_add_u32 {sT6}, {sT6}, {sT5}\ns_lshl_b32 s{KF[mm]}, {sT6}, 10")
        if mm < 2:
            e(f"s_cmp_eq_u32 {sT5}, 0\ns_cselect_b32 s{DH[mm]}, 6, -1\ns_lshl_b32 s{DH[mm]}, s{DH[mm]}, 10")
    e(f"v_and_b32 v44, 15, {vL}\nv_lshrrev_b32 v45, 5, {vL}\nv_bfe_u32 v46, {vL}, 1, 3\nv_xor_b32 v45, v45, v46\nv_bfe_u32 v46, {vL}, 4, 1")
    e(f"v_lshlrev_b32 v44, 7, v44\nv_lshl_add_u32 v44, v46, 3, v44\nv_lshl_add_u32 v44, v45, 4, v44")
    e(f"s_lshr_b32 {sT5}, {sMode}, 1\ns_add_u32 {sT5}, {sT5}, {LXR}\nv_add_u32 v{XA}, {sT5}, v44")
    for fb in range(1, 4):
        e(f"v_xor_b32 v{XA+fb}, {32*fb}, v{XA}")
    for fb in range(4):
        e(f"ds_read_b64 {vr(100+2*fb, 2)}, v{XA+fb}", tag="xrr")
    e(f"s_and_b32 {sPar}, {sM}, 1")
    e(f"s_lshl_b32 {sT1}, {sS}, 2\ns_add_u32 {sT1}, {sT1}, {sW}\ns_lshl_b32 {sT1}, {sT1}, 10")
    e(f"s_lshl_b32 {sT2}, {sJ}, 2\ns_add_u32 {sT2}, {sT2}, {sT1}\ns_add_u32 {sT2}, {sT2}, {FLAG_OFF}")


def g_pub():
    stamp(3)
    A.wait_vm("gst")
    stamp(3)
    Lh, Lh2, Lh3 = lab("Lh"), lab("Lh2"), lab("Lh3")
    e(f"v_cmp_eq_u32 vcc, {sHello}, v59")
    e(f"s_mov_b32 {sMode}, 0\ns_mov_b32 {sCnt}, 0")
    e(f"s_cmp_eq_u32 vcc_lo, 15\ns_cbranch_scc1 {Lh3}")
    e(f"{Lh}:")
    A.raw(f"s_load_dwordx4 s[36:39], s[42:43], 0 glc")
    e("s_waitcnt lgkmcnt(0)")
    e("s_and_b64 s[40:41], s[36:37], s[38:39]\ns_and_b32 s40, s40, s41\ns_and_b32 s40, s40, 0x80808080")
    e(f"s_cmp_eq_u32 s40, 0x80808080\ns_cbranch_scc1 {Lh2}")
    e(f"s_add_u32 {sCnt}, {sCnt}, 1\ns_cmp_gt_u32 {sCnt}, 30000\ns_cbranch_scc1 L_end")
    e(f"s_branch {Lh}")
    e(f"{Lh2}:")
    for i in range(4): e(f"s_xor_b32 s{36+i}, s{36+i}, {sHello}")
    e("s_or_b64 s[36:37], s[36:37], s[38:39]\ns_or_b32 s36, s36, s37")
    e(f"s_cselect_b32 {sMode}, 4096, 0")
    e(f"{Lh3}:")
    publish(sT2, OPT["r1"])


def post_pub():
    A.wait_lg("xrr")
    for fb in range(4):
        e(f"v_add_u32 v{XA+fb}, {LX1R-LXR}, v{XA+fb}")
        for d in range(2):
            e(f"v_lshlrev_b32 v{ACC+4*fb+2*d}, 16, v{100+2*fb+d}")
            e(f"v_and_b32 v{ACC+4*fb+2*d+1}, 0xffff0000, v{100+2*fb+d}")
    for pp in range(8):
        e(f"s_add_u32 s{44+pp}, {sRot1}, {pp}\ns_and_b32 s{44+pp}, s{44+pp}, 7\ns_lshl_b32 s{44+pp}, s{44+pp}, 11\ns_add_u32 s{44+pp}, s{44+pp}, {sT4}")


GB = BF + 64
NG0 = OPT["ng0"]
gq = []


def g_issue(p):
    e(f"buffer_load_dwordx4 {vr(GB+4*p)}, {vL16}, {SWS}, s{44+(p>>1)} offen offset:{1024*(p&1)}{fl('ld')}", tag=f"g{p}")


def g_poll():
    poll(sT1, 8, OPT["r1"], None, (lambda: pf(True)) if OPT["pfp"] & 1 else None)
    stamp(1, 3)
    gq.extend([lambda p=p: g_issue(p) for p in range(NG0)])
    for _ in range(OPT["ngi"]):
        gq.pop(0)()


PG = OPT["pubg"]
assert OPT["polg"] >= 128 or 12 < PG < OPT["polg"]
if PG < 128:
    pre_pub()
hA = hook("hA")
for i in range(64):
    ks, sl = i >> 2, i & 3
    for r in range(2):
        e(f"ds_read_b64_tr_b16 {ar(4*i+2*r, 2)}, v{TRB+sl} offset:{4096*ks+2048*r}", tag="w2f")
        if 2 * i + r == PG:
            g_pub()
        if 2 * i + r == 12 and PG < 128:
            post_pub()
        k = 2 * i + r - OPT["fr0"]
        if 2 * i + r == OPT["polg"]:
            g_poll()
        elif gq:
            if (2 * i + r - OPT["polg"]) % OPT["ngd"] == 0:
                gq.pop(0)()
        elif k >= 0 and k % OPT["frd"] == 0 and hA:
            run(hA.pop(0))
while gq: gq.pop(0)()
for f in hA: run(f)
assert w3s[0] <= 21
if PG >= 128:
    pre_pub()
    g_pub()
    post_pub()
A.wait_lg0()
e("s_barrier")
for n in range(1, 4):
    e(f"v_add_u32 {W4V[n]}, {7168*n}, {vW4d}")
for f in hook("hB"): run(f)
if OPT["polg"] >= 128:
    g_poll()
for f in gq: f()
e(f"s_lshl_b32 {sT1}, {sS}, 1\ns_lshr_b32 {sT2}, {sW}, 1\ns_add_u32 {sT1}, {sT1}, {sT2}")
e(f"s_lshl_b32 {sT6}, {sT1}, 10")
e(f"s_lshl_b32 {sT2}, {sT1}, 15\ns_lshl_b32 {sT3}, {sJ}, 12\ns_add_u32 {sT2}, {sT2}, {sT3}")
e(f"s_and_b32 {sT3}, {sW}, 1\ns_lshl_b32 {sT4}, {sT3}, 8\ns_add_u32 {sT2}, {sT2}, {sT4}\ns_add_u32 {sT2}, {sT2}, {X1_OFF}")
e(f"s_lshl_b32 {sT1}, {sT1}, 11\ns_lshl_b32 {sT4}, {sJ}, 8\ns_add_u32 {sT1}, {sT1}, {sT4}")
e(f"s_lshl_b32 {sT4}, {sT3}, 7\ns_add_u32 {sT1}, {sT1}, {sT4}\ns_add_u32 {sT1}, {sT1}, {STAT_OFF}")
e(f"s_lshl_b32 {sT3}, {sT3}, 3\ns_add_u32 {sT3}, {sT3}, {sJ}\ns_lshl_b32 {sT3}, {sT3}, 2")
e(f"s_add_u32 {sT3}, {sT6}, {sT3}\ns_add_u32 {sT3}, {sT3}, {FLAG_OFF + 8192}")
e(f"v_and_b32 v54, 15, {vL}\nv_lshrrev_b32 v55, 4, {vL}\nv_lshlrev_b32 v56, 3, v54\nv_lshlrev_b32 v54, 4, v54\nv_lshl_add_u32 v54, v55, 10, v54")
e(f"v_lshrrev_b32 v40, 5, {vL}\nv_bfe_u32 v41, {vL}, 4, 1\nv_bfe_u32 v42, {vL}, 2, 2\nv_and_b32 v43, 3, {vL}")
e(f"v_mul_u32_u24 v44, {896*8}, v40")
e(f"v_lshl_add_u32 v45, v42, 6, v44\nv_lshl_add_u32 v45, v41, 5, v45\nv_lshl_add_u32 v{TRB}, v43, 3, v45")
e(f"v_add_u32 v{TRB+1}, {896*64}, v{TRB}")
e(f"v_mul_u32_u24 v45, 896, v41\nv_add_u32 v44, v44, v45\nv_lshl_add_u32 v44, v42, 5, v44")
e(f"v_and_b32 v45, 1, v43\nv_lshrrev_b32 v43, 1, v43\nv_lshl_add_u32 v43, v45, 1, v43\nv_lshl_add_u32 v44, v43, 3, v44")
e(f"v_add_u32 v{TRB+2}, 768, v44\nv_add_u32 v{TRB+3}, {768+896*64}, v44")
e(f"v_bfe_u32 v42, {vL}, 2, 1\nv_cmp_eq_u32 vcc, v42, v41")
e(f"v_cndmask_b32 v{ASEL}, 0, v{ONES}, vcc")
for i in range(1, 4): e(f"v_mov_b32 v{ASEL+i}, v{ASEL}")
CSA = 124
e(f"s_mul_i32 {sT4}, {sW}, {896*16}")
e(f"v_add_u32 v{CSA}, {sT4}, v{TRB}\nv_add_u32 v{CSA+1}, {sT4}, v{TRB+2}")
e(f"v_and_b32 v48, 31, {vL}\nv_lshlrev_b32 v48, 3, v48\nv_lshl_add_u32 v48, v40, 10, v48")
F = {i: [] for i in range(64)}
lq = [lambda p=p: g_issue(p) for p in range(NG0, 16)] + hook("hC")
for k, f in enumerate(lq):
    F[k * OPT["p2d"]].append(f)
for i in range(64):
    ks, sl = i >> 2, i & 3
    if sl == 0:
        A.wait_vm(f"g{ks}")
    e(f"v_mfma_f32_16x16x32_bf16 {vr(ACC+4*sl)}, {ar(4*i)}, {vr(GB+4*ks)}, {vr(ACC+4*sl)}")
    for f in F[i]:
        run(f)
stamp(1, 3)
for i in range(8):
    e(f"v_cvt_pk_bf16_f32 v{X1P+i}, v{ACC+2*i}, v{ACC+2*i+1}")
e(f"buffer_store_dwordx4 {vr(X1P)}, v54, {SWS}, {sT2} offen{fl('xst')}", tag="xst")
e(f"buffer_store_dwordx4 {vr(X1P+4)}, v54, {SWS}, {sT2} offen offset:512{fl('xst')}", tag="xst")
for i in range(8):
    e(f"v_dot2_f32_bf16 v40, v{X1P+i}, v{ONES}, {'0' if i == 0 else 'v40'}")
    e(f"v_dot2_f32_bf16 v42, v{X1P+i}, v{X1P+i}, {'0' if i == 0 else 'v42'}")
reduce_q(40, 42, 41)
e("s_mov_b64 exec, 0xffff")
e(f"buffer_store_dwordx2 v[40:41], v56, {SWS}, {sT1} offen{fl('xst')}", tag="xst")
e("s_mov_b64 exec, -1")
for f in hook("hD"): run(f)
for fb in range(4):
    e(f"ds_write_b64 v{XA+fb}, {vr(X1P+2*fb, 2)}", tag="x1r")
e(f"s_lshl_b32 {sT4}, {sW}, 11\ns_add_u32 {sT4}, {sT4}, {STAT_OFF}")
e(f"s_lshl_b32 {sT1}, {sW}, 10\ns_add_u32 {sT1}, {sT1}, 8192")
YT = list(range(8, 16))
e(f"s_lshl_b32 {sT5}, {sW}, 15\ns_add_u32 {sT5}, {sT5}, {X1_OFF}")
for bp in range(8):
    e(f"s_add_u32 s{YT[bp]}, {sRot3}, {bp}\ns_and_b32 s{YT[bp]}, s{YT[bp]}, 7\ns_lshl_b32 s{YT[bp]}, s{YT[bp]}, 12\ns_add_u32 s{YT[bp]}, s{YT[bp]}, {sT5}")
stamp(3)
A.wait_vm("xst")
stamp(3)
publish(sT3, OPT["r2"])
for f in hook("hE"): run(f)
assert w3s[0] == 28
CS = ACC + 32


def cs_items(part):
    it = []
    for q in range(4):
        for b in range(3):
            it.append((CSA, 896 * (64 * part + q) + 256 * b, b))
        if q % 2 == 0:
            it.append((CSA + 1, 896 * (64 * part + q), 3))
    return it


sHs, sHh, sP3 = sT2, "s62", "s63"
e(f"s_mul_i32 {sHh}, {sW}, 112\ns_mul_i32 {sHs}, {sM}, 7\ns_add_u32 {sHh}, {sHh}, {sHs}\ns_lshl_b32 {sHh}, {sHh}, 10\ns_add_u32 {sHh}, {sHh}, {H3_OFF}")
e(f"s_lshl_b32 {sHs}, {sPar}, 10\ns_add_u32 {sHs}, {sHs}, {sHh}")
e(f"s_cmp_eq_u32 {sPar}, 0\ns_cselect_b32 {sT5}, 6144, 0\ns_add_u32 {sHh}, {sHh}, {sT5}")
e(f"s_lshr_b32 {sP3}, {sW}, 1\ns_lshl_b32 {sP3}, {sP3}, 2\ns_lshr_b32 {sT5}, {sM}, 2\ns_add_u32 {sP3}, {sP3}, {sT5}\ns_lshl_b32 {sP3}, {sP3}, 11")
e(f"s_and_b32 {sT5}, {sM}, 3\ns_lshl_b32 {sT5}, {sT5}, 3\ns_add_u32 {sP3}, {sP3}, {sT5}")
e(f"s_and_b32 {sT5}, {sW}, 1\ns_lshl_b32 {sT5}, {sT5}, 2\ns_add_u32 {sP3}, {sP3}, {sT5}")
e(f"s_add_u32 {sP3}, {sP3}, {FLAG_OFF + 16384}")
HA = [4, 5, 6, 7]
e(f"s_mul_i32 {sH0}, {sS}, 224\ns_mul_i32 {sT5}, {sW}, 28\ns_add_u32 {sH0}, {sH0}, {sT5}")
e(f"s_lshl_b32 {sH0}, {sH0}, 10\ns_add_u32 {sH0}, {sH0}, {H3_OFF}")
for mm in range(4):
    e(f"s_add_u32 s{HA[mm]}, {sH0}, s{KF[mm]}")
vH = ["v11", "v56"]
e(f"s_lshr_b32 {sT5}, {sW}, 1\ns_mul_i32 {sT5}, {sT5}, {112*1024}\nv_add_u32 {vH[0]}, {sT5}, {vL16}")
e(f"s_sub_u32 {sT5}, {112*1024}, {sT5}\nv_add_u32 {vH[1]}, {sT5}, {vL16}")
e(f"s_lshl_b32 {sT5}, {sW}, 10\ns_add_u32 {sT5}, {sT5}, {LMISC}")
e(f"v_add_u32 v126, {sT5}, {vL16}\nv_add_u32 v127, {LMISC}, {vL16}")
sQ3 = sT3
e(f"s_lshl_b32 {sQ3}, {sS}, 2\ns_add_u32 {sQ3}, {sQ3}, {sW}\ns_lshl_b32 {sQ3}, {sQ3}, 11\ns_add_u32 {sQ3}, {sQ3}, 16384")
A.wait_vm("w3")
A.wait_lg0()
e("s_barrier")
stamp(4)
for f in hook("hF"): run(f)
w4_issue(8 - w4s["iss"])
items = cs_items(0) + cs_items(1)
D = 6
cs_seen = set()
hS = hook("hS")
for i in range(len(items) + D):
    if i < len(items):
        bs, off, b = items[i]
        for r in range(2):
            e(f"ds_read_b64_tr_b16 {ar(AB+4*(i&7)+2*r, 2)}, v{bs} offset:{off+896*4*r}", tag=f"a{i}")
    k = i - D
    if k >= 0:
        if k % 2 == 0:
            A.wait_lg(f"a{k+1}")
        bs, off, b = items[k]
        c = vr(CS + 4 * b) if b in cs_seen else "0"
        cs_seen.add(b)
        if k % 4 == 1 and hS: run(hS.pop(0))
        e(f"v_mfma_f32_16x16x32_bf16 {vr(CS+4*b)}, {vr(ASEL if b < 3 else ONES)}, {ar(AB+4*(k&7))}, {c}")
HD = ACC + 48
AP = 12
BH = 22
BP = 120
S0 = TMP


def w3_addr(ks, b, r):
    j, q = ks >> 2, ks & 3
    hi = j >= 4
    off = 896 * (16 * (j - 4 * hi) + q + 4 * r)
    if b < 3:
        return TRB + hi, off + 256 * b
    return TRB + 2 + hi, off


items = [(ks, b) for ks in range(32) for b in range(2)]
NA = 64
for p in range(17):
    if p < 16:
        items += [(2 * p, 2), (2 * p + 1, 2)]
    if p > 0:
        items += [(2 * p - 2, 3)]
nrd = [0]


def rd3(upto):
    while nrd[0] <= upto and nrd[0] < len(items):
        i = nrd[0]
        ks, b = items[i]
        for r in range(2):
            bs, off = w3_addr(ks, b, r)
            e(f"ds_read_b64_tr_b16 {ar(AB+4*(i&7)+2*r, 2)}, v{bs} offset:{off}", tag=f"a{i}")
        nrd[0] += 1


def cs_exchange():
    for b in range(4):
        e(f"v_mov_b32 v{S0+b}, v{CS+4*b}")
    e(f"ds_write_b128 v126, {vr(S0)}", tag="csw")
    A.wait_lg0()
    e("s_barrier")
    for i in range(4):
        e(f"ds_read_b128 {vr(CS+4*i)}, v127 offset:{1024*i}", tag="cs")
    rd3(5)


cs_exchange()


def cs_finish():
    A.wait_lg("cs")
    for b in range(0, 4, 2):
        e(f"v_pk_add_f32 {vr(CS+b, 2)}, {vr(CS+b, 2)}, {vr(CS+4+b, 2)}\nv_pk_add_f32 {vr(CS+8+b, 2)}, {vr(CS+8+b, 2)}, {vr(CS+12+b, 2)}")
    for b in range(0, 4, 2):
        e(f"v_pk_add_f32 {vr(CS+b, 2)}, {vr(CS+b, 2)}, {vr(CS+8+b, 2)}")
    for b in range(4):
        e(f"v_cvt_pk_bf16_f32 v{AP+2*b}, v{CS+b}, v{CS+b}")
        e(f"v_and_b32 v{S0}, 0xffff0000, v{AP+2*b}")
        e(f"v_sub_f32 v{S0}, v{CS+b}, v{S0}")
        e(f"v_cvt_pk_bf16_f32 v{AP+2*b+1}, v{S0}, v{S0}")
    e(f"v_mov_b32 v{AP+8}, 0\nv_mov_b32 v{AP+9}, 0")
    e(f"v_mov_b32 v{BH}, 0\nv_mov_b32 v{BH+2}, 0\nv_mov_b32 v{BH+3}, 0\nv_mov_b32 v{BP+2}, 0\nv_mov_b32 v{BP+3}, 0")


poll(sT1, 16, OPT["r2"], cs_finish, (lambda: pf(True)) if OPT["pfp"] & 2 else None)
stamp(1, 3, 4)


def y_issue(ks):
    e(f"buffer_load_dwordx4 {vr(BF+4*ks)}, {vL16}, {SWS}, s{YT[ks>>2]} offen offset:{1024*(ks&3)}{fl('ld')}", tag=f"y{ks}")


def st_issue(jj):
    e(f"buffer_load_dwordx2 {vr(S0+2*jj, 2)}, v48, {SWS}, {sT4} offen offset:{256*jj} sc1", tag="st")


NY0 = OPT["ny0"]
for ks in range(NY0):
    y_issue(ks)
    if ks == 3:
        for jj in range(4): st_issue(jj)
F = {i: [] for i in range(len(items))}
for k, ks in enumerate(range(NY0, 32)):
    F[2 * k].append(lambda ks=ks: y_issue(ks))
with Cap() as st:
    e(f"v_add_f32 v{S0}, v{S0}, v{S0+2}\nv_add_f32 v{S0+1}, v{S0+1}, v{S0+3}\nv_add_f32 v{S0+4}, v{S0+4}, v{S0+6}\nv_add_f32 v{S0+5}, v{S0+5}, v{S0+7}")
    e(f"v_add_f32 v{S0}, v{S0}, v{S0+4}\nv_add_f32 v{S0+1}, v{S0+1}, v{S0+5}")
    e(f"v_mov_b32 v{S0+2}, v{S0}\nv_mov_b32 v{S0+3}, v{S0+1}")
    e(f"v_permlane32_swap_b32 v{S0}, v{S0+2}\nv_permlane32_swap_b32 v{S0+1}, v{S0+3}")
    e(f"v_add_f32 v{S0}, v{S0}, v{S0+2}\nv_add_f32 v{S0+1}, v{S0+1}, v{S0+3}")
    stat_consts(S0, S0 + 1, S0 + 2)
    e(f"v_cvt_pk_bf16_f32 v{S0}, v{cM}, v{cM}\nv_and_b32 v{S0}, 0xffff0000, v{S0}\nv_sub_f32 v{S0}, v{cM}, v{S0}")
    e(f"v_cvt_pk_bf16_f32 v{S0}, v{cM}, v{S0}")
    e(f"v_cmp_gt_u32 vcc, 32, {vL}")
    e(f"v_cndmask_b32 v{BP}, 0, v{S0}, vcc")
    e(f"v_mov_b32 v{BP+1}, v{BP}\nv_mov_b32 v{BH+4}, v{BP}")
    e(f"v_permlane16_swap_b32 v{BH+4}, v{BH}")
    e(f"v_mov_b32 v{BH+5}, v{BH+4}\nv_mov_b32 v{BH+1}, v{BH}")
IS = 64 - (len(st) + 2) // 3
for k, s_ in enumerate(st):
    F[IS + k // 3].append(s_)
wq = []
for c in range(OPT["wa0"] and 2):
    wq += [lambda: w4_read(2), lambda: w4_read(2)]
for k, f in enumerate(wq):
    F[OPT["wa0"] + 2 * k + 1].append(f)
i0 = 2 * (32 - NY0)
if OPT["wa0"]:
    F[i0].append(w4_release)
    for k in range(8):
        F[i0 + k * OPT["wad"]].append(lambda: w4_issue(1))
for k, f in enumerate(hook("hP")):
    F[1 + 4 * k].append(f)
started = set()


def corr(b):
    e(f"v_mfma_f32_32x32x16_bf16 {vr(ACC+16*b, 16)}, {vr(AP+2*b)}, {vr(BP)}, {vr(ACC+16*b, 16)}")


def mf3(i):
    ks, b = items[i]
    if b < 3:
        c = vr(ACC + 16 * b, 16) if b in started else "0"
        e(f"v_mfma_f32_32x32x16_bf16 {vr(ACC+16*b, 16)}, {ar(AB+4*(i&7))}, {vr(BF+4*ks)}, {c}")
    else:
        for u in range(2):
            c = vr(HD + 4 * u) if b in started else "0"
            e(f"v_mfma_f32_16x16x32_bf16 {vr(HD+4*u)}, {ar(AB+4*(i&7))}, {vr(BF+4*ks+4*u)}, {c}")
    started.add(b)


for i in range(NA):
    ks, b = items[i]
    if b == 0:
        rd3(i + 7)
        A.wait_vm(f"y{ks}")
        A.wait_lg(f"a{i+1}")
    if i == 32:
        stamp(4)
    mf3(i)
    for f in F[i]:
        run(f)
corr(0)
corr(1)
stamp(1, 4)


def h3_store(dsts, blk):
    for c2 in range(2):
        off = 2048 * blk + 1024 * c2
        if off == 4096:
            e(f"s_add_u32 {sHs}, {sHs}, 4096")
        e(f"buffer_store_dwordx4 {vr(dsts+4*c2)}, {vL16}, {SWS}, {sHs} offen offset:{off&4095}{fl('hst')}", tag=f"h{blk}")


def epi_pk(acc, T, dsts, fill, ng=4):
    k = 0
    for g in range(ng):
        for s_ in gelu4pk(acc + 4 * g, T + 4 * (g & 1), [dsts + 2 * g, dsts + 2 * g + 1]):
            e(s_)
            k += 1
            if k % 5 == 0 and fill:
                run(fill.pop(0))


def pub3(tag):
    A.wait_vm(tag)
    publish(sP3, OPT["r3"])
    e(f"s_add_u32 {sP3}, {sP3}, 512")


fill = []
for c in range(OPT["wg"]):
    fill += [f for f in w4_cycle()] + [None] * 7
epi_pk(ACC, TMP, TMP + 8, fill)
h3_store(TMP + 8, 0)
epi_pk(ACC + 16, TMP, X1P, fill)
h3_store(X1P, 1)
for f in fill:
    run(f)
stamp(4, 5)
fill = []
for c in range(OPT["wb"]):
    fill += w4_cycle() + [None] * OPT["wbg"]
zs = [0]


def z_issue(n=1):
    for _ in range(n):
        z = zs[0]
        if z >= 56:
            return
        mm, ksl = P4K[z >> 1]
        blk, c2 = KSL[ksl]
        tb = z & 1
        so, off = f"s{HA[mm]}", 2048 * blk + 1024 * c2
        if blk == 3:
            so, off = sT5, 0
            if tb == 0:
                e(f"s_add_u32 {sT5}, s{HA[mm]}, s{DH[mm&1]}")
        elif blk == 2:
            so, off = sT5, 1024 * c2
            if tb == 0 and c2 == 0:
                e(f"s_add_u32 {sT5}, s{HA[mm]}, 4096")
        e(f"buffer_load_dwordx4 {vr(BF+4*(z&31))}, {vH[tb]}, {SWS}, {so} offen offset:{off}{fl('ld')}", tag=f"z{z}")
        zs[0] += 1


def phb(lo, hi, zz):
    for i in range(lo, hi):
        ks, b = items[i]
        rd3(i + 6)
        A.wait_lg(f"a{i}")
        mf3(i)
        if b == 2 and ks % 2 == 0 and ks > 0 or i == len(items) - 2:
            k2 = ks - 2 if i != len(items) - 2 else 30
            if i == len(items) - 2:
                corr(2)
            for d in range(4):
                e(f"v_permlane16_swap_b32 v{BF+4*k2+d}, v{BF+4*k2+4+d}")
        if i == NA + 3 * OPT["pubb"]:
            pub3("h1")
        elif i > NA + 2:
            for _ in range(OPT["wbn"]):
                if fill:
                    run(fill.pop(0))
        if zz and zs[0] < OPT["zla"]:
            z_issue(1)


PA = NA + OPT["pola"]
phb(NA, PA, 0)
poll(sQ3, 8, OPT["r3"], lambda: phb(PA, PA + 4, 0))
stamp(5)
e(f"s_add_u32 {sQ3}, {sQ3}, 512")
phb(PA + 4, len(items), 1)
e(f"v_mfma_f32_16x16x32_bf16 {vr(HD)}, {vr(AP+4)}, {vr(BH+2)}, {vr(HD)}")
e(f"v_mfma_f32_16x16x32_bf16 {vr(HD+4)}, {vr(AP+6)}, {vr(BH)}, {vr(HD+4)}")
for f in fill:
    run(f)
stamp(1, 4, 5)
sys.stderr.write(f"w4 state at P3 end {w4s}\n")
def tail1():
    e(f"v_and_b32 v60, 31, {vL}\nv_bfe_u32 v61, {vL}, 1, 3\nv_lshrrev_b32 v62, 5, {vL}")
    e(f"s_and_b32 {sT5}, {sW}, 1\ns_lshl_b32 {sT5}, {sT5}, 2\nv_xor_b32 v61, {sT5}, v61")
    e(f"s_lshr_b32 {sT5}, {sW}, 1\ns_lshl_b32 {sT5}, {sT5}, 12\ns_add_u32 {sT5}, {sT5}, {LX1R}")
    e(f"v_lshl_add_u32 v60, v60, 7, {sT5}\nv_lshl_add_u32 v60, v61, 4, v60\nv_lshl_add_u32 v60, v62, 3, v60")
    for g in range(1, 4):
        e(f"v_xor_b32 v{60+g}, {16*g}, v60")
    for g in range(4):
        e(f"ds_read_b64 {vr(ACC+16+2*g, 2)}, v{60+g}", tag="xr")
    epi_pk(ACC + 32, TMP, TMP + 8, [])
    h3_store(TMP + 8, 2)


z_issue(OPT["zla"] - zs[0])
tail1()
for d in range(4):
    e(f"v_permlane16_swap_b32 v{HD+d}, v{HD+4+d}")
epi_pk(HD, TMP, X1P, [], 2)
e(f"buffer_store_dwordx4 {vr(X1P)}, {vL16}, {SWS}, {sHh} offen{fl('hst')}", tag="h3")
A.wait_lg("xr")
for g in range(4):
    for d in range(2):
        e(f"v_lshlrev_b32 v{ACC+4*g+2*d}, 16, v{ACC+16+2*g+d}")
        e(f"v_and_b32 v{ACC+4*g+2*d+1}, 0xffff0000, v{ACC+16+2*g+d}")
stamp(1, 4, 5)
started = {0}
F = {i: [] for i in range(112)}
F[OPT["pub2"]].append(lambda: (pub3("h3"), stamp(5)))

fill = []
while len(fill) // 8 * 4 + w4s["con"] < 56:
    fill += w4_cycle() + [None]
for k, f in enumerate(fill):
    F[1 + k].append(f)
with Cap() as st:
    e("s_barrier")
    e(f"s_lshl_b32 {sT4}, {sW}, 14\nv_add_u32 v40, {sT4}, {vL16}")
    for i in range(1, 4):
        e(f"v_xor_b32 v{40+i}, {16384*i}, v40")
    e(f"s_lshr_b32 {sT1}, {sW}, 1\ns_lshl_b32 {sT1}, {sT1}, 15\ns_and_b32 {sT4}, {sW}, 1\ns_lshl_b32 {sT4}, {sT4}, 6\ns_add_u32 {sT1}, {sT1}, {sT4}")
    if OPT["otr"]:
        e(f"v_and_b32 v44, 31, {vL}\nv_lshrrev_b32 v45, 5, {vL}\nv_bfe_u32 v46, {vL}, 1, 2\nv_lshlrev_b32 v44, 6, v44")
        e(f"v_lshl_add_u32 v44, v45, 3, v44\nv_lshl_add_u32 v44, v46, 4, v44\ns_lshl_b32 {sT4}, {sW}, 14\nv_add_u32 v32, {sT4}, v44")
        for g in range(1, 4):
            e(f"v_xor_b32 v{32+g}, {16*g}, v32")
        e(f"v_bfe_u32 v45, {vL}, 3, 2\nv_lshlrev_b32 v45, 4, v45\nv_xor_b32 v36, v45, v40")
        e(f"v_lshrrev_b32 v44, 2, {vL}\nv_and_b32 v45, 3, {vL}\nv_lshlrev_b32 v44, 10, v44\nv_lshl_add_u32 v44, v45, 4, v44")
        e(f"s_add_u32 {sT4}, {sT1}, 16384")
    else:
        e(f"v_and_b32 v44, 31, {vL}\nv_lshrrev_b32 v45, 5, {vL}\nv_lshlrev_b32 v44, 10, v44\nv_lshl_add_u32 v44, v45, 4, v44")
for k, s_ in enumerate(st):
    F[92 + k // 2].append(s_)


def p4(lo, hi):
    for i in range(lo, hi):
        z, b = i >> 1, i & 1
        mm, ksl = P4K[z >> 1]
        if b == 0:
            A.wait_vm(f"z{z}")
            if z % 4 == 0:
                assert w4s["con"] >= z + 4, (z, w4s)
                A.wait_lg(f"w4c{z+3}")
        sl = 2 * (z & 1) + b
        c = vr(ACC + 16 * sl, 16) if sl in started else "0"
        started.add(sl)
        e(f"v_mfma_f32_32x32x16_bf16 {vr(ACC+16*sl, 16)}, {ar(8*(7*mm+ksl)+4*b)}, {vr(BF+4*(z&31))}, {c}")
        if b == 1 and zs[0] < lim[0] and zs[0] - z <= OPT["zla"]:
            z_issue(1)
        for f in F[i]:
            run(f)


lim = [32]
P2_ = OPT["pol2"]
p4(0, P2_)
stamp(5)
poll(sQ3, 8, OPT["r3"], lambda: p4(P2_, P2_ + 8))
stamp(4, 5)
lim = [56]
z_issue(min(4, OPT["zla"] - (zs[0] - (P2_ + 8) // 2)))
p4(P2_ + 8, 112)
stamp(1, 5)
for i in range(1, 4):
    for g in range(4):
        e(f"ds_write_b128 v{40+i}, {vr(ACC+16*i+4*g)} offset:{RED+4096*i+1024*g}", tag="rw")
A.wait_lg0()
e("s_barrier")
for g in range(4):
    for i in range(1, 4):
        e(f"ds_read_b128 {vr(BF+16*i+4*g)}, v40 offset:{RED+4096*i+1024*g}", tag=f"rr{g}")
for g in range(4):
    A.wait_lg(f"rr{g}")
    r, a = BF + 4 * g, ACC + 4 * g
    for h in (0, 2):
        e(f"v_pk_add_f32 {vr(a+h, 2)}, {vr(a+h, 2)}, {vr(r+16+h, 2)}")
        e(f"v_pk_add_f32 {vr(r+32+h, 2)}, {vr(r+32+h, 2)}, {vr(r+48+h, 2)}")
    for h in (0, 2):
        e(f"v_pk_add_f32 {vr(a+h, 2)}, {vr(a+h, 2)}, {vr(r+32+h, 2)}")
    for d in range(2):
        e(f"v_cvt_pk_bf16_f32 v{TMP+8+2*g+d}, v{a+2*d}, v{a+2*d+1}")
    if OPT["otr"]:
        e(f"ds_write_b64 v{32+g}, {vr(TMP+8+2*g, 2)} offset:{RED}", tag="ow")
    elif g % 2 == 1:
        o = TMP + 8 + 4 * (g >> 1)
        e(f"v_permlane32_swap_b32 v{o}, v{o+2}\nv_permlane32_swap_b32 v{o+1}, v{o+3}")
        e(f"buffer_store_dwordx4 {vr(o)}, v44, {SOUT}, {sT1} offen offset:{32*(g>>1)}{fl('ost')}", tag="o")
if OPT["otr"]:
    for i2 in range(2):
        e(f"ds_read_b128 {vr(BF+4*i2)}, v36 offset:{RED+1024*i2}", tag=f"or{i2}")
    for i2 in range(2):
        A.wait_lg(f"or{i2}")
        e(f"buffer_store_dwordx4 {vr(BF+4*i2)}, v44, {SOUT}, {(sT1, sT4)[i2]} offen{fl('ost')}", tag="o")
if PROF:
    stamp(5)
    A.wait_vm0()
    stamp(1, 5)
    A.wait_lg0()
    e("s_load_dwordx2 s[36:37], s[0:1], 56")
    A.wait_lg0()
    e(f"s_mov_b32 {sT1}, {PROF_OFF}")
    srd(28, 36, add=sT1, size=1 << 20)
    e(f"s_lshl_b32 {sT1}, s2, 2\ns_add_u32 {sT1}, {sT1}, {sW}\ns_lshl_b32 {sT1}, {sT1}, 6")
    e("v_mov_b32 v2, 0")
    for i in range(nstamp[0]):
        e(f"v_mov_b32 v3, s{82+2*i}")
        e(f"buffer_store_dword v3, v2, {SWS}, {sT1} offen offset:{4*i}")
    if OPT["dbg"]:
        e(f"s_lshl_b32 {sT4}, s2, 2\ns_add_u32 {sT4}, {sT4}, {sW}\ns_cmp_lg_u32 {sT4}, {OPT['dbg']}\ns_cbranch_scc1 L_end")
        e("s_mov_b64 exec, 1")
        for i in range(nstamp[0]):
            e(f"s_sub_u32 {sT4}, s{82+2*i}, s82\nv_mov_b32 v3, {sT4}")
            e(f"buffer_store_dword v3, v2, {SDBG}, 0 offen offset:{4*i} sc1")
        e(f"v_mov_b32 v3, {sMode}\nbuffer_store_dword v3, v2, {SDBG}, 0 offen offset:40 sc1")
        e("s_mov_b64 exec, -1")
    e(f"v_mov_b32 v3, {sMode}")
    e(f"buffer_store_dword v3, v2, {SWS}, {sT1} offen offset:60")
e("L_end:")
e("s_endpgm")
A.raw("L_codeend:")
A.raw('.section .rodata,"a"\n.p2align 6\n.amdhsa_kernel standalone__mixer_s_mlp__prompt_kernel')
A.raw("""  .amdhsa_next_free_vgpr 512
  .amdhsa_next_free_sgpr 102
  .amdhsa_accum_offset 256
  .amdhsa_group_segment_fixed_size 0
  .amdhsa_kernarg_size 64
  .amdhsa_user_sgpr_count 2
  .amdhsa_user_sgpr_kernarg_segment_ptr 1
  .amdhsa_system_sgpr_workgroup_id_x 1
.end_amdhsa_kernel""")
sys.stdout.write(A.text())
sys.stderr.write(f"lines {len(A.lines)} nops {A.nnop} stamps {nstamp[0]}\n")
```

```python
import sys, math, struct
sys.path.insert(0, "tools")
from asmlib import Asm

OPT = dict(npf3=1, poly=99, nyi=4, pfn=1, pubg=50, polg=128, ngi=4, ngd=2, gol=0, pft=1, e4=0, dfr=0, dsl="33_33_34_34_35_35_36_36_37_32", r1=16, r2=16, r3=8, fst="none", dbg=0, pfl=56, rot3=0, pfp=0, pfw=1, pfa=34, pfd=15, hG="", hS="", hP="nx14_q", pola=30, wbn=1, wbg=1, otr=1, hA="nx6_w3x14", hB="", hC="nx8_w3x14", hD="", hE="q", hF="", wa0=22, wad=1, wg=2, wb=6, pubb=5, zla=12, pub2=20, pol2=40, w4p=0, w2a=17, w2b=25, w2d=1, pf3=1, pf4="-1", pf4a=0, pf4b=0, ld="sc1", ng0=16, p2n=7, nb1=7, na1=4, fr0=24, frd=5, tlb=0, hel=14, held=7, ny0=12, na0=10, p2s=4, p2d=2, nb0=0, w4o="la", w4s=50, w4d=3, prof=0, gst="sc1", xst="sc1", hst="sc1", ost="sc1", forceslow=0)
for a in sys.argv[1:]:
    k, v = a.split("=")
    OPT[k] = int(v) if v.lstrip("-").isdigit() else v
PROF = OPT["prof"]


def fl(name):
    v = OPT[name]
    return "" if v == "none" else " " + v.replace("_", " ")


def f32(x):
    return "0x%08x" % struct.unpack("<I", struct.pack("<f", x))[0]


G_OFF = 0
X1_OFF = 128 << 10
H3_OFF = 256 << 10
STAT_OFF = 704 << 10
FLAG_OFF = 720 << 10
HEL_OFF = 12288
PROF_OFF = 16 << 20
WS_SIZE = 1 << 20
LW1 = 0
LW2 = 98304
LST = 131072
LXR = 86016
LX1R = 114688
LMISC = 122880
LCX = 94208
LDS_TOTAL = 163840
RED = 0
sW = "s3"
SX, SW1, SW2, SW3, SW4, SOUT, SWS, SDBG = ("s[4:7]", "s[8:11]", "s[12:15]", "s[16:19]", "s[20:23]", "s[24:27]",
                                           "s[28:31]", "s[32:35]")
sG, sM, sS, sJ, sT0, sMode, sHello, sRot1 = "s52", "s53", "s54", "s55", "s56", "s57", "s58", "s59"
sRot3 = "s52"
sKW = "s56"
KF = [73, 74, 78, 79]
DH = [80, 81]
sFB = "s[60:61]"
sDB = "s[62:63]"
sStg = "s64"
sT1, sT2, sT3, sT4, sT5, sT6 = "s65", "s66", "s67", "s68", "s69", "s70"
sRep, sCnt = "s71", "s72"
sH0 = "s58"
sPar = "s75"
sW3o, sW3m = "s76", "s77"
sW4o = "s76"
vL, vL16, vRep, vW4d, vOne, vMisc = "v0", "v1", "v6", "v7", "v10", "v11"
TRB = 2
W4T = 8
W3D = 12
ONES = 20
ASEL = 24
cA, cB, cI, cM = 28, 29, 30, 31
X1P = 32
TMP = 40
ACC = 64
BF = 128
AB = 224

K1 = -2.0 * math.sqrt(2.0 / math.pi) * math.log2(math.e)
K3 = 0.044715

A = Asm()
e = A.e
nlab = [0]
nstamp = [0]


def lab(p="L"):
    nlab[0] += 1
    return f"{p}_{nlab[0]}"


def stamp(*sets):
    if not sets:
        sets = (1,)
    if PROF in sets:
        i = nstamp[0]
        assert i < 10
        e(f"s_memtime s[{82+2*i}:{83+2*i}]")
        nstamp[0] += 1


def vr(b, n=4):
    return f"v[{b}:{b+n-1}]"


def ar(b, n=4):
    return f"a[{b}:{b+n-1}]"


def srd(dst, ptr_lo, add=None, size=0x7fffffff):
    if add is None:
        e(f"s_mov_b32 s{dst}, s{ptr_lo}\ns_mov_b32 s{dst+1}, s{ptr_lo+1}")
    else:
        e(f"s_add_u32 s{dst}, s{ptr_lo}, {add}\ns_addc_u32 s{dst+1}, s{ptr_lo+1}, 0")
    e(f"s_mov_b32 s{dst+2}, {size}\ns_mov_b32 s{dst+3}, 0x20000")


def poll(soff, ndw, nrep, between=None, inloop=None):
    L, Lw, Ld = lab("Lp"), lab("Lw"), lab("Ld")

    def issue(nxt):
        Lg = lab("Lg")
        e(f"s_cmp_ge_u32 {sRep}, {nrep*64}\ns_cbranch_scc1 {Lg}")
        e(f"s_add_u32 {sT6}, {soff}, {sRep}")
        e(f"s_load_dwordx{ndw} s[36:{36+ndw-1}], {sFB}, {sT6}")
        e(f"s_add_u32 {sRep}, {sRep}, 64\ns_branch {nxt}")
        e(f"{Lg}:")
        e(f"s_load_dwordx{ndw} s[36:{36+ndw-1}], {sFB}, {soff} glc")

    e(f"s_mov_b32 {sRep}, {sMode}\ns_mov_b32 {sCnt}, 0")
    if between is not None:
        Lb = lab("Lb")
        issue(Lb)
        e(f"{Lb}:")
        between()
        e(f"s_branch {Lw}")
    e(f"{L}:")
    e(f"s_add_u32 {sCnt}, {sCnt}, 1\ns_cmp_gt_u32 {sCnt}, 30000\ns_cbranch_scc1 L_end")
    if inloop:
        inloop()
    issue(Lw)
    e(f"{Lw}:")
    A.wait_lg0()
    n = ndw
    while n > 2:
        for i in range(0, n // 2, 2):
            e(f"s_and_b64 s[{36+i}:{37+i}], s[{36+i}:{37+i}], s[{36+n//2+i}:{37+n//2+i}]")
        n //= 2
    e("s_and_b32 s36, s36, s37")
    e(f"s_cbranch_scc0 {L}")


def publish(soff, nrep):
    Ls, Ld = lab("Ls"), lab("Ld")
    e(f"s_cmp_lg_u32 {sMode}, 0\ns_cbranch_scc1 {Ls}")
    e(f"s_mov_b64 exec, {(1 << nrep) - 1}")
    e(f"buffer_store_dword {vOne}, {vRep}, {SWS}, {soff} offen{fl('fst')}", tag="flag")
    e(f"s_branch {Ld}")
    e(f"{Ls}:")
    e("s_mov_b64 exec, 1")
    e(f"buffer_store_dword {vOne}, {vRep}, {SWS}, {soff} offen sc1", tag="flag")
    A.untrack()
    e(f"{Ld}:")
    e("s_mov_b64 exec, -1")


def stat_consts(vS, vQ, t):
    e(f"v_mul_f32 v{cM}, {f32(-1.0/512)}, v{vS}")
    e(f"v_mul_f32 v{t}, v{cM}, v{cM}")
    e(f"v_mov_b32 v{t+1}, {f32(1.0/512)}")
    e(f"v_fma_f32 v{t}, v{vQ}, v{t+1}, -v{t}")
    e(f"v_max_f32 v{t}, 0, v{t}")
    e(f"v_add_f32 v{t}, {f32(1e-5)}, v{t}")
    e(f"v_rsq_f32 v{t+1}, v{t}")
    e(f"v_sqrt_f32 v{cI}, v{t}")
    e(f"v_mul_f32 v{cA}, {f32(K1)}, v{t+1}")
    e(f"v_mul_f32 v{t}, v{t+1}, v{t+1}")
    e(f"v_mul_f32 v{t}, {f32(K3)}, v{t}")
    e(f"v_mul_f32 v{cB}, v{cA}, v{t}")


def gelu4(a, T, dst):
    o = []
    for i in range(4): o.append(f"v_mul_f32_e64 v{T+i}, v{a[i]}, v{a[i]}")
    for i in range(4): o.append(f"v_fma_f32 v{T+i}, v{T+i}, v{cB}, v{cA}")
    for i in range(4): o.append(f"v_mul_f32_e64 v{T+i}, v{a[i]}, v{T+i}")
    for i in range(4): o.append(f"v_exp_f32_e64 v{T+i}, v{T+i}")
    for i in range(4): o.append(f"v_fma_f32 v{T+i}, v{T+i}, v{cI}, v{cI}")
    for i in range(4): o.append(f"v_rcp_f32_e64 v{T+i}, v{T+i}")
    for i in range(4): o.append(f"v_mul_f32_e64 v{T+i}, v{a[i]}, v{T+i}")
    o.append(f"v_cvt_pk_bf16_f32 v{dst[0]}, v{T}, v{T+1}")
    o.append(f"v_cvt_pk_bf16_f32 v{dst[1]}, v{T+2}, v{T+3}")
    return o


def gelu4pk(a, T, dst):
    o = []
    for i in (0, 2): o.append(f"v_pk_mul_f32 v[{T+i}:{T+i+1}], v[{a+i}:{a+i+1}], v[{a+i}:{a+i+1}]")
    for i in (0, 2): o.append(f"v_pk_fma_f32 v[{T+i}:{T+i+1}], v[{T+i}:{T+i+1}], v[{cA}:{cB}], v[{cA}:{cB}] op_sel:[0,1,0] op_sel_hi:[1,1,0]")
    for i in (0, 2): o.append(f"v_pk_mul_f32 v[{T+i}:{T+i+1}], v[{a+i}:{a+i+1}], v[{T+i}:{T+i+1}]")
    for i in range(4): o.append(f"v_exp_f32_e64 v{T+i}, v{T+i}")
    for i in (0, 2): o.append(f"v_pk_fma_f32 v[{T+i}:{T+i+1}], v[{T+i}:{T+i+1}], v[{cI}:{cM}], v[{cI}:{cM}] op_sel:[0,0,0] op_sel_hi:[1,0,0]")
    for i in range(4): o.append(f"v_rcp_f32_e64 v{T+i}, v{T+i}")
    for i in (0, 2): o.append(f"v_pk_mul_f32 v[{T+i}:{T+i+1}], v[{a+i}:{a+i+1}], v[{T+i}:{T+i+1}]")
    o.append(f"v_cvt_pk_bf16_f32 v{dst[0]}, v{T}, v{T+1}")
    o.append(f"v_cvt_pk_bf16_f32 v{dst[1]}, v{T+2}, v{T+3}")
    return o


KSL = [(0, 0), (0, 1), (1, 0), (1, 1), (3, 0), (2, 0), (2, 1)]
W4G = []
for mm in range(4):
    W4G += [[(mm, 0), (mm, 1)], [(mm, 2), (mm, 3)]]
for mm in (0, 2):
    W4G += [[(mm, 5), (mm, 6)], [(mm + 1, 5), (mm + 1, 6)], [(mm, 4), (mm + 1, 4)]]
P4K = [k for g in W4G for k in g]
W4V = ["v7", "v57", "v58", "v59"]
w4s = dict(iss=0, con=0, free=0)


def w4_issue(n=1):
    for _ in range(n):
        i = w4s["iss"]
        if i >= 56:
            return
        g, n4 = i >> 2, i & 3
        assert 4 * (g - 1) <= w4s["free"], ("w4 ring overrun", i, w4s)
        mm, ksl = W4G[g][n4 >> 1]
        blk, c2 = KSL[ksl]
        set_m0(sStg, 4096 * (g & 1))
        if blk == 3:
            if n4 & 1 == 0:
                e(f"s_add_u32 {sW4o}, s{KF[mm]}, s{DH[mm&1]}")
                e(f"s_lshl4_add_u32 {sW4o}, {sW4o}, {(3072 - 8192*n4) & 0xffffffff}")
        elif n4 == 0:
            e(f"s_lshl4_add_u32 {sW4o}, s{KF[mm]}, {3072 + 32768*blk}")
        e(f"buffer_load_dwordx4 {W4V[n4]}, {SW4}, {sW4o} offen offset:{1024*n4} lds", tag=f"w4_{i}")
        w4s["iss"] += 1


def w4_read(n=4, wait=True):
    n = min(n, w4s["iss"] - w4s["con"])
    if n <= 0:
        return
    A.wait_vm(f"w4_{min(w4s['iss'], (w4s['con']+n+3)//4*4)-1}")
    for _ in range(n):
        i = w4s["con"]
        mm, ksl = W4G[i >> 2][(i >> 1) & 1]
        k, rd = 7 * mm + ksl, i & 1
        for b in range(2):
            e(f"ds_read_b64_tr_b16 {ar(8*k+4*b+2*rd, 2)}, v{W4T+b} offset:{1024*(i&7)}", tag=f"w4c{i}")
        w4s["con"] += 1


def w4_release():
    if w4s["free"] < w4s["con"]:
        A.wait_lg(f"w4c{w4s['con']-1}")
        w4s["free"] = w4s["con"]


def w4_cycle():
    return [lambda: w4_read(2), lambda: w4_read(2), None, lambda: (w4_release(), w4_issue(1)), lambda: w4_issue(1),
            lambda: w4_issue(1), lambda: w4_issue(1)]


m0c = [None]


def set_m0(sreg, lit):
    if m0c[0] != (sreg, lit):
        e(f"s_add_u32 m0, {sreg}, {lit}")
        m0c[0] = (sreg, lit)


W3B = [4, 5, 6, 7]
w3s = [0]


def w3_pump(cnt=1):
    for _ in range(cnt):
        i = w3s[0]
        if i >= 28:
            return
        period, n = i // 7, i % 7
        set_m0(sW3m, period * 4 * 7168 + (4096 if n >= 4 else 0))
        e(f"buffer_load_dwordx4 v{W3D+n}, {SW3}, s{W3B[period]} offen offset:{1024*(n&3)} lds", tag="w3")
        w3s[0] += 1


def tr_bases12(lbase, rot, t=TMP):
    e(f"v_lshrrev_b32 v{t}, 4, {vL}")
    e(f"v_bfe_u32 v{t+1}, {vL}, 2, 2")
    e(f"v_and_b32 v{t+2}, 3, {vL}")
    e(f"v_lshlrev_b32 v{t+3}, 9, v{t}")
    e(f"v_lshl_add_u32 v{t+3}, v{t+1}, 7, v{t+3}")
    e(f"v_lshl_add_u32 v{t+3}, v{t+2}, 3, v{t+3}")
    if lbase:
        e(f"v_add_u32 v{t+3}, {lbase}, v{t+3}")
    e(f"v_and_b32 v{t}, 1, v{t}")
    e(f"v_lshrrev_b32 v{t+1}, 1, v{t+1}")
    e(f"v_lshl_add_u32 v{t}, v{t}, 1, v{t+1}")
    if rot:
        e(f"v_xor_b32 v{t}, {sW}, v{t}")
    for i in range(4):
        e(f"v_xor_b32 v{t+1}, {i}, v{t}")
        e(f"v_lshl_add_u32 v{TRB+i}, v{t+1}, 5, v{t+3}")


def run(f):
    if f is None:
        return
    if callable(f):
        f()
    else:
        e(f)


class Cap:
    def __enter__(self):
        global e
        self.o = []
        self.old = e
        e = lambda s_, tag=None: self.o.extend([l for l in s_.split("\n") if l.strip()])
        return self.o

    def __exit__(self, *a):
        global e
        e = self.old


A.raw(f"; @launch grid=(256,1,1) block=(256,1,1) lds={LDS_TOTAL}")
A.raw('.amdgcn_target "amdgcn-amd-amdhsa--gfx950"')
A.raw(".text\n.globl standalone__mixer_s_mlp__prompt_kernel\n.p2align 8\n.type standalone__mixer_s_mlp__prompt_kernel,@function")
A.raw("standalone__mixer_s_mlp__prompt_kernel:")
e("s_cmp_ge_u32 s2, 256\ns_cbranch_scc1 L_end")
e("s_load_dwordx16 s[36:51], s[0:1], 0")
stamp(1, 2, 3, 4)
e("s_getpc_b64 s[68:69]")
A.raw("L_pc:")
if OPT["pft"]:
    e(f"v_lshrrev_b32 v2, 6, v0\nv_and_b32 {vL}, 63, v0\ns_bfe_u32 {sT6}, s2, 0x20003\ns_lshl_b32 {sT6}, {sT6}, 13")
    e(f"v_lshlrev_b32 v46, 7, {vL}\nv_lshl_add_u32 v46, v2, 11, v46\nv_add_u32 v46, {sT6}, v46\nv_min_u32 v46, L_codeend-L_pc-4, v46")
    e("s_mov_b64 exec, 0xffff")
    e("global_load_dword v255, v46, s[68:69]", tag="pf")
    A.untrack()
    e("s_mov_b64 exec, -1")
VX, VW1, VW2 = 192, 196, 200
vXr = "v63"
XR = list(range(73, 81))
WK = [81, 60, 61, 64]
if not OPT["pft"]:
    e(f"v_lshrrev_b32 v2, 6, v0")
    e(f"v_and_b32 {vL}, 63, v0")
e(f"v_readfirstlane_b32 {sW}, v2")
e(f"s_and_b32 {sT1}, s2, 7\ns_lshr_b32 {sT2}, s2, 3")
e(f"s_lshr_b32 {sT3}, {sT2}, 4\ns_lshl_b32 {sG}, {sT1}, 1\ns_add_u32 {sG}, {sG}, {sT3}")
e(f"s_and_b32 {sM}, {sT2}, 15\ns_lshr_b32 {sS}, {sM}, 3\ns_and_b32 {sJ}, {sM}, 7")
e(f"s_lshr_b32 {sRep}, {sT2}, 3")
e(f"s_lshl_b32 {sRot1}, {sRep}, 1\ns_add_u32 {sRot1}, {sRot1}, {sJ}")
e(f"s_lshl_b32 {sT0}, {sG}, 7\ns_lshl_b32 {sT1}, {sS}, 6\ns_add_u32 {sT0}, {sT0}, {sT1}")
e(f"s_lshr_b32 {sT1}, {sJ}, 1\ns_lshr_b32 {sT2}, {sT1}, 1\ns_add_u32 {sT2}, {sT2}, 1")
e(f"s_and_b32 {sT1}, {sT1}, 1\ns_cmp_eq_u32 {sT1}, 0\ns_cselect_b32 {sT3}, -1, 1\ns_mul_i32 {sT2}, {sT2}, {sT3}")
e(f"s_lshl_b32 {sT1}, {sW}, 4\ns_add_u32 {sCnt}, {sT1}, {sT0}\ns_add_u32 {sT2}, {sT2}, {sCnt}")
e(f"v_lshrrev_b32 v40, 2, {vL}\nv_add_u32 v40, {sT2}, v40\nv_and_b32 v40, 0xfffff, v40\nv_lshlrev_b32 v40, 10, v40")
e(f"v_lshrrev_b32 v46, 5, {vL}\nv_and_b32 v41, 3, {vL}\nv_lshlrev_b32 v42, 1, v46\nv_xor_b32 v41, v41, v42\nv_lshl_add_u32 v40, v41, 4, v40")
for n in range(4):
    e(f"v_add_u32 v{VX+n}, {64*(n&1) - 1024*n + 3072}, v40")
e(f"v_bfe_u32 v47, {vL}, 3, 2\nv_bfe_u32 v48, {vL}, 1, 2\nv_and_b32 v49, 1, {vL}")
e(f"v_lshrrev_b32 v50, 1, v47\nv_add_u32 v50, v42, v50\nv_xor_b32 v50, v48, v50")
e(f"v_lshlrev_b32 v50, 5, v50\nv_lshl_add_u32 v50, v49, 4, v50\nv_lshl_add_u32 v50, v47, 10, v50")
e(f"v_lshl_add_u32 v{VW1}, v46, 13, v50\nv_lshl_add_u32 v{VW2}, v46, 12, v50")
for n in range(1, 4):
    e(f"v_add_u32 v{VW1+n}, {[0, 15, 2, 17][n]*1024}, v{VW1}")
e(f"v_lshlrev_b32 {vL16}, 4, {vL}")
e(f"s_lshl_b32 {sT1}, {sJ}, 7")
e(f"s_lshl_b32 {sMode}, {sW}, 12")
e(f"s_lshl_b32 {sT3}, {sT0}, 10\ns_add_u32 {sT3}, {sT3}, {sT1}")
e(f"s_lshl1_add_u32 {sKW}, {sRot1}, {sW}")
for pp in range(8):
    e(f"s_add_u32 s{XR[pp]}, {sRot1}, {pp}\ns_and_b32 s{XR[pp]}, s{XR[pp]}, 7\ns_lshl_b32 s{XR[pp]}, s{XR[pp]}, 7")
for c in range(4):
    e(f"s_add_u32 s{WK[c]}, {sKW}, {4*c}\ns_and_b32 s{WK[c]}, s{WK[c]}, 15\ns_lshl_b32 s{WK[c]}, s{WK[c]}, 15")
for i in range(4): e(f"v_mov_b32 v{52+i}, 0")
e(f"s_and_b32 {sT2}, {sM}, 3\ns_or_b32 {sT2}, {sT2}, {sW}")
e(f"s_lshl_b32 {sHello}, {sM}, 11\ns_add_u32 {sHello}, {sHello}, {FLAG_OFF}")
if not OPT["pft"]:
    e(f"s_and_b32 {sT6}, {sJ}, 3\ns_lshl_b32 {sT6}, {sT6}, 2\ns_add_u32 {sT6}, {sT6}, {sW}\ns_lshl_b32 {sT6}, {sT6}, 11")
    e(f"v_lshlrev_b32 v46, 7, {vL}\nv_add_u32 v46, {sT6}, v46\nv_min_u32 v46, L_codeend-L_pc-4, v46")
e(f"s_lshl_b32 {sT6}, {sG}, 20")
e(f"s_mov_b32 s6, {2048*1024 + 3072}\ns_mov_b32 s7, 0x20000")
A.wait_lg0()
stamp(2)
e(f"s_sub_u32 s4, s36, 3072\ns_subb_u32 s5, s37, 0")
srd(28, 50, add=sT6, size=WS_SIZE)
Lr = lab("Lr")
e(f"s_cmp_lg_u32 {sT2}, 0\ns_cbranch_scc1 {Lr}")
e(f"s_add_u32 s32, {sHello}, 4096")
for k in range(8):
    e(f"buffer_store_dwordx4 v[52:55], {vL16}, {SWS}, {sHello if k < 4 else 's32'} offen offset:{1024*(k&3)} sc1")
    A.untrack()
e(f"{Lr}:")


def x_issue(p):
    set_m0(sMode, LW2 + 16384 * (p >> 2))
    e(f"buffer_load_dwordx4 v{VX+(p&3)}, {SX}, s{XR[p>>1]} offen offset:{1024*(p&3)} lds", tag=f"x{p}")


def w12_issue(which, c, n):
    set_m0(sMode, (LW1 if which == 1 else LW2) + 16384 * c)
    e(f"buffer_load_dwordx4 v{(VW1 if which == 1 else VW2)+n}, {SW1 if which == 1 else SW2}, s{WK[c]} offen offset:{1024*n} lds",
      tag=f"w{which}c{c}")


x_issue(0)
x_issue(1)
srd(8, 38, add=sT1, size=512 * 1024 - 896)
for n in range(4): w12_issue(1, 0, n)
x_issue(2)
x_issue(3)
if not OPT["pft"]:
    e("s_mov_b64 exec, 0xffff")
    e("global_load_dword v255, v46, s[68:69]", tag="pf")
    e("s_mov_b64 exec, -1")
q2 = [lambda p=p: x_issue(p) for p in range(4, 8)] + [lambda n=n: w12_issue(1, 1, n) for n in range(4)]
for f in q2[:OPT["e4"]]: f()
stamp(2)
DU = []


def defer(lines):
    if OPT["dfr"]:
        DU.append("\n".join(lines))
    else:
        e("\n".join(lines))
srd(12, 40, add=sT1, size=512 * 1024 - 896)
srd(24, 46, add=sT3, size=64 * 1024 - 896)
for n in range(1, 4):
    e(f"v_add_u32 v{VW2+n}, {7*1024*n}, v{VW2}")
e(f"v_lshlrev_b32 {vRep}, 6, {vL}")
e(f"v_mov_b32 {vOne}, 1")
e(f"s_mul_i32 {sT3}, {sM}, 224")
e(f"s_sub_u32 s16, s42, 3072\ns_subb_u32 s17, s43, 0")
e(f"s_add_u32 s16, s16, {sT3}\ns_addc_u32 s17, s17, 0")
e(f"s_mov_b32 s18, {512*3584 + 3072 - 224*15}\ns_mov_b32 s19, 0x20000")
e(f"s_mul_i32 {sT3}, {sW}, {448*1024}\ns_add_u32 {sT3}, {sT3}, {sT1}")
e(f"s_sub_u32 s20, s44, 3072\ns_subb_u32 s21, s45, 0")
e(f"s_add_u32 s20, s20, {sT3}\ns_addc_u32 s21, s21, 0")
e(f"s_mov_b32 s22, {448*1024 - 896 + 3072}\ns_mov_b32 s23, 0x20000")
if OPT["tlb"]:
    e(f"s_lshl_b32 {sT3}, {sW}, 4\nv_add_u32 v46, {sT3}, {vL}\nv_mul_u32_u24 v47, 28672, v46\nv_mul_u32_u24 v48, 28672, {vL}")
    e(f"v_lshlrev_b32 v49, 13, v46\nv_lshlrev_b32 v46, 10, v46")
    e("s_mov_b64 exec, 0xffff")
    e(f"buffer_load_dword v255, v49, {SW2}, 0 offen", tag="pf")
    e(f"buffer_load_dword v255, v47, {SW3}, 0 offen offset:3072", tag="pf")
    e(f"buffer_load_dword v255, v48, {SW4}, 0 offen offset:3072", tag="pf")
    e("s_mov_b64 exec, 1")
    e(f"buffer_load_dword v255, v46, {SOUT}, 0 offen", tag="pf")
    e("s_mov_b64 exec, -1")
e(f"s_lshl_b32 {sT3}, {sG}, 4\ns_add_u32 s62, s48, {sT3}\ns_addc_u32 s63, s49, 0")
e(f"v_lshl_add_u32 v60, {vL}, 2, {sT3}\nv_cmp_gt_u32 vcc, 4, {vL}\nv_cndmask_b32 v60, -1, v60, vcc")
e(f"v_lshlrev_b32 v62, 2, {vL}\nv_add_u32 v62, {FLAG_OFF + HEL_OFF}, v62\nv_cndmask_b32 v62, -1, v62, vcc")
e(f"s_add_u32 {sT3}, {sT3}, {sM}\nv_mov_b32 v19, {sT3}")
e(f"v_lshlrev_b32 v58, 7, {vL}\nv_add_u32 v58, {sHello}, v58")
e(f"s_add_u32 s42, s28, {FLAG_OFF + HEL_OFF}\ns_addc_u32 s43, s29, 0")
e(f"s_add_u32 {sT3}, {sM}, {FLAG_OFF + HEL_OFF}\nv_mov_b32 v57, {sT3}")
e(f"s_getreg_b32 {sHello}, hwreg(HW_REG_XCC_ID)")
e(f"s_and_b32 {sHello}, {sHello}, 15\ns_or_b32 {sHello}, {sHello}, 0x80")
if OPT["forceslow"]:
    e(f"s_cmp_eq_u32 {sM}, 5\ns_cselect_b32 {sHello}, 0x89, {sHello}")
e(f"v_mov_b32 v56, {sHello}")
e(f"s_mul_i32 {sHello}, {sHello}, 0x01010101")
e(f"s_mov_b32 s40, {sW}")
e(f"s_and_b32 {sT4}, {sG}, 1\ns_lshl_b32 {sT4}, {sT4}, 2\ns_add_u32 {sRot3}, {sT4}, {sM}")
if OPT["rot3"] == 0:
    e(f"s_mov_b32 {sRot3}, 0")
e(f"s_add_u32 {sRep}, {sRep}, {sJ}")
for i in range(4): e(f"v_mov_b32 v{ONES+i}, 0x3f803f80")
e(f"v_and_b32 v46, 15, {vL}\nv_lshrrev_b32 v47, 4, {vL}\nv_bfe_u32 v48, {vL}, 3, 1\nv_lshlrev_b32 v48, 1, v48\nv_xor_b32 v47, v47, v48")
e(f"v_lshlrev_b32 v46, 6, v46\nv_lshl_add_u32 v46, v47, 4, v46\ns_add_u32 {sT4}, {sMode}, {LW2}\nv_add_u32 {vXr}, {sT4}, v46")
e(f"v_lshrrev_b32 v46, 3, {vL}\nv_and_b32 v47, 7, {vL}\nv_lshrrev_b32 v48, 4, {vL}\nv_xor_b32 v47, v47, v48")
e(f"v_add_u32 v46, {sCnt}, v46\nv_lshlrev_b32 v46, 10, v46\nv_lshl_add_u32 {vMisc}, v47, 4, v46")
e(f"s_add_u32 {sT1}, {sT1}, 3072")
with Cap() as du:
    e(f"s_lshl_b32 {sT4}, {sW}, 13\ns_add_u32 {sT4}, {sT4}, {LST}")
    e(f"v_lshrrev_b32 v46, 5, {vL}\nv_bfe_u32 v47, {vL}, 3, 2\nv_bfe_u32 v48, {vL}, 2, 1\nv_and_b32 v49, 3, {vL}")
    e(f"v_lshrrev_b32 v50, 1, v47\nv_xor_b32 v50, v48, v50\nv_lshlrev_b32 v50, 6, v50\nv_lshl_add_u32 v50, v49, 4, v50")
    e(f"v_lshl_add_u32 v47, v46, 2, v47\nv_lshl_add_u32 {vW4d}, v47, 10, v50")
    e(f"v_bfe_u32 v47, {vL}, 2, 2\nv_bfe_u32 v48, {vL}, 4, 1")
    e(f"v_lshlrev_b32 v50, 9, v46\nv_lshl_add_u32 v50, v47, 7, v50\nv_lshl_add_u32 v50, v48, 5, v50\nv_lshl_add_u32 v50, v49, 3, v50")
    e(f"v_add_u32 v50, {sT4}, v50\nv_lshrrev_b32 v47, 1, v47")
    e(f"v_lshl_add_u32 v{W4T}, v47, 6, v50\nv_xor_b32 v47, 1, v47\nv_lshl_add_u32 v{W4T+1}, v47, 6, v50")
    e(f"s_and_b32 {sT4}, {sW}, 1\ns_lshl_b32 {sT4}, {sT4}, 6\nv_xor_b32 v{W4T}, {sT4}, v{W4T}\nv_xor_b32 v{W4T+1}, {sT4}, v{W4T+1}")
defer(du)
CX = 104
with Cap() as du:
    e(f"s_lshl_b32 {sT4}, {sW}, 10\ns_add_u32 {sT4}, {sT4}, {LCX}\nv_add_u32 v{CX}, {sT4}, {vL16}")
    for i in range(1, 4):
        e(f"v_xor_b32 v{CX+i}, {1024*i}, v{CX}")
defer(du)
for g in range(448): assert (g * 1171) >> 16 == g // 56
for n in range(7):
    with Cap() as du:
        e(f"s_and_b32 {sT6}, {sM}, 1")
        e(f"s_lshl_b32 {sT4}, {sT6}, 5")
        e(f"s_cmp_eq_u32 {sT6}, 0\ns_cselect_b32 {sT5}, 192, 0")
        e(f"v_add_u32 v46, {64*n}, {vL}")
        e(f"v_mul_u32_u24 v47, 1171, v46\nv_lshrrev_b32 v47, 16, v47")
        e(f"v_mul_u32_u24 v48, 56, v47\nv_sub_u32 v46, v46, v48")
        e(f"v_lshrrev_b32 v48, 4, v46\nv_and_b32 v49, 3, v46\nv_lshlrev_b32 v48, 6, v48\nv_lshl_add_u32 v48, v49, 4, v48")
        e(f"v_add_u32 v48, {sT4}, v48\nv_bfe_u32 v49, v46, 2, 2")
        e(f"v_and_b32 v50, 1, v46\nv_lshlrev_b32 v50, 4, v50\nv_add_u32 v50, {sT5}, v50\nv_bfe_u32 v51, v46, 1, 2")
        e(f"v_cmp_lt_u32 vcc, 47, v46")
        e(f"v_cndmask_b32 v48, v48, v50, vcc\nv_cndmask_b32 v49, v49, v51, vcc")
        e(f"v_lshl_add_u32 v47, v47, 2, v49\nv_mul_u32_u24 v47, 3584, v47")
        if (n & 3) != 3:
            e(f"v_add_u32 v48, {3072 - 1024*(n&3)}, v48")
        e(f"v_add_u32 v{W3D+n}, v47, v48")
    defer(du)
NL = OPT["pfl"]
with Cap() as du:
    e(f"s_lshr_b32 {sT4}, s2, 3\ns_mul_i32 {sT5}, {sT4}, {128*NL}\ns_lshl_b32 {sT6}, {sJ}, 7\ns_sub_u32 {sT5}, {sT5}, {sT6}\ns_add_u32 {sT5}, {sT5}, 3072")
    e(f"v_lshlrev_b32 v112, 7, {vL}\nv_add_u32 v113, {sT5}, v112")
    e(f"s_lshl2_add_u32 {sT4}, {sT4}, {sW}\ns_mul_i32 {sT4}, {sT4}, {128*NL}\ns_mul_i32 {sT6}, {sM}, 224\ns_sub_u32 {sT4}, {sT4}, {sT6}\ns_add_u32 {sT4}, {sT4}, 3072")
    e(f"v_add_u32 v112, {sT4}, v112")
    e(f"v_cmp_gt_u32 vcc, {NL}, {vL}\nv_mov_b32 v114, 0x40000000\nv_cndmask_b32 v112, v114, v112, vcc\nv_cndmask_b32 v113, v114, v113, vcc")
defer(du)
pfs = [0]


def pf(dyn=False):
    k = pfs[0]
    which = 1 if (k >= OPT["npf3"] or dyn or OPT["pf3"] == 0) else 0
    e(f"buffer_load_dword v114, v{112+which}, {SW4 if which else SW3}, 0 offen", tag="pf")
    if dyn:
        A.untrack()
        e(f"v_add_u32 v113, {4096*NL}, v113\nv_min_u32 v113, 0x40000000, v113")
    else:
        e(f"v_add_u32 v{112+which}, {4096*NL if which else 16384*NL}, v{112+which}")
        pfs[0] += 1


def hook(name):
    o = []
    for t in str(OPT[name]).split("_"):
        if t in ("", "0"):
            continue
        k, n = (t.split("x") + ["1"])[:2]
        f = {"q": pf, "w3": lambda: w3_pump(1), "w4": lambda: w4_issue(1), "n": None}[k]
        o += [f] * int(n)
    return o


srd(32, 48, size=256)
tr_bases12(LW1, True)
def go_post(wait):
    Lr = lab("Lr")
    e(f"s_cmp_lg_u32 {sT2}, 0\ns_cbranch_scc1 {Lr}")
    if wait:
        e(f"s_waitcnt vmcnt({len(A.vm)})")
    e("s_mov_b64 exec, 1")
    e(f"buffer_store_dword {vOne}, v19, {SDBG}, 0 offen sc1")
    A.untrack()
    e("s_mov_b64 exec, -1")
    e(f"{Lr}:")


if OPT["gol"] == 0:
    go_post(True)
stamp(2)
for f in q2[OPT["e4"]:]: f()
if OPT["gol"] == 1:
    go_post(True)


def reduce_q(s, q, t):
    e(f"v_permlane32_swap_b32 v{s}, v{q}")
    e(f"v_add_f32 v{s}, v{s}, v{q}")
    e(f"v_mov_b32 v{t}, v{s}")
    e(f"v_permlane16_swap_b32 v{s}, v{t}")
    e(f"v_add_f32 v{s}, v{s}, v{t}")
    e(f"v_mov_b32 v{t}, v{s}")
    e(f"v_permlane32_swap_b32 v{s}, v{t}")


def x_read(p):
    e(f"ds_read_b128 {vr(BF+4*p)}, {vXr} offset:{16384*(p>>2) + 1024*(p&3)}", tag=f"xr{p}")


gomark = [0]


def go_ld(mod):
    e(f"buffer_load_dword v59, v60, {SDBG}, 0 offen {mod}")
    A.untrack()
    gomark[0] = A.nvm


def go_load():
    L = lab("Lgo")
    e(f"s_cmp_lg_u32 s40, 0\ns_cbranch_scc1 {L}")
    go_ld("sc0")
    e(f"{L}:")


def go_check(final=False):
    L, L2, L0 = lab("Lgo"), lab("Lgp"), lab("Lgs")
    e(f"s_cmp_lg_u32 s40, 0\ns_cbranch_scc1 {L}")
    e(f"s_waitcnt vmcnt({A.nvm - gomark[0]})")
    if final:
        e(f"s_mov_b32 s41, 0")
        e(f"{L0}:")
    e("v_cmp_ne_u32 vcc, 0, v59")
    e("s_cmp_eq_u32 vcc_lo, 15")
    e(f"s_cbranch_scc1 {L2}")
    go_ld("sc1" if final else "sc0")
    if final:
        e("s_waitcnt vmcnt(0)")
        e(f"s_add_u32 s41, s41, 1\ns_cmp_gt_u32 s41, 30000\ns_cbranch_scc1 L_end")
        e(f"s_branch {L0}")
    else:
        e(f"s_branch {L}")
    e(f"{L2}:")
    e("s_mov_b64 exec, 1\ns_mov_b32 s40, 1")
    e(f"buffer_store_byte v56, v57, {SWS}, 0 offen sc1")
    A.untrack()
    e("s_mov_b64 exec, 0xffff")
    e(f"buffer_load_dword v61, v58, {SWS}, 0 offen sc1")
    A.untrack()
    e("s_mov_b64 exec, -1")
    e(f"{L}:")


def p1_pre(i):
    if i % 16 == 0:
        c = i // 16
        A.wait_vm(f"x3" if c == 0 else f"w1c{c}")
        if c == 0 and OPT["gol"] == 2:
            go_post(False)
        for p in {0: range(0, 4), 1: range(4, 8), 2: range(8, 16), 3: []}[c]:
            x_read(p)
        e("s_barrier")
        stamp(2)


SUMA, GRAM = 96, 100


def stat_mfma(p, which):
    if which:
        return f"v_mfma_f32_16x16x32_bf16 {vr(GRAM)}, {vr(BF+4*p)}, {vr(BF+4*p)}, {vr(GRAM) if p else '0'}"
    return f"v_mfma_f32_16x16x32_bf16 {vr(SUMA)}, {vr(ONES)}, {vr(BF+4*p)}, {vr(SUMA) if p else '0'}"


F = {i: [] for i in range(64)}
lq = [lambda p=p: x_issue(p) for p in range(8, 16)] + [lambda c=c, n=n: w12_issue(1, c, n) for c in (2, 3) for n in range(4)]
for i in range(16):
    F[i].append(lq[i])
F[OPT["hel"]].append(go_load)
for k in range(1, 4):
    F[min(48, OPT["hel"] + OPT["held"] * k)].append(go_check)
for p in range(8):
    F[4 * p + 1].append(stat_mfma(p, 0))
    F[4 * p + 2].append(stat_mfma(p, 1))
for k in range(16):
    F[32 + k].append(stat_mfma(8 + (k >> 1), k & 1))
F[OPT["w2b"]].append(lambda: A.wait_lg("xr15"))
for k in range(8):
    F[OPT["w2a"] + OPT["w2d"] * k].append(lambda k=k: w12_issue(2, k >> 2, k & 3))
    F[OPT["w2b"] + OPT["w2d"] * k].append(lambda k=k: w12_issue(2, 2 + (k >> 2), k & 3))
with Cap() as st:
    for r in range(4):
        mk = sum(1 << (20 * g + r) for g in range(4))
        e(f"s_mov_b32 vcc_lo, {mk & 0xffffffff}\ns_mov_b32 vcc_hi, {mk >> 32}")
        e(f"v_cndmask_b32 v41, {'0' if r == 0 else 'v41'}, v{GRAM+r}, vcc")
    e("v_mov_b32 v42, v41\nv_permlane32_swap_b32 v41, v42\nv_add_f32 v41, v41, v42")
    e("v_mov_b32 v42, v41\nv_permlane16_swap_b32 v41, v42\nv_add_f32 v41, v41, v42")
    stat_consts(SUMA, 41, 44)
    e(f"s_lshl_b32 {sT4}, {sS}, 2\ns_add_u32 {sT4}, {sT4}, {sW}\ns_lshl_b32 {sT4}, {sT4}, 14")
    e(f"s_lshl_b32 {sT3}, {sJ}, 11\ns_add_u32 {sT3}, {sT3}, {sT4}")
    e(f"s_lshr_b32 {sT2}, {sW}, 1\ns_lshl_b32 {sT2}, {sT2}, 10")
    e(f"s_add_u32 {sCnt}, {sT3}, {sT2}\ns_xor_b32 {sT2}, {sT2}, 1024\ns_add_u32 {sT2}, {sT3}, {sT2}")
for k, s_ in enumerate(st):
    F[49 + k // 3].append(s_)
F[62].append(lambda: e(f"ds_write_b128 v{CX}, {vr(ACC+16)}", tag="csw"))


def xres():
    e(f"s_lshr_b32 {sT5}, {sMode}, 1\ns_add_u32 m0, {sT5}, {LXR}")
    m0c[0] = None
    e(f"buffer_load_dwordx4 {vMisc}, {SX}, {sT1} offen lds", tag="xres")
    e(f"v_xor_b32 {vMisc}, 64, {vMisc}\ns_add_u32 {sT1}, {sT1}, {8192-1024}")
    e(f"buffer_load_dwordx4 {vMisc}, {SX}, {sT1} offen offset:1024 lds", tag="xres")


F[16].append(xres)
if DU:
    slots = [int(t) for t in str(OPT["dsl"]).split("_")]
    assert len(slots) == len(DU) and slots[-1] < OPT["pfa"] and max(slots) < 49
    for sl_, u in zip(slots, DU):
        F[sl_].append(u)
for k in list(range(OPT["pfa"], 64, OPT["pfd"]))[:OPT["pfn"]]:
    F[k].append(pf)
with Cap() as st:
    tr_bases12(LW2, False, 108)
for k, s_ in enumerate(st):
    F[55 + k // 2].append(s_)

D = 10


def rd1(i):
    ks, sl = i >> 2, i & 3
    p1_pre(i)
    b = 192 + 4 * (i & 15)
    for r in range(2):
        e(f"ds_read_b64_tr_b16 {ar(b+2*r, 2)}, v{TRB+sl} offset:{4096*ks+2048*r}", tag=f"a{i}")


for i in range(D):
    rd1(i)
for i in range(64):
    ks, sl = i >> 2, i & 3
    if i + D < 64:
        rd1(i + D)
    if i % 2 == 0:
        A.wait_lg(f"a{i+1}")
    c = vr(ACC + 4 * sl) if ks > 0 else "0"
    e(f"v_mfma_f32_16x16x32_bf16 {vr(ACC+4*sl)}, {ar(192+4*(i&15))}, {vr(BF+4*ks)}, {c}")
    if sl == 0:
        c = vr(ACC + 16) if ks > 0 else "0"
        e(f"v_mfma_f32_16x16x32_bf16 {vr(ACC+16)}, {ar(192+4*(i&15))}, {vr(ONES)}, {c}")
    for f in F[i]:
        run(f)
stamp(1, 2)
go_check(True)
A.wait_vm("w2c3")
stamp(3)
A.wait_lg0()
e("s_barrier")
for i in range(1, 4):
    e(f"ds_read_b128 {vr(ACC+16+4*i)}, v{CX+i}", tag=f"cs{i}")
e(f"buffer_load_dword v59, v62, {SWS}, 0 offen sc0", tag="hel")
A.wait_lg0()
for i in range(4):
    for h in (0, 2):
        e(f"v_pk_fma_f32 {vr(ACC+4*i+h, 2)}, {vr(ACC+16+4*i+h, 2)}, v[{cI}:{cM}], {vr(ACC+4*i+h, 2)} op_sel:[0,1,0] op_sel_hi:[1,1,1]")
hG = hook("hG")
for i in range(4):
    if hG: run(hG.pop(0))
    for s_ in gelu4pk(ACC + 4 * i, TMP + 4 * (i & 1), [TMP + 8 + 2 * i, TMP + 9 + 2 * i]):
        e(s_)
Lx = lab("Lx")
e(f"s_bitcmp0_b32 {sW}, 0\ns_cbranch_scc1 {Lx}")
for i2 in range(2):
    for d in range(2):
        e(f"v_swap_b32 v{TMP+8+4*i2+d}, v{TMP+10+4*i2+d}")
e(f"{Lx}:")
e(f"buffer_store_dwordx4 {vr(TMP+8)}, {vL16}, {SWS}, {sCnt} offen{fl('gst')}", tag="gst")
e(f"buffer_store_dwordx4 {vr(TMP+12)}, {vL16}, {SWS}, {sT2} offen{fl('gst')}", tag="gst")
stamp(2, 3)
e(f"s_mul_i32 {sW3m}, {sW}, 7168\ns_lshl_b32 {sStg}, {sW}, 13\ns_add_u32 {sStg}, {sStg}, {LST}")
e(f"s_and_b32 {sW3o}, {sW}, 1\ns_mul_i32 {sW3o}, {sW3o}, 114688\ns_lshr_b32 {sT5}, {sW}, 1\ns_add_u32 {sT5}, {sT5}, {sRot3}")
for per in range(4):
    e(f"s_add_u32 s{W3B[per]}, {sT5}, {2*per}\ns_and_b32 s{W3B[per]}, s{W3B[per]}, 7\ns_mul_i32 s{W3B[per]}, s{W3B[per]}, 229376\ns_add_u32 s{W3B[per]}, s{W3B[per]}, {sW3o}")
XA = 96


def pre_pub():
    e(f"s_add_u32 s60, s28, {FLAG_OFF}\ns_addc_u32 s61, s29, 0")
    for mm in range(4):
        e(f"s_add_u32 {sT6}, {sRep}, {mm}\ns_and_b32 {sT6}, {sT6}, 3\ns_and_b32 {sT5}, {sT6}, 1\ns_mul_i32 {sT6}, {sT6}, 7\ns_add_u32 {sT6}, {sT6}, {sT5}\ns_lshl_b32 s{KF[mm]}, {sT6}, 10")
        if mm < 2:
            e(f"s_cmp_eq_u32 {sT5}, 0\ns_cselect_b32 s{DH[mm]}, 6, -1\ns_lshl_b32 s{DH[mm]}, s{DH[mm]}, 10")
    e(f"v_and_b32 v44, 15, {vL}\nv_lshrrev_b32 v45, 5, {vL}\nv_bfe_u32 v46, {vL}, 1, 3\nv_xor_b32 v45, v45, v46\nv_bfe_u32 v46, {vL}, 4, 1")
    e(f"v_lshlrev_b32 v44, 7, v44\nv_lshl_add_u32 v44, v46, 3, v44\nv_lshl_add_u32 v44, v45, 4, v44")
    e(f"s_lshr_b32 {sT5}, {sMode}, 1\ns_add_u32 {sT5}, {sT5}, {LXR}\nv_add_u32 v{XA}, {sT5}, v44")
    for fb in range(1, 4):
        e(f"v_xor_b32 v{XA+fb}, {32*fb}, v{XA}")
    for fb in range(4):
        e(f"ds_read_b64 {vr(100+2*fb, 2)}, v{XA+fb}", tag="xrr")
    e(f"s_and_b32 {sPar}, {sM}, 1")
    e(f"s_lshl_b32 {sT1}, {sS}, 2\ns_add_u32 {sT1}, {sT1}, {sW}\ns_lshl_b32 {sT1}, {sT1}, 10")
    e(f"s_lshl_b32 {sT2}, {sJ}, 2\ns_add_u32 {sT2}, {sT2}, {sT1}\ns_add_u32 {sT2}, {sT2}, {FLAG_OFF}")


def g_pub():
    stamp(3)
    A.wait_vm("gst")
    stamp(3)
    Lh, Lh2, Lh3 = lab("Lh"), lab("Lh2"), lab("Lh3")
    e(f"v_cmp_eq_u32 vcc, {sHello}, v59")
    e(f"s_mov_b32 {sMode}, 0\ns_mov_b32 {sCnt}, 0")
    e(f"s_cmp_eq_u32 vcc_lo, 15\ns_cbranch_scc1 {Lh3}")
    e(f"{Lh}:")
    A.raw(f"s_load_dwordx4 s[36:39], s[42:43], 0 glc")
    e("s_waitcnt lgkmcnt(0)")
    e("s_and_b64 s[40:41], s[36:37], s[38:39]\ns_and_b32 s40, s40, s41\ns_and_b32 s40, s40, 0x80808080")
    e(f"s_cmp_eq_u32 s40, 0x80808080\ns_cbranch_scc1 {Lh2}")
    e(f"s_add_u32 {sCnt}, {sCnt}, 1\ns_cmp_gt_u32 {sCnt}, 30000\ns_cbranch_scc1 L_end")
    e(f"s_branch {Lh}")
    e(f"{Lh2}:")
    for i in range(4): e(f"s_xor_b32 s{36+i}, s{36+i}, {sHello}")
    e("s_or_b64 s[36:37], s[36:37], s[38:39]\ns_or_b32 s36, s36, s37")
    e(f"s_cselect_b32 {sMode}, 4096, 0")
    e(f"{Lh3}:")
    publish(sT2, OPT["r1"])


def post_pub():
    A.wait_lg("xrr")
    for fb in range(4):
        e(f"v_add_u32 v{XA+fb}, {LX1R-LXR}, v{XA+fb}")
        for d in range(2):
            e(f"v_lshlrev_b32 v{ACC+4*fb+2*d}, 16, v{100+2*fb+d}")
            e(f"v_and_b32 v{ACC+4*fb+2*d+1}, 0xffff0000, v{100+2*fb+d}")
    for pp in range(8):
        e(f"s_add_u32 s{44+pp}, {sRot1}, {pp}\ns_and_b32 s{44+pp}, s{44+pp}, 7\ns_lshl_b32 s{44+pp}, s{44+pp}, 11\ns_add_u32 s{44+pp}, s{44+pp}, {sT4}")


GB = BF + 64
NG0 = OPT["ng0"]
gq = []


def g_issue(p):
    e(f"buffer_load_dwordx4 {vr(GB+4*p)}, {vL16}, {SWS}, s{44+(p>>1)} offen offset:{1024*(p&1)}{fl('ld')}", tag=f"g{p}")


def g_poll():
    poll(sT1, 8, OPT["r1"], None, (lambda: pf(True)) if OPT["pfp"] & 1 else None)
    stamp(1, 3)
    gq.extend([lambda p=p: g_issue(p) for p in range(NG0)])
    for _ in range(OPT["ngi"]):
        gq.pop(0)()


PG = OPT["pubg"]
assert OPT["polg"] >= 128 or 12 < PG < OPT["polg"]
if PG < 128:
    pre_pub()
hA = hook("hA")
for i in range(64):
    ks, sl = i >> 2, i & 3
    for r in range(2):
        e(f"ds_read_b64_tr_b16 {ar(4*i+2*r, 2)}, v{TRB+sl} offset:{4096*ks+2048*r}", tag="w2f")
        if 2 * i + r == PG:
            g_pub()
        if 2 * i + r == 12 and PG < 128:
            post_pub()
        k = 2 * i + r - OPT["fr0"]
        if 2 * i + r == OPT["polg"]:
            g_poll()
        elif gq:
            if (2 * i + r - OPT["polg"]) % OPT["ngd"] == 0:
                gq.pop(0)()
        elif k >= 0 and k % OPT["frd"] == 0 and hA:
            run(hA.pop(0))
while gq: gq.pop(0)()
for f in hA: run(f)
assert w3s[0] <= 21
if PG >= 128:
    pre_pub()
    g_pub()
    post_pub()
A.wait_lg0()
e("s_barrier")
for n in range(1, 4):
    e(f"v_add_u32 {W4V[n]}, {7168*n}, {vW4d}")
for f in hook("hB"): run(f)
if OPT["polg"] >= 128:
    g_poll()
for f in gq: f()
e(f"s_lshl_b32 {sT1}, {sS}, 1\ns_lshr_b32 {sT2}, {sW}, 1\ns_add_u32 {sT1}, {sT1}, {sT2}")
e(f"s_lshl_b32 {sT6}, {sT1}, 10")
e(f"s_lshl_b32 {sT2}, {sT1}, 15\ns_lshl_b32 {sT3}, {sJ}, 12\ns_add_u32 {sT2}, {sT2}, {sT3}")
e(f"s_and_b32 {sT3}, {sW}, 1\ns_lshl_b32 {sT4}, {sT3}, 8\ns_add_u32 {sT2}, {sT2}, {sT4}\ns_add_u32 {sT2}, {sT2}, {X1_OFF}")
e(f"s_lshl_b32 {sT1}, {sT1}, 11\ns_lshl_b32 {sT4}, {sJ}, 8\ns_add_u32 {sT1}, {sT1}, {sT4}")
e(f"s_lshl_b32 {sT4}, {sT3}, 7\ns_add_u32 {sT1}, {sT1}, {sT4}\ns_add_u32 {sT1}, {sT1}, {STAT_OFF}")
e(f"s_lshl_b32 {sT3}, {sT3}, 3\ns_add_u32 {sT3}, {sT3}, {sJ}\ns_lshl_b32 {sT3}, {sT3}, 2")
e(f"s_add_u32 {sT3}, {sT6}, {sT3}\ns_add_u32 {sT3}, {sT3}, {FLAG_OFF + 8192}")
e(f"v_and_b32 v54, 15, {vL}\nv_lshrrev_b32 v55, 4, {vL}\nv_lshlrev_b32 v56, 3, v54\nv_lshlrev_b32 v54, 4, v54\nv_lshl_add_u32 v54, v55, 10, v54")
e(f"v_lshrrev_b32 v40, 5, {vL}\nv_bfe_u32 v41, {vL}, 4, 1\nv_bfe_u32 v42, {vL}, 2, 2\nv_and_b32 v43, 3, {vL}")
e(f"v_mul_u32_u24 v44, {896*8}, v40")
e(f"v_lshl_add_u32 v45, v42, 6, v44\nv_lshl_add_u32 v45, v41, 5, v45\nv_lshl_add_u32 v{TRB}, v43, 3, v45")
e(f"v_add_u32 v{TRB+1}, {896*64}, v{TRB}")
e(f"v_mul_u32_u24 v45, 896, v41\nv_add_u32 v44, v44, v45\nv_lshl_add_u32 v44, v42, 5, v44")
e(f"v_and_b32 v45, 1, v43\nv_lshrrev_b32 v43, 1, v43\nv_lshl_add_u32 v43, v45, 1, v43\nv_lshl_add_u32 v44, v43, 3, v44")
e(f"v_add_u32 v{TRB+2}, 768, v44\nv_add_u32 v{TRB+3}, {768+896*64}, v44")
e(f"v_bfe_u32 v42, {vL}, 2, 1\nv_cmp_eq_u32 vcc, v42, v41")
e(f"v_cndmask_b32 v{ASEL}, 0, v{ONES}, vcc")
for i in range(1, 4): e(f"v_mov_b32 v{ASEL+i}, v{ASEL}")
CSA = 124
e(f"s_mul_i32 {sT4}, {sW}, {896*16}")
e(f"v_add_u32 v{CSA}, {sT4}, v{TRB}\nv_add_u32 v{CSA+1}, {sT4}, v{TRB+2}")
e(f"v_and_b32 v48, 31, {vL}\nv_lshlrev_b32 v48, 3, v48\nv_lshl_add_u32 v48, v40, 10, v48")
F = {i: [] for i in range(64)}
lq = [lambda p=p: g_issue(p) for p in range(NG0, 16)] + hook("hC")
for k, f in enumerate(lq):
    F[k * OPT["p2d"]].append(f)
for i in range(64):
    ks, sl = i >> 2, i & 3
    if sl == 0:
        A.wait_vm(f"g{ks}")
    e(f"v_mfma_f32_16x16x32_bf16 {vr(ACC+4*sl)}, {ar(4*i)}, {vr(GB+4*ks)}, {vr(ACC+4*sl)}")
    for f in F[i]:
        run(f)
stamp(1, 3)
for i in range(8):
    e(f"v_cvt_pk_bf16_f32 v{X1P+i}, v{ACC+2*i}, v{ACC+2*i+1}")
e(f"buffer_store_dwordx4 {vr(X1P)}, v54, {SWS}, {sT2} offen{fl('xst')}", tag="xst")
e(f"buffer_store_dwordx4 {vr(X1P+4)}, v54, {SWS}, {sT2} offen offset:512{fl('xst')}", tag="xst")
for i in range(8):
    e(f"v_dot2_f32_bf16 v40, v{X1P+i}, v{ONES}, {'0' if i == 0 else 'v40'}")
    e(f"v_dot2_f32_bf16 v42, v{X1P+i}, v{X1P+i}, {'0' if i == 0 else 'v42'}")
reduce_q(40, 42, 41)
e("s_mov_b64 exec, 0xffff")
e(f"buffer_store_dwordx2 v[40:41], v56, {SWS}, {sT1} offen{fl('xst')}", tag="xst")
e("s_mov_b64 exec, -1")
for f in hook("hD"): run(f)
for fb in range(4):
    e(f"ds_write_b64 v{XA+fb}, {vr(X1P+2*fb, 2)}", tag="x1r")
e(f"s_lshl_b32 {sT4}, {sW}, 11\ns_add_u32 {sT4}, {sT4}, {STAT_OFF}")
e(f"s_lshl_b32 {sT1}, {sW}, 10\ns_add_u32 {sT1}, {sT1}, 8192")
YT = list(range(8, 16))
e(f"s_lshl_b32 {sT5}, {sW}, 15\ns_add_u32 {sT5}, {sT5}, {X1_OFF}")
for bp in range(8):
    e(f"s_add_u32 s{YT[bp]}, {sRot3}, {bp}\ns_and_b32 s{YT[bp]}, s{YT[bp]}, 7\ns_lshl_b32 s{YT[bp]}, s{YT[bp]}, 12\ns_add_u32 s{YT[bp]}, s{YT[bp]}, {sT5}")
stamp(3)
A.wait_vm("xst")
stamp(3)
publish(sT3, OPT["r2"])
for f in hook("hE"): run(f)
assert w3s[0] == 28
CS = ACC + 32


def cs_items(part):
    it = []
    for q in range(4):
        for b in range(3):
            it.append((CSA, 896 * (64 * part + q) + 256 * b, b))
        if q % 2 == 0:
            it.append((CSA + 1, 896 * (64 * part + q), 3))
    return it


sHs, sHh, sP3 = sT2, "s62", "s63"
e(f"s_mul_i32 {sHh}, {sW}, 112\ns_mul_i32 {sHs}, {sM}, 7\ns_add_u32 {sHh}, {sHh}, {sHs}\ns_lshl_b32 {sHh}, {sHh}, 10\ns_add_u32 {sHh}, {sHh}, {H3_OFF}")
e(f"s_lshl_b32 {sHs}, {sPar}, 10\ns_add_u32 {sHs}, {sHs}, {sHh}")
e(f"s_cmp_eq_u32 {sPar}, 0\ns_cselect_b32 {sT5}, 6144, 0\ns_add_u32 {sHh}, {sHh}, {sT5}")
e(f"s_lshr_b32 {sP3}, {sW}, 1\ns_lshl_b32 {sP3}, {sP3}, 2\ns_lshr_b32 {sT5}, {sM}, 2\ns_add_u32 {sP3}, {sP3}, {sT5}\ns_lshl_b32 {sP3}, {sP3}, 11")
e(f"s_and_b32 {sT5}, {sM}, 3\ns_lshl_b32 {sT5}, {sT5}, 3\ns_add_u32 {sP3}, {sP3}, {sT5}")
e(f"s_and_b32 {sT5}, {sW}, 1\ns_lshl_b32 {sT5}, {sT5}, 2\ns_add_u32 {sP3}, {sP3}, {sT5}")
e(f"s_add_u32 {sP3}, {sP3}, {FLAG_OFF + 16384}")
HA = [4, 5, 6, 7]
e(f"s_mul_i32 {sH0}, {sS}, 224\ns_mul_i32 {sT5}, {sW}, 28\ns_add_u32 {sH0}, {sH0}, {sT5}")
e(f"s_lshl_b32 {sH0}, {sH0}, 10\ns_add_u32 {sH0}, {sH0}, {H3_OFF}")
for mm in range(4):
    e(f"s_add_u32 s{HA[mm]}, {sH0}, s{KF[mm]}")
vH = ["v11", "v56"]
e(f"s_lshr_b32 {sT5}, {sW}, 1\ns_mul_i32 {sT5}, {sT5}, {112*1024}\nv_add_u32 {vH[0]}, {sT5}, {vL16}")
e(f"s_sub_u32 {sT5}, {112*1024}, {sT5}\nv_add_u32 {vH[1]}, {sT5}, {vL16}")
e(f"s_lshl_b32 {sT5}, {sW}, 10\ns_add_u32 {sT5}, {sT5}, {LMISC}")
e(f"v_add_u32 v126, {sT5}, {vL16}\nv_add_u32 v127, {LMISC}, {vL16}")
sQ3 = sT3
e(f"s_lshl_b32 {sQ3}, {sS}, 2\ns_add_u32 {sQ3}, {sQ3}, {sW}\ns_lshl_b32 {sQ3}, {sQ3}, 11\ns_add_u32 {sQ3}, {sQ3}, 16384")
A.wait_vm("w3")
A.wait_lg0()
e("s_barrier")
stamp(4)
for f in hook("hF"): run(f)
w4_issue(8 - w4s["iss"])
items = cs_items(0) + cs_items(1)
D = 6
cs_seen = set()
hS = hook("hS")
S0 = TMP
PY = OPT["poly"]
yq = []


def y_issue(ks):
    e(f"buffer_load_dwordx4 {vr(BF+4*ks)}, {vL16}, {SWS}, s{YT[ks>>2]} offen offset:{1024*(ks&3)}{fl('ld')}", tag=f"y{ks}")


def st_issue(jj):
    e(f"buffer_load_dwordx2 {vr(S0+2*jj, 2)}, v48, {SWS}, {sT4} offen offset:{256*jj} sc1", tag="st")


NY0 = OPT["ny0"]
for i in range(len(items) + D):
    if i == PY:
        poll(sT1, 16, OPT["r2"])
        stamp(1, 3, 4)
        yq.extend([lambda ks=ks: y_issue(ks) for ks in range(NY0)])
        for _ in range(OPT["nyi"]): yq.pop(0)()
    elif yq:
        yq.pop(0)()
    if i < len(items):
        bs, off, b = items[i]
        for r in range(2):
            e(f"ds_read_b64_tr_b16 {ar(AB+4*(i&7)+2*r, 2)}, v{bs} offset:{off+896*4*r}", tag=f"a{i}")
    k = i - D
    if k >= 0:
        if k % 2 == 0:
            A.wait_lg(f"a{k+1}")
        bs, off, b = items[k]
        c = vr(CS + 4 * b) if b in cs_seen else "0"
        cs_seen.add(b)
        if k % 4 == 1 and hS: run(hS.pop(0))
        e(f"v_mfma_f32_16x16x32_bf16 {vr(CS+4*b)}, {vr(ASEL if b < 3 else ONES)}, {ar(AB+4*(k&7))}, {c}")
HD = ACC + 48
AP = 12
BH = 22
BP = 120
S0 = TMP


def w3_addr(ks, b, r):
    j, q = ks >> 2, ks & 3
    hi = j >= 4
    off = 896 * (16 * (j - 4 * hi) + q + 4 * r)
    if b < 3:
        return TRB + hi, off + 256 * b
    return TRB + 2 + hi, off


items = [(ks, b) for ks in range(32) for b in range(2)]
NA = 64
for p in range(17):
    if p < 16:
        items += [(2 * p, 2), (2 * p + 1, 2)]
    if p > 0:
        items += [(2 * p - 2, 3)]
nrd = [0]


def rd3(upto):
    while nrd[0] <= upto and nrd[0] < len(items):
        i = nrd[0]
        ks, b = items[i]
        for r in range(2):
            bs, off = w3_addr(ks, b, r)
            e(f"ds_read_b64_tr_b16 {ar(AB+4*(i&7)+2*r, 2)}, v{bs} offset:{off}", tag=f"a{i}")
        nrd[0] += 1


def cs_exchange():
    for b in range(4):
        e(f"v_mov_b32 v{S0+b}, v{CS+4*b}")
    e(f"ds_write_b128 v126, {vr(S0)}", tag="csw")
    A.wait_lg0()
    e("s_barrier")
    for i in range(4):
        e(f"ds_read_b128 {vr(CS+4*i)}, v127 offset:{1024*i}", tag="cs")
    rd3(5)


cs_exchange()


def cs_finish():
    A.wait_lg("cs")
    for b in range(0, 4, 2):
        e(f"v_pk_add_f32 {vr(CS+b, 2)}, {vr(CS+b, 2)}, {vr(CS+4+b, 2)}\nv_pk_add_f32 {vr(CS+8+b, 2)}, {vr(CS+8+b, 2)}, {vr(CS+12+b, 2)}")
    for b in range(0, 4, 2):
        e(f"v_pk_add_f32 {vr(CS+b, 2)}, {vr(CS+b, 2)}, {vr(CS+8+b, 2)}")
    for b in range(4):
        e(f"v_cvt_pk_bf16_f32 v{AP+2*b}, v{CS+b}, v{CS+b}")
        e(f"v_and_b32 v{S0}, 0xffff0000, v{AP+2*b}")
        e(f"v_sub_f32 v{S0}, v{CS+b}, v{S0}")
        e(f"v_cvt_pk_bf16_f32 v{AP+2*b+1}, v{S0}, v{S0}")
    e(f"v_mov_b32 v{AP+8}, 0\nv_mov_b32 v{AP+9}, 0")
    e(f"v_mov_b32 v{BH}, 0\nv_mov_b32 v{BH+2}, 0\nv_mov_b32 v{BH+3}, 0\nv_mov_b32 v{BP+2}, 0\nv_mov_b32 v{BP+3}, 0")


if PY > 40:
    poll(sT1, 16, OPT["r2"], cs_finish, (lambda: pf(True)) if OPT["pfp"] & 2 else None)
    stamp(1, 3, 4)
else:
    while yq: yq.pop(0)()
    cs_finish()
    for jj in range(4): st_issue(jj)


for ks in range(NY0 if PY > 40 else 0):
    y_issue(ks)
    if ks == 3:
        for jj in range(4): st_issue(jj)
F = {i: [] for i in range(len(items))}
for k, ks in enumerate(range(NY0, 32)):
    F[2 * k].append(lambda ks=ks: y_issue(ks))
with Cap() as st:
    e(f"v_add_f32 v{S0}, v{S0}, v{S0+2}\nv_add_f32 v{S0+1}, v{S0+1}, v{S0+3}\nv_add_f32 v{S0+4}, v{S0+4}, v{S0+6}\nv_add_f32 v{S0+5}, v{S0+5}, v{S0+7}")
    e(f"v_add_f32 v{S0}, v{S0}, v{S0+4}\nv_add_f32 v{S0+1}, v{S0+1}, v{S0+5}")
    e(f"v_mov_b32 v{S0+2}, v{S0}\nv_mov_b32 v{S0+3}, v{S0+1}")
    e(f"v_permlane32_swap_b32 v{S0}, v{S0+2}\nv_permlane32_swap_b32 v{S0+1}, v{S0+3}")
    e(f"v_add_f32 v{S0}, v{S0}, v{S0+2}\nv_add_f32 v{S0+1}, v{S0+1}, v{S0+3}")
    stat_consts(S0, S0 + 1, S0 + 2)
    e(f"v_cvt_pk_bf16_f32 v{S0}, v{cM}, v{cM}\nv_and_b32 v{S0}, 0xffff0000, v{S0}\nv_sub_f32 v{S0}, v{cM}, v{S0}")
    e(f"v_cvt_pk_bf16_f32 v{S0}, v{cM}, v{S0}")
    e(f"v_cmp_gt_u32 vcc, 32, {vL}")
    e(f"v_cndmask_b32 v{BP}, 0, v{S0}, vcc")
    e(f"v_mov_b32 v{BP+1}, v{BP}\nv_mov_b32 v{BH+4}, v{BP}")
    e(f"v_permlane16_swap_b32 v{BH+4}, v{BH}")
    e(f"v_mov_b32 v{BH+5}, v{BH+4}\nv_mov_b32 v{BH+1}, v{BH}")
IS = 64 - (len(st) + 2) // 3
for k, s_ in enumerate(st):
    F[IS + k // 3].append(s_)
wq = []
for c in range(OPT["wa0"] and 2):
    wq += [lambda: w4_read(2), lambda: w4_read(2)]
for k, f in enumerate(wq):
    F[OPT["wa0"] + 2 * k + 1].append(f)
i0 = 2 * (32 - NY0)
if OPT["wa0"]:
    F[i0].append(w4_release)
    for k in range(8):
        F[i0 + k * OPT["wad"]].append(lambda: w4_issue(1))
for k, f in enumerate(hook("hP")):
    F[1 + 4 * k].append(f)
started = set()


def corr(b):
    e(f"v_mfma_f32_32x32x16_bf16 {vr(ACC+16*b, 16)}, {vr(AP+2*b)}, {vr(BP)}, {vr(ACC+16*b, 16)}")


def mf3(i):
    ks, b = items[i]
    if b == 3 and b not in started:
        A.wait_vm("pf")
    if b < 3:
        c = vr(ACC + 16 * b, 16) if b in started else "0"
        e(f"v_mfma_f32_32x32x16_bf16 {vr(ACC+16*b, 16)}, {ar(AB+4*(i&7))}, {vr(BF+4*ks)}, {c}")
    else:
        for u in range(2):
            c = vr(HD + 4 * u) if b in started else "0"
            e(f"v_mfma_f32_16x16x32_bf16 {vr(HD+4*u)}, {ar(AB+4*(i&7))}, {vr(BF+4*ks+4*u)}, {c}")
    started.add(b)


for i in range(NA):
    ks, b = items[i]
    if b == 0:
        rd3(i + 7)
        A.wait_vm(f"y{ks}")
        A.wait_lg(f"a{i+1}")
    if i == 32:
        stamp(4)
    mf3(i)
    for f in F[i]:
        run(f)
corr(0)
corr(1)
stamp(1, 4)


def h3_store(dsts, blk):
    for c2 in range(2):
        off = 2048 * blk + 1024 * c2
        if off == 4096:
            e(f"s_add_u32 {sHs}, {sHs}, 4096")
        e(f"buffer_store_dwordx4 {vr(dsts+4*c2)}, {vL16}, {SWS}, {sHs} offen offset:{off&4095}{fl('hst')}", tag=f"h{blk}")


def epi_pk(acc, T, dsts, fill, ng=4):
    k = 0
    for g in range(ng):
        for s_ in gelu4pk(acc + 4 * g, T + 4 * (g & 1), [dsts + 2 * g, dsts + 2 * g + 1]):
            e(s_)
            k += 1
            if k % 5 == 0 and fill:
                run(fill.pop(0))


def pub3(tag):
    A.wait_vm(tag)
    publish(sP3, OPT["r3"])
    e(f"s_add_u32 {sP3}, {sP3}, 512")


fill = []
for c in range(OPT["wg"]):
    fill += [f for f in w4_cycle()] + [None] * 7
epi_pk(ACC, TMP, TMP + 8, fill)
h3_store(TMP + 8, 0)
epi_pk(ACC + 16, TMP, X1P, fill)
h3_store(X1P, 1)
for f in fill:
    run(f)
stamp(4, 5)
fill = []
for c in range(OPT["wb"]):
    fill += w4_cycle() + [None] * OPT["wbg"]
zs = [0]


def z_issue(n=1):
    for _ in range(n):
        z = zs[0]
        if z >= 56:
            return
        mm, ksl = P4K[z >> 1]
        blk, c2 = KSL[ksl]
        tb = z & 1
        so, off = f"s{HA[mm]}", 2048 * blk + 1024 * c2
        if blk == 3:
            so, off = sT5, 0
            if tb == 0:
                e(f"s_add_u32 {sT5}, s{HA[mm]}, s{DH[mm&1]}")
        elif blk == 2:
            so, off = sT5, 1024 * c2
            if tb == 0 and c2 == 0:
                e(f"s_add_u32 {sT5}, s{HA[mm]}, 4096")
        e(f"buffer_load_dwordx4 {vr(BF+4*(z&31))}, {vH[tb]}, {SWS}, {so} offen offset:{off}{fl('ld')}", tag=f"z{z}")
        zs[0] += 1


def phb(lo, hi, zz):
    for i in range(lo, hi):
        ks, b = items[i]
        rd3(i + 6)
        A.wait_lg(f"a{i}")
        mf3(i)
        if b == 2 and ks % 2 == 0 and ks > 0 or i == len(items) - 2:
            k2 = ks - 2 if i != len(items) - 2 else 30
            if i == len(items) - 2:
                corr(2)
            for d in range(4):
                e(f"v_permlane16_swap_b32 v{BF+4*k2+d}, v{BF+4*k2+4+d}")
        if i == NA + 3 * OPT["pubb"]:
            pub3("h1")
        elif i > NA + 2:
            for _ in range(OPT["wbn"]):
                if fill:
                    run(fill.pop(0))
        if zz and zs[0] < OPT["zla"]:
            z_issue(1)


PA = NA + OPT["pola"]
phb(NA, PA, 0)
poll(sQ3, 8, OPT["r3"], lambda: phb(PA, PA + 4, 0))
stamp(5)
e(f"s_add_u32 {sQ3}, {sQ3}, 512")
phb(PA + 4, len(items), 1)
e(f"v_mfma_f32_16x16x32_bf16 {vr(HD)}, {vr(AP+4)}, {vr(BH+2)}, {vr(HD)}")
e(f"v_mfma_f32_16x16x32_bf16 {vr(HD+4)}, {vr(AP+6)}, {vr(BH)}, {vr(HD+4)}")
for f in fill:
    run(f)
stamp(1, 4, 5)
sys.stderr.write(f"w4 state at P3 end {w4s}\n")
def tail1():
    e(f"v_and_b32 v60, 31, {vL}\nv_bfe_u32 v61, {vL}, 1, 3\nv_lshrrev_b32 v62, 5, {vL}")
    e(f"s_and_b32 {sT5}, {sW}, 1\ns_lshl_b32 {sT5}, {sT5}, 2\nv_xor_b32 v61, {sT5}, v61")
    e(f"s_lshr_b32 {sT5}, {sW}, 1\ns_lshl_b32 {sT5}, {sT5}, 12\ns_add_u32 {sT5}, {sT5}, {LX1R}")
    e(f"v_lshl_add_u32 v60, v60, 7, {sT5}\nv_lshl_add_u32 v60, v61, 4, v60\nv_lshl_add_u32 v60, v62, 3, v60")
    for g in range(1, 4):
        e(f"v_xor_b32 v{60+g}, {16*g}, v60")
    for g in range(4):
        e(f"ds_read_b64 {vr(ACC+16+2*g, 2)}, v{60+g}", tag="xr")
    epi_pk(ACC + 32, TMP, TMP + 8, [])
    h3_store(TMP + 8, 2)


z_issue(OPT["zla"] - zs[0])
tail1()
for d in range(4):
    e(f"v_permlane16_swap_b32 v{HD+d}, v{HD+4+d}")
epi_pk(HD, TMP, X1P, [], 2)
e(f"buffer_store_dwordx4 {vr(X1P)}, {vL16}, {SWS}, {sHh} offen{fl('hst')}", tag="h3")
A.wait_lg("xr")
for g in range(4):
    for d in range(2):
        e(f"v_lshlrev_b32 v{ACC+4*g+2*d}, 16, v{ACC+16+2*g+d}")
        e(f"v_and_b32 v{ACC+4*g+2*d+1}, 0xffff0000, v{ACC+16+2*g+d}")
stamp(1, 4, 5)
started = {0}
F = {i: [] for i in range(112)}
F[OPT["pub2"]].append(lambda: (pub3("h3"), stamp(5)))

fill = []
while len(fill) // 8 * 4 + w4s["con"] < 56:
    fill += w4_cycle() + [None]
for k, f in enumerate(fill):
    F[1 + k].append(f)
with Cap() as st:
    e("s_barrier")
    e(f"s_lshl_b32 {sT4}, {sW}, 14\nv_add_u32 v40, {sT4}, {vL16}")
    for i in range(1, 4):
        e(f"v_xor_b32 v{40+i}, {16384*i}, v40")
    e(f"s_lshr_b32 {sT1}, {sW}, 1\ns_lshl_b32 {sT1}, {sT1}, 15\ns_and_b32 {sT4}, {sW}, 1\ns_lshl_b32 {sT4}, {sT4}, 6\ns_add_u32 {sT1}, {sT1}, {sT4}")
    if OPT["otr"]:
        e(f"v_and_b32 v44, 31, {vL}\nv_lshrrev_b32 v45, 5, {vL}\nv_bfe_u32 v46, {vL}, 1, 2\nv_lshlrev_b32 v44, 6, v44")
        e(f"v_lshl_add_u32 v44, v45, 3, v44\nv_lshl_add_u32 v44, v46, 4, v44\ns_lshl_b32 {sT4}, {sW}, 14\nv_add_u32 v32, {sT4}, v44")
        for g in range(1, 4):
            e(f"v_xor_b32 v{32+g}, {16*g}, v32")
        e(f"v_bfe_u32 v45, {vL}, 3, 2\nv_lshlrev_b32 v45, 4, v45\nv_xor_b32 v36, v45, v40")
        e(f"v_lshrrev_b32 v44, 2, {vL}\nv_and_b32 v45, 3, {vL}\nv_lshlrev_b32 v44, 10, v44\nv_lshl_add_u32 v44, v45, 4, v44")
        e(f"s_add_u32 {sT4}, {sT1}, 16384")
    else:
        e(f"v_and_b32 v44, 31, {vL}\nv_lshrrev_b32 v45, 5, {vL}\nv_lshlrev_b32 v44, 10, v44\nv_lshl_add_u32 v44, v45, 4, v44")
for k, s_ in enumerate(st):
    F[92 + k // 2].append(s_)


def p4(lo, hi):
    for i in range(lo, hi):
        z, b = i >> 1, i & 1
        mm, ksl = P4K[z >> 1]
        if b == 0:
            A.wait_vm(f"z{z}")
            if z % 4 == 0:
                assert w4s["con"] >= z + 4, (z, w4s)
                A.wait_lg(f"w4c{z+3}")
        sl = 2 * (z & 1) + b
        c = vr(ACC + 16 * sl, 16) if sl in started else "0"
        started.add(sl)
        e(f"v_mfma_f32_32x32x16_bf16 {vr(ACC+16*sl, 16)}, {ar(8*(7*mm+ksl)+4*b)}, {vr(BF+4*(z&31))}, {c}")
        if b == 1 and zs[0] < lim[0] and zs[0] - z <= OPT["zla"]:
            z_issue(1)
        for f in F[i]:
            run(f)


lim = [32]
P2_ = OPT["pol2"]
p4(0, P2_)
stamp(5)
poll(sQ3, 8, OPT["r3"], lambda: p4(P2_, P2_ + 8))
stamp(4, 5)
lim = [56]
z_issue(min(4, OPT["zla"] - (zs[0] - (P2_ + 8) // 2)))
p4(P2_ + 8, 112)
stamp(1, 5)
for i in range(1, 4):
    for g in range(4):
        e(f"ds_write_b128 v{40+i}, {vr(ACC+16*i+4*g)} offset:{RED+4096*i+1024*g}", tag="rw")
A.wait_lg0()
e("s_barrier")
for g in range(4):
    for i in range(1, 4):
        e(f"ds_read_b128 {vr(BF+16*i+4*g)}, v40 offset:{RED+4096*i+1024*g}", tag=f"rr{g}")
for g in range(4):
    A.wait_lg(f"rr{g}")
    r, a = BF + 4 * g, ACC + 4 * g
    for h in (0, 2):
        e(f"v_pk_add_f32 {vr(a+h, 2)}, {vr(a+h, 2)}, {vr(r+16+h, 2)}")
        e(f"v_pk_add_f32 {vr(r+32+h, 2)}, {vr(r+32+h, 2)}, {vr(r+48+h, 2)}")
    for h in (0, 2):
        e(f"v_pk_add_f32 {vr(a+h, 2)}, {vr(a+h, 2)}, {vr(r+32+h, 2)}")
    for d in range(2):
        e(f"v_cvt_pk_bf16_f32 v{TMP+8+2*g+d}, v{a+2*d}, v{a+2*d+1}")
    if OPT["otr"]:
        e(f"ds_write_b64 v{32+g}, {vr(TMP+8+2*g, 2)} offset:{RED}", tag="ow")
    elif g % 2 == 1:
        o = TMP + 8 + 4 * (g >> 1)
        e(f"v_permlane32_swap_b32 v{o}, v{o+2}\nv_permlane32_swap_b32 v{o+1}, v{o+3}")
        e(f"buffer_store_dwordx4 {vr(o)}, v44, {SOUT}, {sT1} offen offset:{32*(g>>1)}{fl('ost')}", tag="o")
if OPT["otr"]:
    for i2 in range(2):
        e(f"ds_read_b128 {vr(BF+4*i2)}, v36 offset:{RED+1024*i2}", tag=f"or{i2}")
    for i2 in range(2):
        A.wait_lg(f"or{i2}")
        e(f"buffer_store_dwordx4 {vr(BF+4*i2)}, v44, {SOUT}, {(sT1, sT4)[i2]} offen{fl('ost')}", tag="o")
if PROF:
    stamp(5)
    A.wait_vm0()
    stamp(1, 5)
    A.wait_lg0()
    e("s_load_dwordx2 s[36:37], s[0:1], 56")
    A.wait_lg0()
    e(f"s_mov_b32 {sT1}, {PROF_OFF}")
    srd(28, 36, add=sT1, size=1 << 20)
    e(f"s_lshl_b32 {sT1}, s2, 2\ns_add_u32 {sT1}, {sT1}, {sW}\ns_lshl_b32 {sT1}, {sT1}, 6")
    e("v_mov_b32 v2, 0")
    for i in range(nstamp[0]):
        e(f"v_mov_b32 v3, s{82+2*i}")
        e(f"buffer_store_dword v3, v2, {SWS}, {sT1} offen offset:{4*i}")
    if OPT["dbg"]:
        e(f"s_lshl_b32 {sT4}, s2, 2\ns_add_u32 {sT4}, {sT4}, {sW}\ns_cmp_lg_u32 {sT4}, {OPT['dbg']}\ns_cbranch_scc1 L_end")
        e("s_mov_b64 exec, 1")
        for i in range(nstamp[0]):
            e(f"s_sub_u32 {sT4}, s{82+2*i}, s82\nv_mov_b32 v3, {sT4}")
            e(f"buffer_store_dword v3, v2, {SDBG}, 0 offen offset:{4*i} sc1")
        e(f"v_mov_b32 v3, {sMode}\nbuffer_store_dword v3, v2, {SDBG}, 0 offen offset:40 sc1")
        e("s_mov_b64 exec, -1")
    e(f"v_mov_b32 v3, {sMode}")
    e(f"buffer_store_dword v3, v2, {SWS}, {sT1} offen offset:60")
e("L_end:")
e("s_endpgm")
A.raw("L_codeend:")
A.raw('.section .rodata,"a"\n.p2align 6\n.amdhsa_kernel standalone__mixer_s_mlp__prompt_kernel')
A.raw("""  .amdhsa_next_free_vgpr 512
  .amdhsa_next_free_sgpr 102
  .amdhsa_accum_offset 256
  .amdhsa_group_segment_fixed_size 0
  .amdhsa_kernarg_size 64
  .amdhsa_user_sgpr_count 2
  .amdhsa_user_sgpr_kernarg_segment_ptr 1
  .amdhsa_system_sgpr_workgroup_id_x 1
.end_amdhsa_kernel""")
sys.stdout.write(A.text())
sys.stderr.write(f"lines {len(A.lines)} nops {A.nnop} stamps {nstamp[0]}\n")
```
